```python
import torch

def _softmax(x, axis=-1):
    return torch.softmax(x, dim=axis)
def _gelu(x):
    return torch.nn.functional.gelu(x, approximate="tanh")
def _silu(x):
    return torch.nn.functional.silu(x)
def _sigmoid(x):
    return torch.sigmoid(x)
def _layernorm(x, axis=-1, eps=1e-5):
    m = x.mean(dim=axis, keepdim=True)
    v = x.var(dim=axis, keepdim=True, unbiased=False)
    return (x - m) / torch.sqrt(v + eps)
def _scatter_add(tgt, idx, src, axis=0):
    return tgt.clone().index_add_(axis, idx, src)
def _segment_sum(src, seg, n):
    out = torch.zeros((n,) + src.shape[1:], dtype=src.dtype)
    return out.index_add_(0, seg, src)
def _pad(x, pw):
    flat = tuple(v for pair in reversed(pw) for v in pair)
    return torch.nn.functional.pad(x, flat)

kernel_name = 'concat_heads__softmax_full_mha__grouped_kv_mqa__prompt'

def setup_inputs():

    _w = (lambda a: (lambda t: t.to(torch.bfloat16) if t.is_floating_point() else t)(torch.as_tensor(a)))
    def _A_setup():
        B, S, D = 1, 2048, 640
        return {
            "x": _w((lambda *s: torch.randn(*s, dtype=torch.bfloat16) * 0.2)(B, S, D)),
            "wqkv": _w((lambda *s: torch.randn(*s, dtype=torch.bfloat16) * 0.2)(D, 3 * D)),
            "wo": _w((lambda *s: torch.randn(*s, dtype=torch.bfloat16) * 0.05)(D, D)),
        }
    _A_in = _A_setup()

    def _B_setup():
        B, S, D, H = 1, 2048, 640, 32
        Dh = D // H
        return {
            "x": _w((lambda *s: torch.randn(*s, dtype=torch.bfloat16) * 0.05)(B, S, D)),
            "wq": _w((lambda *s: torch.randn(*s, dtype=torch.bfloat16) * 0.8)(D, H * Dh)),
            "wk": _w((lambda *s: torch.randn(*s, dtype=torch.bfloat16) * 0.8)(D, Dh)),
            "wv": _w((lambda *s: torch.randn(*s, dtype=torch.bfloat16) * 0.1)(D, Dh)),
            "wo": _w((lambda *s: torch.randn(*s, dtype=torch.bfloat16) * 0.1)(H * Dh, D)),
        }
    _B_in = _B_setup()

    return {
        "A_x": _A_in["x"],
        "A_wqkv": _A_in["wqkv"],
        "A_wo": _A_in["wo"],
        "B_x": _B_in["x"],
        "B_wq": _B_in["wq"],
        "B_wk": _B_in["wk"],
        "B_wv": _B_in["wv"],
        "B_wo": _B_in["wo"],
    }

def reference(A_x, A_wqkv, A_wo, B_x, B_wq, B_wk, B_wv, B_wo):
    def _A_ref(x, wqkv, wo):
        B, S, D = x.shape
        H = 32; Dh = D // H
        qkv = (lambda x, *d: x.permute(*d))((x @ wqkv).reshape(B, S, 3, H, Dh), 2, 0, 3, 1, 4)
        q, k, v = qkv[0], qkv[1], qkv[2]
        scale = Dh ** -0.5
        scores = torch.einsum("bhqd,bhkd->bhqk", q, k) * scale
        p = _softmax(scores, axis=-1)
        o = torch.einsum("bhqk,bhkd->bhqd", p, v)
        return (lambda x, *d: x.permute(*d))(o, 0, 2, 1, 3).reshape(B, S, D) @ wo

    def _B_ref(x, wq, wk, wv, wo):
        B, S, D = x.shape
        H = 32
        Dh = D // H
        q = (lambda x, *d: x.permute(*d))((x @ wq).reshape(B, S, H, Dh), 0, 2, 1, 3)
        k = x @ wk
        v = x @ wv
        scores = torch.einsum("bhqd,bkd->bhqk", q, k) * (Dh ** -0.5)
        p = _softmax(scores, axis=-1)
        o = torch.einsum("bhqk,bkd->bhqd", p, v)
        return (lambda x, *d: x.permute(*d))(o, 0, 2, 1, 3).reshape(B, S, H * Dh) @ wo

    a = _A_ref(A_x, A_wqkv, A_wo)
    b = _B_ref(B_x, B_wq, B_wk, B_wv, B_wo)
    return torch.concatenate([a, b], axis=-1)
```

```python
class Asm:
    def __init__(self):
        self.lines = []
    def __call__(self, s):
        for l in s.strip("\n").split("\n"):
            self.lines.append(l if l.endswith(":") or l.startswith(".") or l.startswith(";") else "    " + l.strip())
    def label(self, n):
        self.lines.append(n + ":")
    def c(self, s):
        self.lines.append("    ; " + s)
    def text(self):
        return "\n".join(self.lines) + "\n"

class Regs:
    def __init__(self, start, limit, prefix):
        self.n = start; self.limit = limit; self.p = prefix; self.names = {}
    def alloc(self, name, cnt=1, align=1):
        self.n = (self.n + align - 1) // align * align
        r = self.n; self.n += cnt
        assert self.n <= self.limit, f"out of {self.p} regs at {name}"
        self.names[name] = (r, cnt)
        return r

def vr(r, n=1):
    return f"v{r}" if n == 1 else f"v[{r}:{r+n-1}]"
def sr(r, n=1):
    return f"s{r}" if n == 1 else f"s[{r}:{r+n-1}]"

def merge(primary, fillers):
    out = []
    n = len(primary); m = len(fillers)
    j = 0
    for i, p in enumerate(primary):
        out.append(p)
        while j < m and (j * n) // m <= i:
            out.extend(fillers[j]); j += 1
    assert j == m
    return out
```

```python
from asmlib import *
from gen_gemm import WS_Q, WS_O, WS_KV, TILE_B, HEAD_B, WS_SIZE, kd, header, f32bits

BUF_B = 8 * TILE_B
NBUF = 3

def gen_attn(a):
    name = "attn_kernel"
    header(a, name)
    V = Regs(1, 256, "v")
    lane = V.alloc("lane"); t0 = V.alloc("t0"); t1 = V.alloc("t1"); t2 = V.alloc("t2"); t3 = V.alloc("t3")
    vdma = V.alloc("vdma")
    vAc = V.alloc("vAc"); vKc = V.alloc("vKc"); vAn = V.alloc("vAn"); vKn = V.alloc("vKn")
    vk2l = V.alloc("vk2l")
    vq = V.alloc("vq")
    Q1 = [V.alloc("Q1a", 4, 4), V.alloc("Q1b", 4, 4)]
    Q2 = [V.alloc("Q2a", 2, 2), V.alloc("Q2b", 2, 2)]
    K1 = V.alloc("K1", 4, 4); V0 = V.alloc("V0", 4, 4); V1 = V.alloc("V1", 4, 4); K2 = V.alloc("K2", 2, 2)
    P = V.alloc("P", 8, 4)
    S = [V.alloc("SA", 16, 4), V.alloc("SB", 16, 4)]
    O = [V.alloc("OA", 16, 4), V.alloc("OB", 16, 4)]
    mx = V.alloc("mx", 2)
    SRD = "s[8:11]"
    s_w, s_gd, s_ld, s_cnt, s_nb, s_img, s_ob = 12, 13, 14, 15, 22, 23, 24
    MV, MK, MHI = "s[16:17]", "s[18:19]", "s[20:21]"

    a(f"""
s_cmp_ge_u32 s2, 256
s_cbranch_scc1 L_attn_end
s_load_dwordx2 s[4:5], s[0:1], 80
v_and_b32 v{lane}, 63, v0
v_lshrrev_b32 v{t0}, 6, v0
v_lshlrev_b32 v{vdma}, 4, v{lane}
v_readfirstlane_b32 s{s_w}, v{t0}
s_and_b32 s3, s2, 7
s_lshr_b32 s6, s2, 3
s_lshr_b32 s7, s6, 4
s_and_b32 s6, s6, 15
s_lshl_b32 s3, s3, 4
s_add_u32 s3, s3, s6
s_lshr_b32 s25, s3, 2
s_and_b32 s26, s3, 3
""")
    a(f"""
s_mov_b32 s16, 0x000fffff
s_mov_b32 s17, 0x000fffff
s_mov_b32 s18, 0xffff
s_mov_b32 s19, 0
s_mov_b32 s20, 0
s_mov_b32 s21, -1
s_cmp_eq_u32 s7, 0
s_cselect_b32 s27, s25, 32
s_mul_i32 s{s_img}, s27, {HEAD_B}
s_add_u32 s{s_img}, s{s_img}, {WS_KV}
s_mul_i32 s{s_ld}, s{s_w}, {TILE_B}
s_add_u32 s{s_gd}, s{s_img}, s{s_ld}
s_waitcnt lgkmcnt(0)
s_mov_b32 s8, s4
s_mov_b32 s9, s5
s_mov_b32 s10, {WS_SIZE}
s_mov_b32 s11, 0x20000
""")
    def dma(bufbase_expr):
        return [f"s_add_u32 m0, s{s_ld}, {bufbase_expr}",
                f"s_mov_b64 exec, {MV}",
                f"buffer_load_dwordx4 v{vdma}, {SRD}, s{s_gd} offen offset:1024 lds",
                f"buffer_load_dwordx4 v{vdma}, {SRD}, s{s_gd} offen offset:2048 lds",
                f"s_mov_b64 exec, {MK}",
                f"buffer_load_dwordx4 v{vdma}, {SRD}, s{s_gd} offen offset:3072 lds",
                f"s_mov_b64 exec, -1",
                f"buffer_load_dwordx4 v{vdma}, {SRD}, s{s_gd} offen lds",
                f"s_add_u32 s{s_gd}, s{s_gd}, {BUF_B}"]
    for l in dma(0): a(l)
    a(f"""
s_lshl_b32 s3, s26, 9
s_lshl_b32 s6, s{s_w}, 6
s_add_u32 s3, s3, s6
s_mul_i32 s3, s3, 1280
s_mul_i32 s6, s25, 40
s_add_u32 s3, s3, s6
s_mul_i32 s6, s7, {2048*1280}
s_add_u32 s3, s3, s6
s_add_u32 s{s_ob}, s3, {WS_O}
s_add_u32 s28, s3, {WS_Q}
s_add_u32 s29, s28, {32*1280}
v_and_b32 v{t0}, 31, v{lane}
v_mul_u32_u24 v{vq}, 1280, v{t0}
v_lshrrev_b32 v{t1}, 5, v{lane}
v_lshl_add_u32 v{t2}, v{t1}, 4, v{vq}
buffer_load_dwordx2 {vr(Q1[0],2)}, v{t2}, {SRD}, s28 offen
buffer_load_dwordx2 {vr(Q1[0]+2,2)}, v{t2}, {SRD}, s28 offen offset:8
buffer_load_dwordx2 {vr(Q2[0],2)}, v{vq}, {SRD}, s28 offen offset:32
buffer_load_dwordx2 {vr(Q1[1],2)}, v{t2}, {SRD}, s29 offen
buffer_load_dwordx2 {vr(Q1[1]+2,2)}, v{t2}, {SRD}, s29 offen offset:8
buffer_load_dwordx2 {vr(Q2[1],2)}, v{vq}, {SRD}, s29 offen offset:32
""")
    for l in dma(BUF_B): a(l)
    a(f"""
v_and_b32 v{t0}, 1, v{lane}
v_lshlrev_b32 v{t0}, 9, v{t0}
v_bfe_u32 v{t1}, v{lane}, 1, 1
v_lshl_add_u32 v{t0}, v{t1}, 10, v{t0}
v_bfe_u32 v{t1}, v{lane}, 2, 1
v_lshl_add_u32 v{t0}, v{t1}, 4, v{t0}
v_add_u32 v{t0}, {1024+320}, v{t0}
v_add_u32 v{t0}, s{s_ld}, v{t0}
v_mov_b32 v{P}, 0x3f803f80
v_mov_b32 v{P+1}, 0x3f803f80
v_mov_b32 v{P+2}, 0x3f803f80
v_mov_b32 v{P+3}, 0x3f803f80
v_mov_b32 v{t2}, 0x3f80
v_cmp_eq_u32 vcc, 4, v{lane}
s_nop 1
v_cndmask_b32 v{P+1}, v{P+1}, v{t2}, vcc
s_mov_b64 exec, 0x1f
ds_write_b128 v{t0}, {vr(P,4)}
ds_write_b128 v{t0}, {vr(P,4)} offset:{BUF_B}
ds_write_b128 v{t0}, {vr(P,4)} offset:{2*BUF_B}
s_mov_b64 exec, -1
v_lshlrev_b32 v{t0}, 3, v{lane}
v_add_u32 v{t0}, 3072, v{t0}
v_mov_b32 v{t1}, {1024+336}
v_cndmask_b32 v{vk2l}, v{t0}, v{t1}, {MHI}
v_mov_b32 v{vAc}, v{vdma}
v_mov_b32 v{vKc}, v{vk2l}
v_add_u32 v{vAn}, {BUF_B}, v{vdma}
v_add_u32 v{vKn}, {BUF_B}, v{vk2l}
s_mov_b32 s{s_nb}, {2*BUF_B}
s_mov_b32 s{s_cnt}, 0
""")
    for r in range(16):
        a(f"v_mov_b32 v{O[0]+r}, 0\nv_mov_b32 v{O[1]+r}, 0")
    for r in range(4):
        a(f"v_mov_b32 v{P+4+r}, 0\nv_mov_b32 v{V1+r}, 0")
    a(f"""
s_waitcnt vmcnt(4) lgkmcnt(0)
s_barrier
ds_read_b128 {vr(K1,4)}, v{vAc}
ds_read_b64 {vr(K2,2)}, v{vKc}
ds_read_b128 {vr(V0,4)}, v{vAc} offset:1024
""")
    def zero_off():
        for x in range(2):
            a(f"v_cndmask_b32 v{Q2[x]}, v{Q2[x]}, 0, {MHI}")
            a(f"v_cndmask_b32 v{Q2[x]+1}, v{Q2[x]+1}, 0, {MHI}")
    def qk(x):
        return [f"v_mfma_f32_32x32x16_bf16 {vr(S[x],16)}, {vr(K1,4)}, {vr(Q1[x],4)}, 0",
                f"v_mfma_f32_32x32x8_bf16 {vr(S[x],16)}, {vr(K2,2)}, {vr(Q2[x],2)}, {vr(S[x],16)}"]
    def rowmax(x, dst, first):
        s = S[x]
        if first:
            a(f"v_max3_f32 v{dst}, v{s}, v{s+1}, v{s+2}")
            a(f"v_max_f32 v{dst}, v{dst}, v{s+3}")
            rs = range(4, 16, 2)
        else:
            rs = range(0, 16, 2)
        for r in rs:
            a(f"v_max3_f32 v{dst}, v{dst}, v{s+r}, v{s+r+1}")
    def set_off(x, m):
        a(f"""
v_mov_b32 v{t0}, v{m}
s_nop 1
v_permlane32_swap_b32 v{m}, v{t0}
s_nop 1
v_max_f32 v{t0}, v{m}, v{t0}
v_sub_f32 v{t0}, 0, v{t0}
v_and_b32 v{t1}, 0xffff0000, v{t0}
v_sub_f32 v{t0}, v{t0}, v{t1}
v_and_b32 v{t2}, 0xffff0000, v{t0}
v_sub_f32 v{t0}, v{t0}, v{t2}
s_mov_b32 s3, 0x07060302
v_perm_b32 v{t1}, v{t2}, v{t1}, s3
v_lshrrev_b32 v{t0}, 16, v{t0}
v_cndmask_b32 v{Q2[x]}, v{Q2[x]}, v{t1}, {MHI}
v_cndmask_b32 v{Q2[x]+1}, v{Q2[x]+1}, v{t0}, {MHI}
""")
    zero_off()
    a("s_waitcnt lgkmcnt(0)")
    for x in range(2):
        for l in qk(x): a(l)
    a("s_nop 7\ns_nop 7")
    for x in range(2):
        rowmax(x, mx + x, True)
    for x in range(2):
        set_off(x, mx + x)
    a("s_nop 1")
    for l in qk(0): a(l)
    a("s_nop 7\ns_nop 3")

    def unit(x, t):
        y = 1 - x
        s = S[x]
        E = [f"v_exp_f32 v{s+i}, v{s+i}" for i in range(16)]
        C = [f"v_cvt_pk_bf16_f32 v{P+i}, v{s+2*i}, v{s+2*i+1}" for i in range(8)]
        M1, M3 = qk(y)
        M2 = f"v_mfma_f32_32x32x16_bf16 {vr(O[y],16)}, {vr(V1,4)}, {vr(P+4,4)}, {vr(O[y],16)}"
        M4 = f"v_mfma_f32_32x32x16_bf16 {vr(O[x],16)}, {vr(V0,4)}, {vr(P,4)}, {vr(O[x],16)}"
        nA, nK, no = (vAc, vKc, (t + 1) * TILE_B) if t < 7 else (vAn, vKn, 0)
        out = []
        if x == 0:
            rK1 = [f"ds_read_b128 {vr(K1,4)}, v{nA} offset:{no}"]
            rV1 = [f"ds_read_b128 {vr(V1,4)}, v{vAc} offset:{t*TILE_B+2048}"]
            rK2 = [f"ds_read_b64 {vr(K2,2)}, v{nK} offset:{no}"]
            rV0 = []
            w1 = w2 = w3 = []
            w4 = ["s_waitcnt lgkmcnt(3)"]
        else:
            rK1 = rV1 = rK2 = []
            rV0 = [f"ds_read_b128 {vr(V0,4)}, v{nA} offset:{no+1024}"]
            w1 = ["s_waitcnt lgkmcnt(2)"]; w2 = ["s_waitcnt lgkmcnt(1)"]; w3 = ["s_waitcnt lgkmcnt(0)"]
            w4 = []
        out += w1 + [M1] + rK1 + E[0:4]
        out += w2 + [M2] + rV1 + [E[4], C[0], E[5], C[1], E[6], E[7]]
        out += w3 + [M3] + rK2 + [E[8], C[2], E[9], C[3], E[10], E[11]]
        out += w4 + [M4] + rV0 + [E[12], C[4], E[13], C[5], E[14], E[15], C[6], C[7]]
        return out

    a(".p2align 6")
    a.label("L_attn_loop")
    for t in range(8):
        if t == 7:
            a("s_waitcnt vmcnt(0)")
            a("s_barrier")
            a(f"s_cmp_ge_u32 s{s_cnt}, 6")
            a("s_cbranch_scc1 L_attn_nodma")
            for l in dma(f"s{s_nb}"): a(l)
            a.label("L_attn_nodma")
        for x in range(2):
            for l in unit(x, t): a(l)
    a(f"""
v_mov_b32 v{vAc}, v{vAn}
v_mov_b32 v{vKc}, v{vKn}
v_add_u32 v{vAn}, s{s_nb}, v{vdma}
v_add_u32 v{vKn}, s{s_nb}, v{vk2l}
s_add_u32 s{s_nb}, s{s_nb}, {BUF_B}
s_cmp_eq_u32 s{s_nb}, {3*BUF_B}
s_cselect_b32 s{s_nb}, 0, s{s_nb}
s_add_u32 s{s_cnt}, s{s_cnt}, 1
s_cmp_lt_u32 s{s_cnt}, 8
s_cbranch_scc1 L_attn_loop
v_mfma_f32_32x32x16_bf16 {vr(O[1],16)}, {vr(V1,4)}, {vr(P+4,4)}, {vr(O[1],16)}
s_waitcnt lgkmcnt(0)
s_nop 7
s_nop 7
""")
    def getl(x, dst):
        a(f"""
v_mov_b32 v{dst}, v{O[x]+8}
v_mov_b32 v{t0}, v{O[x]+8}
s_nop 1
v_permlane32_swap_b32 v{t0}, v{dst}
s_nop 1
""")
    a(f"s_mov_b32 s30, {f32bits(2.0**-20):#x}\ns_mov_b32 s31, {f32bits(2.0**60):#x}\ns_mov_b32 s3, 0x7f800000\ns_mov_b64 s[34:35], -1")
    for x in range(2):
        getl(x, mx + x)
        o = O[x]
        a(f"v_max3_f32 v{t1}, abs(v{o}), abs(v{o+1}), abs(v{o+2})")
        for r in (3, 5):
            a(f"v_max3_f32 v{t1}, v{t1}, abs(v{o+r}), abs(v{o+r+1})")
        a(f"v_max_f32 v{t1}, v{t1}, abs(v{o+7})")
        a(f"v_max3_f32 v{t2}, abs(v{o+8}), abs(v{o+9}), abs(v{o+10})")
        a(f"v_max_f32 v{t2}, v{t2}, abs(v{o+11})")
        a(f"v_cndmask_b32 v{t2}, v{t2}, 0, {MHI}")
        a(f"v_add_f32 v{t3}, abs(v{o}), abs(v{o+1})")
        for r in range(2, 8):
            a(f"v_add_f32 v{t3}, v{t3}, abs(v{o+r})")
        a(f"v_add_f32 v{t0}, abs(v{o+8}), abs(v{o+9})")
        a(f"v_add_f32 v{t0}, v{t0}, abs(v{o+10})")
        a(f"v_add_f32 v{t0}, v{t0}, abs(v{o+11})")
        a(f"v_cndmask_b32 v{t0}, v{t0}, 0, {MHI}")
        a(f"v_max_f32 v{t1}, v{t1}, v{t2}")
        a(f"""
v_cmp_o_f32 vcc, v{t3}, v{t0}
s_and_b64 s[34:35], s[34:35], vcc
v_cmp_gt_f32 vcc, s3, v{t1}
s_and_b64 s[34:35], s[34:35], vcc
v_cmp_le_f32 vcc, s30, v{mx+x}
s_and_b64 s[34:35], s[34:35], vcc
v_cmp_ge_f32 vcc, s31, v{mx+x}
s_and_b64 s[34:35], s[34:35], vcc
""")
    a(f"""
s_cmp_eq_u64 s[34:35], -1
s_cbranch_scc0 L_attn_slow
L_attn_fin:
v_lshrrev_b32 v{t1}, 5, v{lane}
v_lshl_add_u32 v{t2}, v{t1}, 3, v{vq}
s_add_u32 s29, s{s_ob}, {32*1280}
""")
    for x in range(2):
        o = O[x]
        so = s_ob if x == 0 else 29
        a(f"v_rcp_f32 v{t0}, v{mx+x}\ns_nop 0")
        for r in range(12):
            a(f"v_mul_f32 v{o+r}, v{o+r}, v{t0}")
        for k in range(3):
            d = S[x] + 2 * k
            a(f"v_cvt_pk_bf16_f32 v{d}, v{o+4*k}, v{o+4*k+1}")
            a(f"v_cvt_pk_bf16_f32 v{d+1}, v{o+4*k+2}, v{o+4*k+3}")
        a(f"buffer_store_dwordx2 {vr(S[x],2)}, v{t2}, {SRD}, s{so} offen")
        a(f"buffer_store_dwordx2 {vr(S[x]+2,2)}, v{t2}, {SRD}, s{so} offen offset:16")
        a(f"s_mov_b64 exec, 0xffffffff")
        a(f"buffer_store_dwordx2 {vr(S[x]+4,2)}, v{t2}, {SRD}, s{so} offen offset:32")
        a(f"s_mov_b64 exec, -1")
    a("s_endpgm")

    a.label("L_attn_slow")
    zero_off()
    a(f"""
v_and_b32 v{t3}, 31, v{lane}
v_lshlrev_b32 v{vKc}, 3, v{t3}
v_cmp_eq_u32 s[36:37], 20, v{t3}
v_mov_b32 v{vAn}, 0x3f803f80
v_mov_b32 v{vKn}, 0x3f80
v_mov_b32 v{mx}, 0xff800000
v_mov_b32 v{mx+1}, 0xff800000
s_mov_b32 s{s_gd}, s{s_img}
s_mov_b32 s{s_cnt}, 0
L_attn_slow1:
buffer_load_dwordx4 {vr(K1,4)}, v{vdma}, {SRD}, s{s_gd} offen
buffer_load_dwordx2 {vr(K2,2)}, v{vKc}, {SRD}, s{s_gd} offen offset:3072
s_waitcnt vmcnt(0)
v_cndmask_b32 v{K2}, v{K2}, v{vAn}, {MHI}
v_cndmask_b32 v{K2+1}, v{K2+1}, v{vKn}, {MHI}
s_nop 1
""")
    for x in range(2):
        for l in qk(x): a(l)
    a("s_nop 7\ns_nop 7")
    for x in range(2):
        rowmax(x, mx + x, False)
    a(f"""
s_add_u32 s{s_gd}, s{s_gd}, {TILE_B}
s_add_u32 s{s_cnt}, s{s_cnt}, 1
s_cmp_lt_u32 s{s_cnt}, 64
s_cbranch_scc1 L_attn_slow1
""")
    for x in range(2):
        set_off(x, mx + x)
    for r in range(16):
        a(f"v_mov_b32 v{O[0]+r}, 0\nv_mov_b32 v{O[1]+r}, 0")
    a(f"""
s_mov_b32 s{s_gd}, s{s_img}
s_mov_b32 s{s_cnt}, 0
L_attn_slow2:
buffer_load_dwordx4 {vr(K1,4)}, v{vdma}, {SRD}, s{s_gd} offen
buffer_load_dwordx2 {vr(K2,2)}, v{vKc}, {SRD}, s{s_gd} offen offset:3072
buffer_load_dwordx4 {vr(V0,4)}, v{vdma}, {SRD}, s{s_gd} offen offset:1024
buffer_load_dwordx4 {vr(V1,4)}, v{vdma}, {SRD}, s{s_gd} offen offset:2048
s_waitcnt vmcnt(0)
v_cndmask_b32 v{K2}, v{K2}, v{vAn}, {MHI}
v_cndmask_b32 v{K2+1}, v{K2+1}, v{vKn}, {MHI}
""")
    for r in range(4):
        a(f"v_cndmask_b32 v{V0+r}, v{V0+r}, v{vAn}, s[36:37]")
        a(f"v_cndmask_b32 v{V1+r}, v{V1+r}, v{vAn}, s[36:37]")
    a("s_nop 1")
    for x in range(2):
        for l in qk(x): a(l)
    a("s_nop 7\ns_nop 7")
    for x in range(2):
        s = S[x]
        for i in range(16): a(f"v_exp_f32 v{s+i}, v{s+i}")
        a("s_nop 0")
        for i in range(8): a(f"v_cvt_pk_bf16_f32 v{P+i}, v{s+2*i}, v{s+2*i+1}")
        a("s_nop 1")
        a(f"v_mfma_f32_32x32x16_bf16 {vr(O[x],16)}, {vr(V0,4)}, {vr(P,4)}, {vr(O[x],16)}")
        a(f"v_mfma_f32_32x32x16_bf16 {vr(O[x],16)}, {vr(V1,4)}, {vr(P+4,4)}, {vr(O[x],16)}")
    a(f"""
s_add_u32 s{s_gd}, s{s_gd}, {TILE_B}
s_add_u32 s{s_cnt}, s{s_cnt}, 1
s_cmp_lt_u32 s{s_cnt}, 64
s_cbranch_scc1 L_attn_slow2
s_nop 7
s_nop 7
""")
    for x in range(2):
        getl(x, mx + x)
    a("s_branch L_attn_fin")
    a.label("L_attn_end")
    a("s_endpgm")
    a(kd(name, V.n))
    return (name, 256, 512, NBUF * BUF_B)
```

```python
from asmlib import *
import struct, math

WS_Q = 0
WS_O = 0x500000
WS_KV = 0xA00000
TILE_B = 3328
HEAD_B = 64 * TILE_B
WS_SIZE = 268435456
QSCALE = math.log2(math.e) / math.sqrt(20.0)
def f32bits(x): return struct.unpack("<I", struct.pack("<f", x))[0]

NST = 10

class GemmCfg:
    def __init__(self, name, MT, nslots):
        self.name = name; self.MT = MT; self.NTT = MT // 32
        self.nslots = nslots
        self.XS = MT * 128
        self.WB = self.XS * nslots
        self.WSL = 20480
        self.EB = self.WB + self.WSL * nslots
        self.NXI = MT // 32

def gemm_body(a, cfg, setup_fn, variants, epilogue_fn, has_extra):
    MT, NTT, NXI, NSL = cfg.MT, cfg.NTT, cfg.NXI, cfg.nslots
    V = Regs(1, 256, "v")
    v_lane = V.alloc("lane"); v_l16 = V.alloc("l16"); v_g = V.alloc("g")
    v_t0 = V.alloc("t0"); v_t1 = V.alloc("t1"); v_t2 = V.alloc("t2"); v_t3 = V.alloc("t3")
    v_xd = V.alloc("xd", NXI); v_wd = V.alloc("wd", 5); v_ed = V.alloc("ed", 2)
    v_xa = V.alloc("xa", 4)
    nwb = 2 if NSL <= 4 else 2
    v_wa = V.alloc("wa", 4)
    v_ea = V.alloc("ea")
    v_acc = V.alloc("acc", (NTT * 5 + 2) * 4, 4)
    v_xf = V.alloc("xf", NTT * 4 * 2, 4)
    v_wf = V.alloc("wf", 6 * 4 * 2, 4)
    v_ep = V.alloc("ep", 16, 4)
    R = dict(lane=v_lane, l16=v_l16, g=v_g, t0=v_t0, t1=v_t1, t2=v_t2, t3=v_t3, acc=v_acc, ep=v_ep, xf=v_xf, wf=v_wf)
    S_X, S_W, S_E, S_D = 8, 12, 16, 20
    s_w, s_wm, s_wn = 24, 25, 26
    s_m0, s_n0b, s_ldw, s_e = 27, 28, 29, 30
    s_xs, s_ws, s_es, s_wstep = 31, 32, 33, 34
    s_lx, s_lw, s_le = 35, 36, 37
    s_tmp = 38
    R.update(S_D=S_D, s_w=s_w, s_wm=s_wm, s_wn=s_wn, s_m0=s_m0, s_e=s_e, s_tmp=s_tmp)
    setup_fn(a, R, dict(S_X=S_X, S_W=S_W, S_E=S_E, S_D=S_D, s_m0=s_m0, s_n0b=s_n0b, s_ldw=s_ldw, s_e=s_e))
    a(f"""
v_and_b32 v{v_lane}, 63, v0
v_lshrrev_b32 v{v_t0}, 6, v0
v_and_b32 v{v_l16}, 15, v0
v_readfirstlane_b32 s{s_w}, v{v_t0}
v_bfe_u32 v{v_g}, v0, 4, 2
s_nop 2
s_lshr_b32 s{s_wm}, s{s_w}, 1
s_and_b32 s{s_wn}, s{s_w}, 1
s_mov_b32 s{s_xs}, 0
s_mov_b32 s{s_ws}, 0
s_mov_b32 s{s_es}, 0
s_lshl_b32 s{s_wstep}, s{s_ldw}, 6
s_mul_i32 s{s_lx}, s{s_w}, {MT*32}
s_mul_i32 s{s_lw}, s{s_w}, 5120
s_add_u32 s{s_lw}, s{s_lw}, {cfg.WB}
s_lshl_b32 s{s_le}, s{s_w}, 9
s_add_u32 s{s_le}, s{s_le}, {cfg.EB}
""")
    a(f"""
v_lshrrev_b32 v{v_t0}, 3, v{v_lane}
v_and_b32 v{v_t1}, 7, v{v_lane}
v_xor_b32 v{v_t1}, v{v_t1}, v{v_t0}
v_lshlrev_b32 v{v_t1}, 4, v{v_t1}
s_mul_i32 s{s_tmp}, s{s_w}, {MT//4}
s_add_u32 s{s_tmp}, s{s_tmp}, s{s_m0}
v_add_u32 v{v_t0}, s{s_tmp}, v{v_t0}
v_mul_u32_u24 v{v_t0}, 1280, v{v_t0}
v_add_u32 v{v_xd}, v{v_t0}, v{v_t1}
""")
    for i in range(1, NXI):
        a(f"v_add_u32 v{v_xd+i}, {10240*i}, v{v_xd}")
    for i in range(5):
        a(f"""
v_add_u32 v{v_t0}, {64*i}, v{v_lane}
v_mul_u32_u24 v{v_t1}, 3277, v{v_t0}
v_lshrrev_b32 v{v_t1}, 16, v{v_t1}
v_mul_u32_u24 v{v_t2}, 20, v{v_t1}
v_sub_u32 v{v_t2}, v{v_t0}, v{v_t2}
v_bfe_u32 v{v_t3}, v{v_t1}, 3, 1
v_lshlrev_b32 v{v_t3}, 1, v{v_t3}
v_xor_b32 v{v_t2}, v{v_t2}, v{v_t3}
v_lshlrev_b32 v{v_t2}, 4, v{v_t2}
s_lshl_b32 s{s_tmp}, s{s_w}, 4
v_add_u32 v{v_t1}, s{s_tmp}, v{v_t1}
v_mul_lo_u32 v{v_t1}, v{v_t1}, s{s_ldw}
v_add3_u32 v{v_wd+i}, v{v_t1}, v{v_t2}, s{s_n0b}
""")
    if has_extra:
        a(f"""
v_lshrrev_b32 v{v_t0}, 3, v{v_lane}
s_lshl_b32 s{s_tmp}, s{s_w}, 4
v_add_u32 v{v_t0}, s{s_tmp}, v{v_t0}
v_mul_u32_u24 v{v_t0}, 40, v{v_t0}
v_and_b32 v{v_t1}, 7, v{v_lane}
v_lshlrev_b32 v{v_t1}, 2, v{v_t1}
s_lshl_b32 s{s_tmp}, s{s_e}, 5
v_add3_u32 v{v_ed}, v{v_t0}, v{v_t1}, s{s_tmp}
v_add_u32 v{v_ed+1}, 320, v{v_ed}
""")
    half_rows = MT // 2
    a(f"""
v_and_b32 v{v_t0}, 7, v{v_l16}
v_xor_b32 v{v_t0}, v{v_t0}, v{v_g}
v_lshlrev_b32 v{v_t0}, 4, v{v_t0}
v_lshl_add_u32 v{v_t0}, v{v_l16}, 7, v{v_t0}
s_mul_i32 s{s_tmp}, s{s_wm}, {half_rows*128}
v_add_u32 v{v_t0}, s{s_tmp}, v{v_t0}
""")
    if NTT == 4:
        a(f"""
s_lshl_b32 s{s_tmp}, s{s_wn}, 12
v_add_u32 v{v_xa}, s{s_tmp}, v{v_t0}
v_xor_b32 v{v_xa+1}, 64, v{v_xa}
s_sub_u32 s{s_tmp}, 4096, s{s_tmp}
v_add_u32 v{v_xa+2}, s{s_tmp}, v{v_t0}
v_xor_b32 v{v_xa+3}, 64, v{v_xa+2}
""")
    else:
        a(f"""
v_mov_b32 v{v_xa}, v{v_t0}
v_xor_b32 v{v_xa+1}, 64, v{v_xa}
""")
    W1 = cfg.WB + 3 * cfg.WSL if NSL == 4 else cfg.WB + 3 * cfg.WSL
    a(f"""
v_lshrrev_b32 v{v_t0}, 2, v{v_l16}
v_lshl_add_u32 v{v_t0}, v{v_g}, 3, v{v_t0}
v_mul_u32_u24 v{v_t1}, 320, v{v_t0}
v_and_b32 v{v_t2}, 3, v{v_l16}
v_lshl_add_u32 v{v_t1}, v{v_t2}, 3, v{v_t1}
s_mul_i32 s{s_tmp}, s{s_wn}, 160
s_add_u32 s{s_tmp}, s{s_tmp}, {cfg.WB}
v_add_u32 v{v_t1}, s{s_tmp}, v{v_t1}
v_and_b32 v{v_t3}, 1, v{v_g}
v_lshlrev_b32 v{v_t3}, 5, v{v_t3}
s_lshl_b32 s{s_tmp}, s{s_wn}, 1
s_sub_u32 s{s_tmp}, 1, s{s_tmp}
v_mul_lo_u32 v{v_t3}, v{v_t3}, s{s_tmp}
v_add_u32 v{v_wa}, v{v_t1}, v{v_t3}
v_sub_u32 v{v_wa+1}, v{v_t1}, v{v_t3}
v_add_u32 v{v_wa+2}, {3*cfg.WSL}, v{v_wa}
v_add_u32 v{v_wa+3}, {3*cfg.WSL}, v{v_wa+1}
v_lshlrev_b32 v{v_t0}, 5, v{v_t0}
v_lshl_add_u32 v{v_t0}, v{v_t2}, 3, v{v_t0}
v_add_u32 v{v_ea}, {cfg.EB}, v{v_t0}
""")

    def dma_groups(stage, extra):
        slot = stage % NSL
        g = []
        for i in range(NXI):
            g.append([f"s_add_u32 m0, s{s_lx}, {slot*cfg.XS + i*1024}", "s_nop 0",
                      f"buffer_load_dwordx4 v{v_xd+i}, s[{S_X}:{S_X+3}], s{s_xs} offen lds"])
        for i in range(5):
            g.append([f"s_add_u32 m0, s{s_lw}, {slot*cfg.WSL + i*1024}", "s_nop 0",
                      f"buffer_load_dwordx4 v{v_wd+i}, s[{S_W}:{S_W+3}], s{s_ws} offen lds"])
        if extra:
            for i in range(2):
                g.append([f"s_add_u32 m0, s{s_le}, {slot*2048 + i*256}", "s_nop 0",
                          f"buffer_load_dword v{v_ed+i}, s[{S_E}:{S_E+3}], s{s_es} offen lds"])
        last = [f"s_add_u32 s{s_xs}, s{s_xs}, 128", f"s_add_u32 s{s_ws}, s{s_ws}, s{s_wstep}"]
        if extra: last.append(f"s_add_u32 s{s_es}, s{s_es}, 2560")
        g.append(last)
        return g

    def xf(step, i): return v_xf + (step * NTT + i) * 4
    def wf(step, j): return v_wf + (step * 6 + j) * 4
    def acc(i, j): return v_acc + (i * 5 + j) * 4
    def acce(i): return v_acc + (NTT * 5 + i) * 4
    R.update(acc_fn=acc, acce_fn=acce)

    def read_groups(stage, step, extra):
        slot = stage % NSL
        g = []
        xs = []
        for i in range(NTT):
            reg = v_xa + (2 if (NTT == 4 and i >= 2) else 0) + step
            xs.append([f"ds_read_b128 {vr(xf(step,i),4)}, v{reg} offset:{slot*cfg.XS + (i%2)*2048}"])
        ws = []
        for j in range(5):
            rng = 0 if slot < 3 else 2
            sb = (slot if slot < 3 else slot - 3) * cfg.WSL
            reg = v_wa + rng + (j & 1)
            ws.append([f"ds_read_b64_tr_b16 {vr(wf(step,j),2)}, v{reg} offset:{sb + (32*step)*320 + j*32}",
                       f"ds_read_b64_tr_b16 {vr(wf(step,j)+2,2)}, v{reg} offset:{sb + (32*step+4)*320 + j*32}"])
        if extra:
            ws.append([f"ds_read_b64_tr_b16 {vr(wf(step,5),2)}, v{v_ea} offset:{slot*2048 + (32*step)*32}",
                       f"ds_read_b64_tr_b16 {vr(wf(step,5)+2,2)}, v{v_ea} offset:{slot*2048 + (32*step+4)*32}"])
        k = 0
        while xs or ws:
            if xs: g.append(xs.pop(0))
            if ws: g.append(ws.pop(0))
        return g

    def mfmas(step, orient, ext, first):
        m = []
        for j in range(5):
            for i in range(NTT):
                A, B = (wf(step,j), xf(step,i)) if orient == 'T' else (xf(step,i), wf(step,j))
                c = "0" if first else vr(acc(i,j),4)
                m.append(f"v_mfma_f32_16x16x32_bf16 {vr(acc(i,j),4)}, {vr(A,4)}, {vr(B,4)}, {c}")
        if ext:
            for i in range(2):
                A, B = (wf(step,5), xf(step,i)) if ext == 'T' else (xf(step,i), wf(step,5))
                c = "0" if first else vr(acce(i),4)
                m.append(f"v_mfma_f32_16x16x32_bf16 {vr(acce(i),4)}, {vr(A,4)}, {vr(B,4)}, {c}")
        return m

    for (label, orient, ext) in variants:
        a.label(label)
        D = NXI + 5 + (2 if ext else 0)
        for st in range(NSL):
            for g in dma_groups(st, ext):
                for l in g: a(l)
        for s in range(NST):
            issued = NSL - 1 if s == 0 else min(s + NSL - 2, NST - 1)
            a(f"s_waitcnt vmcnt({D*(issued - s)})")
            a("s_barrier")
            fill = read_groups(s, 0, ext)
            if s >= 1 and s + NSL - 1 <= NST - 1:
                fill = fill + dma_groups(s + NSL - 1, ext)
            if s == 0:
                for g in fill:
                    for l in g: a(l)
            else:
                for l in merge(mfmas(1, orient, ext, False), fill): a(l)
            a("s_waitcnt lgkmcnt(0)")
            for l in merge(mfmas(0, orient, ext, s == 0), read_groups(s, 1, ext)): a(l)
            a("s_waitcnt lgkmcnt(0)")
        for l in mfmas(1, orient, ext, False): a(l)
        a("s_nop 7\ns_nop 7")
        epilogue_fn(a, R, label)
    return V.n

def kd(name, vgpr, sgpr=64):
    acc = (vgpr + 3) // 4 * 4
    return f""".section .rodata,"a"
.p2align 6
.amdhsa_kernel {name}
  .amdhsa_next_free_vgpr {vgpr}
  .amdhsa_next_free_sgpr {sgpr}
  .amdhsa_accum_offset {acc}
  .amdhsa_group_segment_fixed_size 0
  .amdhsa_kernarg_size 88
  .amdhsa_user_sgpr_count 2
  .amdhsa_user_sgpr_kernarg_segment_ptr 1
  .amdhsa_system_sgpr_workgroup_id_x 1
.end_amdhsa_kernel
.text
"""

def header(a, name):
    a(f".globl {name}\n.p2align 8\n.type {name},@function")
    a.label(name)

def gen_qkv(a):
    name = "qkv_kernel"
    cfg = GemmCfg(name, 128, 4)
    header(a, name)
    s_type, s_n, s_m = 40, 41, 42
    s_tA, s_tB = 43, 44
    def setup(a, R, S):
        S_X, S_W, S_E, S_D = S['S_X'], S['S_W'], S['S_E'], S['S_D']
        a(f"""
s_cmp_ge_u32 s2, 256
s_cbranch_scc1 L_qkv_end
s_load_dwordx4 s[48:51], s[0:1], 0
s_load_dwordx4 s[52:55], s[0:1], 24
s_load_dwordx4 s[56:59], s[0:1], 40
s_load_dwordx2 s[60:61], s[0:1], 80
s_and_b32 s3, s2, 7
s_lshr_b32 s4, s2, 3
s_lshr_b32 s5, s3, 1
s_and_b32 s3, s3, 1
s_and_b32 s6, s4, 3
s_lshl_b32 s{s_m}, s5, 2
s_add_u32 s{s_m}, s{s_m}, s6
s_lshr_b32 s4, s4, 2
s_mul_i32 s5, s3, 6
s_add_u32 s5, s5, s4
s_lshl_b32 s6, s3, 1
s_add_u32 s6, s6, s4
s_sub_u32 s6, s6, 6
s_cmp_lt_u32 s4, 6
s_cselect_b32 s{s_n}, s5, s6
s_lshr_b32 s5, s5, 2
s_lshr_b32 s7, s6, 1
s_add_u32 s7, s7, 3
s_cmp_lt_u32 s4, 6
s_cselect_b32 s{s_type}, s5, s7
s_lshl_b32 s{S['s_m0']}, s{s_m}, 7
s_mul_i32 s{S['s_n0b']}, s{s_n}, 320
s_and_b32 s{S['s_e']}, s{s_n}, 1
s_waitcnt lgkmcnt(0)
s_cmp_lt_u32 s4, 6
s_cselect_b32 s{S_X}, s48, s52
s_cselect_b32 s{S_X+1}, s49, s53
s_mov_b32 s{S_X+2}, {2048*1280}
s_mov_b32 s{S_X+3}, 0x20000
s_cselect_b32 s{S_W}, s50, s54
s_cselect_b32 s{S_W+1}, s51, s55
s_mov_b32 s3, {640*1280}
s_cselect_b32 s{S_W+2}, {640*3840}, s3
s_mov_b32 s{S_W+3}, 0x20000
s_movk_i32 s3, 1280
s_cselect_b32 s{S['s_ldw']}, 3840, s3
s_cmp_eq_u32 s{s_type}, 3
s_cselect_b32 s{S_E}, s56, s58
s_cselect_b32 s{S_E+1}, s57, s59
s_mov_b32 s{S_E+2}, {640*40}
s_mov_b32 s{S_E+3}, 0x20000
s_mov_b32 s{S_D}, s60
s_mov_b32 s{S_D+1}, s61
s_mov_b32 s{S_D+2}, {WS_SIZE}
s_mov_b32 s{S_D+3}, 0x20000
""")
    def epilogue(a, R, label):
        acc, acce = R['acc_fn'], R['acce_fn']
        t0, t1, t2, t3, ep = R['t0'], R['t1'], R['t2'], R['t3'], R['ep']
        l16, g = R['l16'], R['g']
        S_D, s_wm, s_wn, s_m0, s_tmp, s_e = R['S_D'], R['s_wm'], R['s_wn'], R['s_m0'], R['s_tmp'], R['s_e']
        srd = f"s[{S_D}:{S_D+3}]"
        def tiles_sgpr(headbase_expr_sgpr):
            a(f"""
s_lshr_b32 s{s_tmp}, s{s_m0}, 5
s_lshl_b32 s3, s{s_wm}, 1
s_add_u32 s{s_tmp}, s{s_tmp}, s3
s_add_u32 s3, s{s_tmp}, s{s_wn}
s_mul_i32 s{s_tA}, s3, {TILE_B}
s_add_u32 s{s_tA}, s{s_tA}, {headbase_expr_sgpr}
s_add_u32 s3, s{s_tmp}, 1
s_sub_u32 s3, s3, s{s_wn}
s_mul_i32 s{s_tB}, s3, {TILE_B}
s_add_u32 s{s_tB}, s{s_tB}, {headbase_expr_sgpr}
""")
        def pi16(dst):
            a(f"""
v_and_b32 v{dst}, 3, v{l16}
v_bfe_u32 v{t3}, v{l16}, 2, 1
v_lshl_add_u32 v{dst}, v{t3}, 3, v{dst}
v_bfe_u32 v{t3}, v{l16}, 3, 1
v_lshl_add_u32 v{dst}, v{t3}, 2, v{dst}
""")
        def pack(dst, src, scale=None):
            if scale is not None:
                for r in range(4):
                    a(f"v_mul_f32 v{src+r}, s{scale}, v{src+r}")
            a(f"v_cvt_pk_bf16_f32 v{dst}, v{src}, v{src+1}")
            a(f"v_cvt_pk_bf16_f32 v{dst+1}, v{src+2}, v{src+3}")
        def q_epi(isB):
            a(f"""
s_lshl_b32 s3, s{s_wm}, 6
s_add_u32 s3, s3, s{s_m0}
s_lshl_b32 s4, s{s_wn}, 5
s_add_u32 s5, s3, s4
s_add_u32 s6, s3, 32
s_sub_u32 s6, s6, s4
s_mul_i32 s5, s5, 1280
s_mul_i32 s6, s6, 1280
s_mul_i32 s7, s{s_n}, 320
s_mul_i32 s4, s{s_wn}, 160
s_add_u32 s7, s7, s4
s_add_u32 s7, s7, {WS_Q + (2048*1280 if isB else 0)}
s_add_u32 s5, s5, s7
s_add_u32 s6, s6, s7
s_add_u32 s3, s5, 20480
s_add_u32 s4, s6, 20480
v_mul_u32_u24 v{t0}, 1280, v{l16}
v_lshl_add_u32 v{t0}, v{g}, 3, v{t0}
s_mov_b32 s7, {f32bits(QSCALE):#x}
""")
            so = [5, 3, 6, 4]
            n = 0
            for i in range(4):
                for j in range(5):
                    d = ep + 2 * (n % 8); n += 1
                    pack(d, acc(i, j), 7)
                    a(f"buffer_store_dwordx2 {vr(d,2)}, v{t0}, {srd}, s{so[i]} offen offset:{j*32}")
        def k_epi():
            a(f"s_sub_u32 s4, s{s_n}, 4\ns_mul_i32 s4, s4, {8*HEAD_B}\ns_add_u32 s4, s4, {WS_KV}")
            tiles_sgpr("s4")
            pi16(t2)
            n = 0
            for j in range(5):
                a(f"""
s_mul_i32 s3, s{s_wn}, 20
s_add_u32 s3, s3, {4*j}
v_add_u32 v{t0}, s3, v{g}
v_mul_u32_u24 v{t1}, 205, v{t0}
v_lshrrev_b32 v{t1}, 10, v{t1}
v_mul_u32_u24 v{t3}, 5, v{t1}
v_sub_u32 v{t0}, v{t0}, v{t3}
s_mov_b32 s3, {HEAD_B}
v_mul_lo_u32 v{t1}, v{t1}, s3
v_lshrrev_b32 v{t3}, 1, v{t0}
v_lshl_add_u32 v{t3}, v{t3}, 5, v{t2}
v_lshlrev_b32 v{t3}, 4, v{t3}
v_and_b32 v{ep+14}, 1, v{t0}
v_lshl_add_u32 v{t3}, v{ep+14}, 3, v{t3}
v_lshlrev_b32 v{ep+14}, 3, v{t2}
v_add_u32 v{ep+14}, 3072, v{ep+14}
v_cmp_eq_u32 vcc, 4, v{t0}
v_mov_b32 v{ep+15}, 256
v_mov_b32 v{ep+13}, 128
v_cndmask_b32 v{t3}, v{t3}, v{ep+14}, vcc
v_cndmask_b32 v{ep+15}, v{ep+15}, v{ep+13}, vcc
v_add_u32 v{t0}, v{t1}, v{t3}
v_add_u32 v{t1}, v{t0}, v{ep+15}
""")
                for i in range(4):
                    d = ep + 2 * (n % 6); n += 1
                    pack(d, acc(i, j))
                    a(f"buffer_store_dwordx2 {vr(d,2)}, v{t0 if i%2==0 else t1}, {srd}, s{s_tA if i<2 else s_tB} offen")
        def v_epi():
            a(f"s_sub_u32 s4, s{s_n}, 8\ns_mul_i32 s4, s4, {8*HEAD_B}\ns_add_u32 s4, s4, {WS_KV}")
            tiles_sgpr("s4")
            a(f"""
v_lshrrev_b32 v{t2}, 1, v{g}
v_lshlrev_b32 v{t2}, 9, v{t2}
v_and_b32 v{t3}, 1, v{g}
v_lshl_add_u32 v{t2}, v{t3}, 3, v{t2}
v_add_u32 v{t2}, 1024, v{t2}
""")
            n = 0
            for j in range(5):
                a(f"""
s_mul_i32 s3, s{s_wn}, 80
s_add_u32 s3, s3, {16*j}
v_add_u32 v{t0}, s3, v{l16}
v_mul_u32_u24 v{t1}, 205, v{t0}
v_lshrrev_b32 v{t1}, 12, v{t1}
v_mul_u32_u24 v{t3}, 20, v{t1}
v_sub_u32 v{t0}, v{t0}, v{t3}
s_mov_b32 s3, {HEAD_B}
v_mul_lo_u32 v{t1}, v{t1}, s3
v_lshl_add_u32 v{t0}, v{t0}, 4, v{t2}
v_add_u32 v{t0}, v{t0}, v{t1}
""")
                for i in range(4):
                    d = ep + 2 * (n % 8); n += 1
                    pack(d, acc(i, j))
                    a(f"buffer_store_dwordx2 {vr(d,2)}, v{t0}, {srd}, s{s_tA if i<2 else s_tB} offen offset:{1024*(i%2)}")
        def ek_epi():
            a(f"s_mov_b32 s4, {WS_KV + 32*HEAD_B}")
            tiles_sgpr("s4")
            pi16(t2)
            a(f"""
v_lshrrev_b32 v{t3}, 1, v{g}
v_lshl_add_u32 v{t3}, v{t3}, 5, v{t2}
v_lshlrev_b32 v{t3}, 4, v{t3}
v_and_b32 v{t0}, 1, v{g}
v_lshl_add_u32 v{t0}, v{t0}, 3, v{t3}
v_add_u32 v{t1}, 256, v{t0}
s_cmp_eq_u32 s{s_e}, 0
s_cbranch_scc1 L_ek_go
v_lshlrev_b32 v{t0}, 3, v{t2}
v_add_u32 v{t0}, 3072, v{t0}
v_mov_b32 v{t3}, 0x7f000000
v_cmp_eq_u32 vcc, 0, v{g}
s_nop 1
v_cndmask_b32 v{t0}, v{t3}, v{t0}, vcc
v_add_u32 v{t1}, 128, v{t0}
L_ek_go:
""")
            for i in range(2):
                d = ep + 2 * i
                pack(d, acce(i))
                a(f"buffer_store_dwordx2 {vr(d,2)}, v{t0 if i==0 else t1}, {srd}, s{s_tA} offen")
        def ev_epi():
            a(f"s_mov_b32 s4, {WS_KV + 32*HEAD_B}")
            tiles_sgpr("s4")
            a(f"""
v_lshrrev_b32 v{t2}, 1, v{g}
v_lshlrev_b32 v{t2}, 9, v{t2}
v_and_b32 v{t3}, 1, v{g}
v_lshl_add_u32 v{t2}, v{t3}, 3, v{t2}
v_add_u32 v{t2}, 1024, v{t2}
s_lshl_b32 s3, s{s_e}, 4
v_add_u32 v{t0}, s3, v{l16}
v_lshl_add_u32 v{t1}, v{t0}, 4, v{t2}
v_mov_b32 v{t3}, 0x7f000000
v_cmp_gt_u32 vcc, 20, v{t0}
s_nop 1
v_cndmask_b32 v{t0}, v{t3}, v{t1}, vcc
""")
            for i in range(2):
                d = ep + 2 * i
                pack(d, acce(i))
                a(f"buffer_store_dwordx2 {vr(d,2)}, v{t0}, {srd}, s{s_tA} offen offset:{1024*i}")
        if label == "L_qkv_T":
            a(f"s_cmp_eq_u32 s{s_type}, 1\ns_cbranch_scc1 L_qkv_kepi")
            q_epi(False)
            a("s_endpgm")
            a.label("L_qkv_kepi")
            k_epi()
        elif label == "L_qkv_N":
            v_epi()
        elif label == "L_qkv_BT":
            ek_epi(); q_epi(True)
        else:
            ev_epi(); q_epi(True)
        a("s_endpgm")
    class A2:
        pass
    variants = [("L_qkv_T", 'T', None), ("L_qkv_N", 'N', None), ("L_qkv_BT", 'T', 'T'), ("L_qkv_BN", 'T', 'N')]
    orig_label = a.label
    def lab(n):
        if n == "L_qkv_T":
            a(f"""
s_cmp_eq_u32 s{s_type}, 2
s_cbranch_scc1 L_qkv_N
s_cmp_eq_u32 s{s_type}, 3
s_cbranch_scc1 L_qkv_BT
s_cmp_eq_u32 s{s_type}, 4
s_cbranch_scc1 L_qkv_BN
""")
        orig_label(n)
    a.label = lab
    nv = gemm_body(a, cfg, setup, variants, epilogue, True)
    a.label = orig_label
    a.label("L_qkv_end")
    a("s_endpgm")
    a(kd(name, nv))
    lds = cfg.EB + 4 * 2048
    return (name, 256, 256, lds)

def gen_out(a):
    name = "oproj_kernel"
    cfg = GemmCfg(name, 64, 4)
    header(a, name)
    s_br, s_n = 40, 41
    def setup(a, R, S):
        S_X, S_W, S_E, S_D = S['S_X'], S['S_W'], S['S_E'], S['S_D']
        a(f"""
s_cmp_ge_u32 s2, 256
s_cbranch_scc1 L_out_end
s_load_dwordx2 s[48:49], s[0:1], 16
s_load_dwordx2 s[50:51], s[0:1], 56
s_load_dwordx2 s[52:53], s[0:1], 64
s_load_dwordx2 s[54:55], s[0:1], 80
s_and_b32 s3, s2, 7
s_lshr_b32 s4, s2, 3
s_lshr_b32 s{s_br}, s3, 2
s_and_b32 s3, s3, 3
s_lshl_b32 s3, s3, 3
s_and_b32 s5, s4, 7
s_add_u32 s3, s3, s5
s_lshr_b32 s{s_n}, s4, 3
s_lshl_b32 s{S['s_m0']}, s3, 6
s_mul_i32 s{S['s_n0b']}, s{s_n}, 320
s_mov_b32 s{S['s_e']}, 0
s_mov_b32 s{S['s_ldw']}, 1280
s_mul_i32 s5, s{s_br}, {2048*1280}
s_add_u32 s5, s5, {WS_O}
s_waitcnt lgkmcnt(0)
s_add_u32 s{S_X}, s54, s5
s_addc_u32 s{S_X+1}, s55, 0
s_mov_b32 s{S_X+2}, {2048*1280}
s_mov_b32 s{S_X+3}, 0x20000
s_cmp_eq_u32 s{s_br}, 0
s_cselect_b32 s{S_W}, s48, s50
s_cselect_b32 s{S_W+1}, s49, s51
s_mov_b32 s{S_W+2}, {640*1280}
s_mov_b32 s{S_W+3}, 0x20000
s_mov_b32 s{S_D}, s52
s_mov_b32 s{S_D+1}, s53
s_mov_b32 s{S_D+2}, {2048*2560}
s_mov_b32 s{S_D+3}, 0x20000
""")
    def epilogue(a, R, label):
        acc = R['acc_fn']
        t0, ep, l16, g = R['t0'], R['ep'], R['l16'], R['g']
        S_D, s_wm, s_wn, s_m0 = R['S_D'], R['s_wm'], R['s_wn'], R['s_m0']
        a(f"""
s_lshl_b32 s3, s{s_wm}, 5
s_add_u32 s3, s3, s{s_m0}
s_mul_i32 s5, s3, 2560
s_mul_i32 s7, s{s_n}, 320
s_mul_i32 s4, s{s_wn}, 160
s_add_u32 s7, s7, s4
s_mul_i32 s4, s{s_br}, 1280
s_add_u32 s7, s7, s4
s_add_u32 s5, s5, s7
s_add_u32 s6, s5, {16*2560}
v_mul_u32_u24 v{t0}, 2560, v{l16}
v_lshl_add_u32 v{t0}, v{g}, 3, v{t0}
""")
        n = 0
        for i in range(2):
            for j in range(5):
                d = ep + 2 * (n % 8); n += 1
                src = acc(i, j)
                a(f"v_cvt_pk_bf16_f32 v{d}, v{src}, v{src+1}")
                a(f"v_cvt_pk_bf16_f32 v{d+1}, v{src+2}, v{src+3}")
                a(f"buffer_store_dwordx2 {vr(d,2)}, v{t0}, s[{S_D}:{S_D+3}], s{5+i} offen offset:{j*32}")
        a("s_endpgm")
    nv = gemm_body(a, cfg, setup, [("L_out_T", 'T', None)], epilogue, False)
    a.label("L_out_end")
    a("s_endpgm")
    a(kd(name, nv))
    lds = cfg.EB
    return (name, 256, 256, lds)
```

```python
import sys
from asmlib import *
import gen_gemm, gen_attn
REF = open('concat_heads__softmax_full_mha__grouped_kv_mqa__prompt.s.ref').read()
hdr = [l for l in REF.split("\n") if l.startswith(";") and "@launch" not in l and "Override launch" not in l and "grid=ceil" not in l]
a = Asm()
a('.amdgcn_target "amdgcn-amd-amdhsa--gfx950"\n.text')
ls = [gen_gemm.gen_qkv(a), gen_attn.gen_attn(a), gen_gemm.gen_out(a)]
out = "\n".join(hdr) + "\n"
for (n, g, b, lds) in ls:
    out += f"; @launch kernel={n} grid=({g},1,1) block=({b},1,1) lds={lds}\n"
out += a.text()
path = sys.argv[1] if len(sys.argv) > 1 else 'concat_heads__softmax_full_mha__grouped_kv_mqa__prompt.s'
open(path, 'w').write(out)
open('launches.txt', 'w').write("".join(f"{n} {g} 1 1 {b} 1 1 {lds}\n" for (n, g, b, lds) in ls))
```

```python
class Asm:
    def __init__(self):
        self.lines = []
    def __call__(self, s):
        for l in s.strip("\n").split("\n"):
            self.lines.append(l if l.endswith(":") or l.startswith(".") or l.startswith(";") else "    " + l.strip())
    def label(self, n):
        self.lines.append(n + ":")
    def c(self, s):
        self.lines.append("    ; " + s)
    def text(self):
        return "\n".join(self.lines) + "\n"

class Regs:
    def __init__(self, start, limit, prefix):
        self.n = start; self.limit = limit; self.p = prefix; self.names = {}
    def alloc(self, name, cnt=1, align=1):
        self.n = (self.n + align - 1) // align * align
        r = self.n; self.n += cnt
        assert self.n <= self.limit, f"out of {self.p} regs at {name}"
        self.names[name] = (r, cnt)
        return r

def vr(r, n=1):
    return f"v{r}" if n == 1 else f"v[{r}:{r+n-1}]"
def sr(r, n=1):
    return f"s{r}" if n == 1 else f"s[{r}:{r+n-1}]"

def merge(primary, fillers):
    out = []
    n = len(primary); m = len(fillers)
    j = 0
    for i, p in enumerate(primary):
        out.append(p)
        while j < m and (j * n) // m <= i:
            out.extend(fillers[j]); j += 1
    assert j == m
    return out

import os
STAMPS = os.environ.get("STAMPS", "0") == "1"
STAMP_BASE = 0x1100000
SV = [250]
def stamp_setup(a, kidx, s_w, srd_ptr_lo, vbase=250):
    if not STAMPS: return
    SV[0] = vbase
    a(f"""
s_mov_b32 s72, s{srd_ptr_lo}
s_mov_b32 s73, s{srd_ptr_lo+1}
s_mov_b32 s74, 0x10000000
s_mov_b32 s75, 0x20000
s_lshl_b32 s70, s2, 4
s_add_u32 s70, s70, s{s_w}
s_lshl_b32 s70, s70, 7
s_add_u32 s70, s70, {STAMP_BASE + kidx * 0x80000}
v_mov_b32 v{vbase+4}, 0
""")
def stamp(a, idx):
    if not STAMPS: return
    b = SV[0]
    a(f"""
s_memrealtime s[76:77]
s_memtime s[78:79]
s_waitcnt lgkmcnt(0)
v_mov_b32 v{b}, s76
v_mov_b32 v{b+1}, s77
buffer_store_dwordx2 v[{b}:{b+1}], v{b+4}, s[72:75], s70 offen offset:{idx*8}
v_mov_b32 v{b+2}, s78
v_mov_b32 v{b+3}, s79
buffer_store_dwordx2 v[{b+2}:{b+3}], v{b+4}, s[72:75], s70 offen offset:{idx*8+64}
""")
```

```python
from asmlib import *
from gen_gemm import WS_Q, WS_O, WS_KV, TILE_B, HEAD_B, WS_SIZE, kd, header, f32bits, endp
import os

SLOT_B = TILE_B + 16
BUF_B = 8 * SLOT_B
GCH_B = 8 * TILE_B
NBUF = 3
PRIO = os.environ.get("PRIO", "0")

def gen_attn(a):
    name = "attn_kernel"
    header(a, name)
    V = Regs(1, 256, "v")
    lane = V.alloc("lane"); t0 = V.alloc("t0"); t1 = V.alloc("t1"); t2 = V.alloc("t2"); t3 = V.alloc("t3")
    vdma = V.alloc("vdma")
    vAc = V.alloc("vAc"); vKc = V.alloc("vKc"); vAn = V.alloc("vAn"); vKn = V.alloc("vKn")
    vk2l = V.alloc("vk2l")
    vq = V.alloc("vq")
    Q1 = [V.alloc("Q1a", 4, 4), V.alloc("Q1b", 4, 4)]
    Q2 = [V.alloc("Q2a", 2, 2), V.alloc("Q2b", 2, 2)]
    K2 = [V.alloc("K2e", 2, 2), V.alloc("K2o", 2, 2)]
    K1 = [V.alloc("K1e", 4, 4), V.alloc("K1o", 4, 4)]
    V0 = [V.alloc("V0e", 4, 4), V.alloc("V0o", 4, 4)]
    V1 = [V.alloc("V1e", 4, 4), V.alloc("V1o", 4, 4)]
    P = V.alloc("P", 8, 4)
    S = [V.alloc("SA", 16, 4), V.alloc("SB", 16, 4)]
    O = [V.alloc("OA", 16, 4), V.alloc("OB", 16, 4)]
    mx = V.alloc("mx", 2)
    SRD = "s[8:11]"
    s_w, s_gd, s_ld, s_cnt, s_nb, s_img, s_ob = 12, 13, 14, 15, 22, 23, 24
    MV, MK, MHI = "s[16:17]", "s[18:19]", "s[20:21]"

    a(f"""
s_cmp_ge_u32 s2, 256
s_cbranch_scc1 L_attn_end
s_load_dwordx2 s[4:5], s[0:1], 80
v_and_b32 v{lane}, 63, v0
v_lshrrev_b32 v{t0}, 6, v0
v_lshlrev_b32 v{vdma}, 4, v{lane}
v_readfirstlane_b32 s{s_w}, v{t0}
s_and_b32 s3, s2, 7
s_lshr_b32 s6, s2, 3
s_lshr_b32 s7, s6, 4
s_and_b32 s6, s6, 15
s_lshl_b32 s3, s3, 4
s_add_u32 s3, s3, s6
s_lshr_b32 s25, s3, 2
s_and_b32 s26, s3, 3
""")
    a(f"""
s_mov_b32 s16, 0x000fffff
s_mov_b32 s17, 0x000fffff
s_mov_b32 s18, 0xffff
s_mov_b32 s19, 0
s_mov_b32 s20, 0
s_mov_b32 s21, -1
s_cmp_eq_u32 s7, 0
s_cselect_b32 s27, s25, 32
s_mul_i32 s{s_img}, s27, {HEAD_B}
s_add_u32 s{s_img}, s{s_img}, {WS_KV}
s_mul_i32 s{s_ld}, s{s_w}, {TILE_B}
s_add_u32 s{s_gd}, s{s_img}, s{s_ld}
s_mul_i32 s{s_ld}, s{s_w}, {SLOT_B}
s_mov_b32 s10, {WS_SIZE}
s_mov_b32 s11, 0x20000
s_waitcnt lgkmcnt(0)
s_mov_b32 s8, s4
s_mov_b32 s9, s5
""")
    stamp_setup(a, 1, s_w, 4, (V.n + 3) // 4 * 4 - 4 if False else 128 + 2)
    stamp(a, 0)
    def dma_tile(m0expr, s_g):
        return [m0expr,
                f"s_mov_b64 exec, {MV}",
                f"buffer_load_dwordx4 v{vdma}, {SRD}, s{s_g} offen offset:1024 lds",
                f"buffer_load_dwordx4 v{vdma}, {SRD}, s{s_g} offen offset:2048 lds",
                f"s_mov_b64 exec, {MK}",
                f"buffer_load_dwordx4 v{vdma}, {SRD}, s{s_g} offen offset:3072 lds",
                f"s_mov_b64 exec, -1",
                f"buffer_load_dwordx4 v{vdma}, {SRD}, s{s_g} offen lds"]
    a(f"s_cmp_eq_u32 s{s_w}, 8\ns_cbranch_scc1 L_attn_prod")
    for l in dma_tile(f"s_mov_b32 m0, s{s_ld}", s_gd): a(l)
    a(f"""
s_lshl_b32 s3, s26, 9
s_lshl_b32 s6, s{s_w}, 6
s_add_u32 s3, s3, s6
s_mul_i32 s3, s3, 1280
s_mul_i32 s6, s25, 40
s_add_u32 s3, s3, s6
s_mul_i32 s6, s7, {2048*1280}
s_add_u32 s3, s3, s6
s_add_u32 s{s_ob}, s3, {WS_O}
s_add_u32 s28, s3, {WS_Q}
s_add_u32 s29, s28, {32*1280}
v_and_b32 v{t0}, 31, v{lane}
v_mul_u32_u24 v{vq}, 1280, v{t0}
v_lshrrev_b32 v{t1}, 5, v{lane}
v_lshl_add_u32 v{t2}, v{t1}, 4, v{vq}
buffer_load_dwordx2 {vr(Q1[0],2)}, v{t2}, {SRD}, s28 offen
buffer_load_dwordx2 {vr(Q1[0]+2,2)}, v{t2}, {SRD}, s28 offen offset:8
buffer_load_dwordx2 {vr(Q2[0],2)}, v{vq}, {SRD}, s28 offen offset:32
buffer_load_dwordx2 {vr(Q1[1],2)}, v{t2}, {SRD}, s29 offen
buffer_load_dwordx2 {vr(Q1[1]+2,2)}, v{t2}, {SRD}, s29 offen offset:8
buffer_load_dwordx2 {vr(Q2[1],2)}, v{vq}, {SRD}, s29 offen offset:32
""")
    a(f"""
v_and_b32 v{t1}, 31, v{lane}
v_cmp_eq_u32 vcc, 20, v{t1}
v_mov_b32 v{t2}, 0x3f803f80
v_add_u32 v{t0}, s{s_ld}, v{vdma}
v_cndmask_b32 v{P}, 0, v{t2}, vcc
v_cndmask_b32 v{P+1}, 0, v{t2}, vcc
v_cndmask_b32 v{P+2}, 0, v{t2}, vcc
v_cndmask_b32 v{P+3}, 0, v{t2}, vcc
v_mov_b32 v{S[0]}, 0x3f803f80
v_mov_b32 v{S[0]+1}, 0x3f80
v_mov_b32 v{t1}, s{s_ld}
s_not_b64 exec, {MV}
ds_write_b128 v{t0}, {vr(P,4)} offset:1024
ds_write_b128 v{t0}, {vr(P,4)} offset:2048
ds_write_b128 v{t0}, {vr(P,4)} offset:{BUF_B+1024}
ds_write_b128 v{t0}, {vr(P,4)} offset:{BUF_B+2048}
ds_write_b128 v{t0}, {vr(P,4)} offset:{2*BUF_B+1024}
ds_write_b128 v{t0}, {vr(P,4)} offset:{2*BUF_B+2048}
s_mov_b64 exec, 1
ds_write_b64 v{t1}, {vr(S[0],2)} offset:{TILE_B}
ds_write_b64 v{t1}, {vr(S[0],2)} offset:{BUF_B+TILE_B}
ds_write_b64 v{t1}, {vr(S[0],2)} offset:{2*BUF_B+TILE_B}
s_mov_b64 exec, -1
v_lshlrev_b32 v{t0}, 3, v{lane}
v_add_u32 v{t0}, 3072, v{t0}
v_mov_b32 v{t1}, {TILE_B}
v_cndmask_b32 v{vk2l}, v{t0}, v{t1}, {MHI}
v_mov_b32 v{vAc}, v{vdma}
v_mov_b32 v{vKc}, v{vk2l}
v_add_u32 v{vAn}, {BUF_B}, v{vdma}
v_add_u32 v{vKn}, {BUF_B}, v{vk2l}
s_mov_b32 s{s_nb}, {2*BUF_B}
s_mov_b32 s{s_cnt}, 0
""")
    for r in range(16):
        a(f"v_mov_b32 v{O[0]+r}, 0\nv_mov_b32 v{O[1]+r}, 0")
    for r in range(4):
        a(f"v_mov_b32 v{P+4+r}, 0\nv_mov_b32 v{V1[1]+r}, 0")
    a(f"""
s_waitcnt vmcnt(0) lgkmcnt(0)
s_barrier
ds_read_b128 {vr(K1[0],4)}, v{vAc}
ds_read_b64 {vr(K2[0],2)}, v{vKc}
ds_read_b128 {vr(V0[0],4)}, v{vAc} offset:1024
ds_read_b128 {vr(V1[0],4)}, v{vAc} offset:2048
ds_read_b128 {vr(K1[1],4)}, v{vAc} offset:{SLOT_B}
ds_read_b64 {vr(K2[1],2)}, v{vKc} offset:{SLOT_B}
""")
    def zero_off():
        for x in range(2):
            a(f"v_cndmask_b32 v{Q2[x]}, v{Q2[x]}, 0, {MHI}")
            a(f"v_cndmask_b32 v{Q2[x]+1}, v{Q2[x]+1}, 0, {MHI}")
    def qk(x, kb):
        return [f"v_mfma_f32_32x32x16_bf16 {vr(S[x],16)}, {vr(K1[kb],4)}, {vr(Q1[x],4)}, 0",
                f"v_mfma_f32_32x32x8_bf16 {vr(S[x],16)}, {vr(K2[kb],2)}, {vr(Q2[x],2)}, {vr(S[x],16)}"]
    def rowmax(x, dst, first):
        s = S[x]
        if first:
            a(f"v_max3_f32 v{dst}, v{s}, v{s+1}, v{s+2}")
            a(f"v_max_f32 v{dst}, v{dst}, v{s+3}")
            rs = range(4, 16, 2)
        else:
            rs = range(0, 16, 2)
        for r in rs:
            a(f"v_max3_f32 v{dst}, v{dst}, v{s+r}, v{s+r+1}")
    def set_off(x, m):
        a(f"""
v_mov_b32 v{t0}, v{m}
s_nop 1
v_permlane32_swap_b32 v{m}, v{t0}
s_nop 1
v_max_f32 v{t0}, v{m}, v{t0}
v_sub_f32 v{t0}, 0, v{t0}
v_and_b32 v{t1}, 0xffff0000, v{t0}
v_sub_f32 v{t0}, v{t0}, v{t1}
v_and_b32 v{t2}, 0xffff0000, v{t0}
v_sub_f32 v{t0}, v{t0}, v{t2}
s_mov_b32 s3, 0x07060302
v_perm_b32 v{t1}, v{t2}, v{t1}, s3
v_lshrrev_b32 v{t0}, 16, v{t0}
v_cndmask_b32 v{Q2[x]}, v{Q2[x]}, v{t1}, {MHI}
v_cndmask_b32 v{Q2[x]+1}, v{Q2[x]+1}, v{t0}, {MHI}
""")
    zero_off()
    a("s_waitcnt lgkmcnt(4)")
    for x in range(2):
        for l in qk(x, 0): a(l)
    a("s_nop 7\ns_nop 3")
    rowmax(0, mx, True)
    set_off(0, mx)
    a("s_nop 1")
    for l in qk(0, 0): a(l)
    rowmax(1, mx + 1, True)
    set_off(1, mx + 1)
    a("s_waitcnt lgkmcnt(0)")

    def unit(x, t):
        y = 1 - x
        s = S[x]
        e = t & 1; o = 1 - e
        E = [f"v_exp_f32 v{s+i}, v{s+i}" for i in range(16)]
        C = [f"v_cvt_pk_bf16_f32 v{P+i}, v{s+2*i}, v{s+2*i+1}" for i in range(8)]
        M1, M3 = qk(y, e if x == 0 else o)
        M2 = f"v_mfma_f32_32x32x16_bf16 {vr(O[y],16)}, {vr(V1[o if x == 0 else e],4)}, {vr(P+4,4)}, {vr(O[y],16)}"
        M4 = f"v_mfma_f32_32x32x16_bf16 {vr(O[x],16)}, {vr(V0[e],4)}, {vr(P,4)}, {vr(O[x],16)}"
        def addr(tt):
            return (vAc, vKc, tt * SLOT_B) if tt < 8 else (vAn, vKn, (tt - 8) * SLOT_B)
        A1, _, o1 = addr(t + 1)
        A2, B2, o2 = addr(t + 2)
        if x == 0:
            f1 = [f"ds_read_b128 {vr(V0[o],4)}, v{A1} offset:{o1+1024}"]
            f2 = [f"ds_read_b128 {vr(V1[o],4)}, v{A1} offset:{o1+2048}"]
            f4 = [f"ds_read_b128 {vr(K1[e],4)}, v{A2} offset:{o2}"]
        else:
            f1 = [f"ds_read_b64 {vr(K2[e],2)}, v{B2} offset:{o2}"]
            f2 = []
            f4 = ["s_waitcnt lgkmcnt(0)"]
        X = os.environ.get("EXPT", "")
        if "nopv" in X: M2 = M4 = "s_nop 1"
        if "nox8" in X: M3 = "s_nop 0"
        if "noqk" in X: M1 = "s_nop 1"; M3 = "s_nop 0"
        if "noexp" in X: E = [f"v_max_f32 v{s+i}, v{s+i}, v{s+i}" for i in range(16)]
        if "exp0" in X: E = [f"v_exp_f32 v{s+i}, v{t3}" for i in range(16)]
        if "nolds" in X: f1 = []; f2 = []; f4 = []
        if "nocvt" in X: C = [f"v_cvt_pk_bf16_f32 v{t3}, v{t3}, v{t3}" for i in range(8)]
        out = []
        out += [M1] + f1 + E[0:4]
        out += [M2] + f2 + [E[4], C[0], E[5], C[1], E[6], E[7]]
        out += [M3] + [E[8], C[2], E[9], C[3], E[10], E[11]]
        out += [M4] + f4 + [E[12], C[4], E[13], C[5], E[14], E[15], C[6], C[7]]
        return out

    stamp(a, 1)
    a(".p2align 6")
    a.label("L_attn_loop")
    for t in range(8):
        for x in range(2):
            u = unit(x, t)
            if t == 5 and x == 1:
                i = 6 if 'nolds' not in os.environ.get('EXPT', '') else 5
                u = u[:i+1] + ["s_barrier"] + u[i+1:]
            for l in u: a(l)
    if STAMPS and os.environ.get("CHUNKST"):
        b = SV[0]
        a(f"""
s_memrealtime s[76:77]
s_memtime s[78:79]
s_lshl_b32 s80, s{s_cnt}, 4
s_lshl_b32 s81, s70, 1
s_add_u32 s80, s80, s81
s_waitcnt lgkmcnt(0)
v_mov_b32 v{b}, s76
v_mov_b32 v{b+1}, s77
v_mov_b32 v{b+2}, s78
v_mov_b32 v{b+3}, s79
buffer_store_dwordx4 v[{b}:{b+3}], v{b+4}, s[72:75], s80 offen
""")
    a(f"""
v_mov_b32 v{vAc}, v{vAn}
v_mov_b32 v{vKc}, v{vKn}
v_add_u32 v{vAn}, s{s_nb}, v{vdma}
v_add_u32 v{vKn}, s{s_nb}, v{vk2l}
s_add_u32 s{s_nb}, s{s_nb}, {BUF_B}
s_cmp_eq_u32 s{s_nb}, {3*BUF_B}
s_cselect_b32 s{s_nb}, 0, s{s_nb}
s_add_u32 s{s_cnt}, s{s_cnt}, 1
s_cmp_lt_u32 s{s_cnt}, 8
s_cbranch_scc1 L_attn_loop
v_mfma_f32_32x32x16_bf16 {vr(O[1],16)}, {vr(V1[1],4)}, {vr(P+4,4)}, {vr(O[1],16)}
s_nop 7
s_nop 7
""")
    stamp(a, 2)
    def getl(x, dst):
        a(f"""
v_mov_b32 v{dst}, v{O[x]+8}
v_mov_b32 v{t0}, v{O[x]+8}
s_nop 1
v_permlane32_swap_b32 v{t0}, v{dst}
s_nop 1
""")
    a(f"s_mov_b32 s30, {f32bits(2.0**-20):#x}\ns_mov_b32 s31, {f32bits(2.0**60):#x}\ns_mov_b32 s3, 0x7f800000\ns_mov_b64 s[34:35], -1")
    for x in range(2):
        getl(x, mx + x)
        o = O[x]
        a(f"v_add_f32 v{t3}, abs(v{o}), abs(v{o+1})")
        for r in range(2, 8):
            a(f"v_add_f32 v{t3}, v{t3}, abs(v{o+r})")
        a(f"v_add_f32 v{t0}, abs(v{o+8}), abs(v{o+9})")
        a(f"v_add_f32 v{t0}, v{t0}, abs(v{o+10})")
        a(f"v_add_f32 v{t0}, v{t0}, abs(v{o+11})")
        a(f"v_cndmask_b32 v{t0}, v{t0}, 0, {MHI}")
        a(f"v_add_f32 v{t3}, v{t3}, v{t0}")
        a(f"""
v_cmp_gt_f32 vcc, s3, v{t3}
s_and_b64 s[34:35], s[34:35], vcc
v_cmp_le_f32 vcc, s30, v{mx+x}
s_and_b64 s[34:35], s[34:35], vcc
v_cmp_ge_f32 vcc, s31, v{mx+x}
s_and_b64 s[34:35], s[34:35], vcc
""")
    a(f"""
s_cmp_eq_u64 s[34:35], -1
s_cbranch_scc0 L_attn_slow
L_attn_fin:
v_lshrrev_b32 v{t1}, 5, v{lane}
v_lshl_add_u32 v{t2}, v{t1}, 3, v{vq}
s_add_u32 s29, s{s_ob}, {32*1280}
""")
    for x in range(2):
        o = O[x]
        so = s_ob if x == 0 else 29
        a(f"v_rcp_f32 v{t0}, v{mx+x}\ns_nop 0")
        for r in range(12):
            a(f"v_mul_f32 v{o+r}, v{o+r}, v{t0}")
        for k in range(3):
            d = S[x] + 2 * k
            a(f"v_cvt_pk_bf16_f32 v{d}, v{o+4*k}, v{o+4*k+1}")
            a(f"v_cvt_pk_bf16_f32 v{d+1}, v{o+4*k+2}, v{o+4*k+3}")
        a(f"buffer_store_dwordx2 {vr(S[x],2)}, v{t2}, {SRD}, s{so} offen")
        a(f"buffer_store_dwordx2 {vr(S[x]+2,2)}, v{t2}, {SRD}, s{so} offen offset:16")
        a(f"s_mov_b64 exec, 0xffffffff")
        a(f"buffer_store_dwordx2 {vr(S[x]+4,2)}, v{t2}, {SRD}, s{so} offen offset:32")
        a(f"s_mov_b64 exec, -1")
    endp(a)

    a.label("L_attn_prod")
    a(f"""
s_add_u32 s{s_gd}, s{s_img}, {GCH_B}
s_mov_b32 s{s_nb}, {BUF_B}
s_mov_b32 s{s_cnt}, 1
""")
    def prod_chunk():
        for t in range(8):
            for l in dma_tile(f"s_add_u32 m0, s{s_nb}, {t*SLOT_B}", s_gd): a(l)
            a(f"s_add_u32 s{s_gd}, s{s_gd}, {TILE_B}")
        a(f"""
s_add_u32 s{s_nb}, s{s_nb}, {BUF_B}
s_cmp_eq_u32 s{s_nb}, {3*BUF_B}
s_cselect_b32 s{s_nb}, 0, s{s_nb}
s_add_u32 s{s_cnt}, s{s_cnt}, 1
""")
    prod_chunk()
    a("s_barrier")
    a.label("L_attn_ploop")
    a("s_waitcnt vmcnt(0)\ns_barrier")
    prod_chunk()
    a(f"s_cmp_lt_u32 s{s_cnt}, 8\ns_cbranch_scc1 L_attn_ploop")
    a("s_waitcnt vmcnt(0)\ns_barrier\ns_barrier\ns_endpgm")

    a.label("L_attn_slow")
    zero_off()
    a(f"""
v_and_b32 v{t3}, 31, v{lane}
v_lshlrev_b32 v{vKc}, 3, v{t3}
v_cmp_eq_u32 s[36:37], 20, v{t3}
v_mov_b32 v{vAn}, 0x3f803f80
v_mov_b32 v{vKn}, 0x3f80
v_mov_b32 v{mx}, 0xff800000
v_mov_b32 v{mx+1}, 0xff800000
s_mov_b32 s{s_gd}, s{s_img}
s_mov_b32 s{s_cnt}, 0
L_attn_slow1:
buffer_load_dwordx4 {vr(K1[0],4)}, v{vdma}, {SRD}, s{s_gd} offen
buffer_load_dwordx2 {vr(K2[0],2)}, v{vKc}, {SRD}, s{s_gd} offen offset:3072
s_waitcnt vmcnt(0)
v_cndmask_b32 v{K2[0]}, v{K2[0]}, v{vAn}, {MHI}
v_cndmask_b32 v{K2[0]+1}, v{K2[0]+1}, v{vKn}, {MHI}
s_nop 1
""")
    for x in range(2):
        for l in qk(x, 0): a(l)
    a("s_nop 7\ns_nop 7")
    for x in range(2):
        rowmax(x, mx + x, False)
    a(f"""
s_add_u32 s{s_gd}, s{s_gd}, {TILE_B}
s_add_u32 s{s_cnt}, s{s_cnt}, 1
s_cmp_lt_u32 s{s_cnt}, 64
s_cbranch_scc1 L_attn_slow1
""")
    for x in range(2):
        set_off(x, mx + x)
    for r in range(16):
        a(f"v_mov_b32 v{O[0]+r}, 0\nv_mov_b32 v{O[1]+r}, 0")
    a(f"""
s_mov_b32 s{s_gd}, s{s_img}
s_mov_b32 s{s_cnt}, 0
L_attn_slow2:
buffer_load_dwordx4 {vr(K1[0],4)}, v{vdma}, {SRD}, s{s_gd} offen
buffer_load_dwordx2 {vr(K2[0],2)}, v{vKc}, {SRD}, s{s_gd} offen offset:3072
buffer_load_dwordx4 {vr(V0[0],4)}, v{vdma}, {SRD}, s{s_gd} offen offset:1024
buffer_load_dwordx4 {vr(V1[0],4)}, v{vdma}, {SRD}, s{s_gd} offen offset:2048
s_waitcnt vmcnt(0)
v_cndmask_b32 v{K2[0]}, v{K2[0]}, v{vAn}, {MHI}
v_cndmask_b32 v{K2[0]+1}, v{K2[0]+1}, v{vKn}, {MHI}
""")
    for r in range(4):
        a(f"v_cndmask_b32 v{V0[0]+r}, v{V0[0]+r}, v{vAn}, s[36:37]")
        a(f"v_cndmask_b32 v{V1[0]+r}, v{V1[0]+r}, v{vAn}, s[36:37]")
    a("s_nop 1")
    for x in range(2):
        for l in qk(x, 0): a(l)
    a("s_nop 7\ns_nop 7")
    for x in range(2):
        s = S[x]
        for i in range(16): a(f"v_exp_f32 v{s+i}, v{s+i}")
        a("s_nop 0")
        for i in range(8): a(f"v_cvt_pk_bf16_f32 v{P+i}, v{s+2*i}, v{s+2*i+1}")
        a("s_nop 1")
        a(f"v_mfma_f32_32x32x16_bf16 {vr(O[x],16)}, {vr(V0[0],4)}, {vr(P,4)}, {vr(O[x],16)}")
        a(f"v_mfma_f32_32x32x16_bf16 {vr(O[x],16)}, {vr(V1[0],4)}, {vr(P+4,4)}, {vr(O[x],16)}")
    a(f"""
s_add_u32 s{s_gd}, s{s_gd}, {TILE_B}
s_add_u32 s{s_cnt}, s{s_cnt}, 1
s_cmp_lt_u32 s{s_cnt}, 64
s_cbranch_scc1 L_attn_slow2
s_nop 7
s_nop 7
""")
    for x in range(2):
        getl(x, mx + x)
    a("s_branch L_attn_fin")
    a.label("L_attn_end")
    a("s_endpgm")
    a(kd(name, V.n))
    print("attn vgprs", V.n)
    return (name, 256, 576, NBUF * BUF_B)
```

```python
from asmlib import *
import struct, math

WS_Q = 0
WS_O = 0x500000
WS_KV = 0xA00000
TILE_B = 3328
HEAD_B = 64 * TILE_B
WS_SIZE = 268435456
QSCALE = math.log2(math.e) / math.sqrt(20.0)
def f32bits(x): return struct.unpack("<I", struct.pack("<f", x))[0]

NST = 10

class GemmCfg:
    def __init__(self, name, MT, nslots):
        self.name = name; self.MT = MT; self.NTT = MT // 32
        self.nslots = nslots
        self.XS = MT * 128
        self.WB = self.XS * nslots
        self.WSL = 20480
        self.EB = self.WB + self.WSL * nslots
        self.NXI = MT // 32

def gemm_body(a, cfg, setup_fn, variants, epilogue_fn, has_extra):
    MT, NTT, NXI, NSL = cfg.MT, cfg.NTT, cfg.NXI, cfg.nslots
    V = Regs(1, 256, "v")
    v_lane = V.alloc("lane"); v_l16 = V.alloc("l16"); v_g = V.alloc("g")
    v_t0 = V.alloc("t0"); v_t1 = V.alloc("t1"); v_t2 = V.alloc("t2"); v_t3 = V.alloc("t3")
    v_xd = V.alloc("xd", NXI); v_wd = V.alloc("wd", 5); v_ed = V.alloc("ed", 2)
    v_xa = V.alloc("xa", 4)
    nwb = 2 if NSL <= 4 else 2
    v_wa = V.alloc("wa", 4)
    v_ea = V.alloc("ea")
    v_acc = V.alloc("acc", (NTT * 5 + 2) * 4, 4)
    v_xf = V.alloc("xf", NTT * 4 * 2, 4)
    v_wf = V.alloc("wf", 6 * 4 * 2, 4)
    v_ep = V.alloc("ep", 16, 4)
    R = dict(lane=v_lane, l16=v_l16, g=v_g, t0=v_t0, t1=v_t1, t2=v_t2, t3=v_t3, acc=v_acc, ep=v_ep, xf=v_xf, wf=v_wf)
    S_X, S_W, S_E, S_D = 8, 12, 16, 20
    s_w, s_wm, s_wn = 24, 25, 26
    s_m0, s_n0b, s_ldw, s_e = 27, 28, 29, 30
    s_xs, s_ws, s_es, s_wstep = 31, 32, 33, 34
    s_lx, s_lw, s_le = 35, 36, 37
    s_tmp = 38
    R.update(S_D=S_D, s_w=s_w, s_wm=s_wm, s_wn=s_wn, s_m0=s_m0, s_e=s_e, s_tmp=s_tmp)
    setup_fn(a, R, dict(S_X=S_X, S_W=S_W, S_E=S_E, S_D=S_D, s_m0=s_m0, s_n0b=s_n0b, s_ldw=s_ldw, s_e=s_e))
    a(f"""
v_and_b32 v{v_lane}, 63, v0
v_lshrrev_b32 v{v_t0}, 6, v0
v_and_b32 v{v_l16}, 15, v0
v_readfirstlane_b32 s{s_w}, v{v_t0}
v_bfe_u32 v{v_g}, v0, 4, 2
s_nop 2
s_lshr_b32 s{s_wm}, s{s_w}, 1
s_and_b32 s{s_wn}, s{s_w}, 1
s_mov_b32 s{s_xs}, 0
s_mov_b32 s{s_ws}, 0
s_mov_b32 s{s_es}, 0
s_lshl_b32 s{s_wstep}, s{s_ldw}, 6
s_mul_i32 s{s_lx}, s{s_w}, {MT*32}
s_mul_i32 s{s_lw}, s{s_w}, 5120
s_add_u32 s{s_lw}, s{s_lw}, {cfg.WB}
s_lshl_b32 s{s_le}, s{s_w}, 9
s_add_u32 s{s_le}, s{s_le}, {cfg.EB}
""")
    stamp_setup(a, cfg.kidx, s_w, cfg.wsptr)
    stamp(a, 0)
    a(f"""
v_lshrrev_b32 v{v_t0}, 3, v{v_lane}
v_and_b32 v{v_t1}, 7, v{v_lane}
v_xor_b32 v{v_t1}, v{v_t1}, v{v_t0}
v_lshlrev_b32 v{v_t1}, 4, v{v_t1}
s_mul_i32 s{s_tmp}, s{s_w}, {MT//4}
s_add_u32 s{s_tmp}, s{s_tmp}, s{s_m0}
v_add_u32 v{v_t0}, s{s_tmp}, v{v_t0}
v_mul_u32_u24 v{v_t0}, 1280, v{v_t0}
v_add_u32 v{v_xd}, v{v_t0}, v{v_t1}
""")
    for i in range(1, NXI):
        a(f"v_add_u32 v{v_xd+i}, {10240*i}, v{v_xd}")
    for i in range(5):
        a(f"""
v_add_u32 v{v_t0}, {64*i}, v{v_lane}
v_mul_u32_u24 v{v_t1}, 3277, v{v_t0}
v_lshrrev_b32 v{v_t1}, 16, v{v_t1}
v_mul_u32_u24 v{v_t2}, 20, v{v_t1}
v_sub_u32 v{v_t2}, v{v_t0}, v{v_t2}
v_bfe_u32 v{v_t3}, v{v_t1}, 3, 1
v_lshlrev_b32 v{v_t3}, 1, v{v_t3}
v_xor_b32 v{v_t2}, v{v_t2}, v{v_t3}
v_lshlrev_b32 v{v_t2}, 4, v{v_t2}
s_lshl_b32 s{s_tmp}, s{s_w}, 4
v_add_u32 v{v_t1}, s{s_tmp}, v{v_t1}
v_mul_lo_u32 v{v_t1}, v{v_t1}, s{s_ldw}
v_add3_u32 v{v_wd+i}, v{v_t1}, v{v_t2}, s{s_n0b}
""")
    if has_extra:
        a(f"""
v_lshrrev_b32 v{v_t0}, 3, v{v_lane}
s_lshl_b32 s{s_tmp}, s{s_w}, 4
v_add_u32 v{v_t0}, s{s_tmp}, v{v_t0}
v_mul_u32_u24 v{v_t0}, 40, v{v_t0}
v_and_b32 v{v_t1}, 7, v{v_lane}
v_lshlrev_b32 v{v_t1}, 2, v{v_t1}
s_lshl_b32 s{s_tmp}, s{s_e}, 5
v_add3_u32 v{v_ed}, v{v_t0}, v{v_t1}, s{s_tmp}
v_add_u32 v{v_ed+1}, 320, v{v_ed}
""")
    half_rows = MT // 2
    a(f"""
v_and_b32 v{v_t0}, 7, v{v_l16}
v_xor_b32 v{v_t0}, v{v_t0}, v{v_g}
v_lshlrev_b32 v{v_t0}, 4, v{v_t0}
v_lshl_add_u32 v{v_t0}, v{v_l16}, 7, v{v_t0}
s_mul_i32 s{s_tmp}, s{s_wm}, {half_rows*128}
v_add_u32 v{v_t0}, s{s_tmp}, v{v_t0}
""")
    if NTT == 4:
        a(f"""
s_lshl_b32 s{s_tmp}, s{s_wn}, 12
v_add_u32 v{v_xa}, s{s_tmp}, v{v_t0}
v_xor_b32 v{v_xa+1}, 64, v{v_xa}
s_sub_u32 s{s_tmp}, 4096, s{s_tmp}
v_add_u32 v{v_xa+2}, s{s_tmp}, v{v_t0}
v_xor_b32 v{v_xa+3}, 64, v{v_xa+2}
""")
    else:
        a(f"""
v_mov_b32 v{v_xa}, v{v_t0}
v_xor_b32 v{v_xa+1}, 64, v{v_xa}
""")
    W1 = cfg.WB + 3 * cfg.WSL if NSL == 4 else cfg.WB + 3 * cfg.WSL
    a(f"""
v_lshrrev_b32 v{v_t0}, 2, v{v_l16}
v_lshl_add_u32 v{v_t0}, v{v_g}, 3, v{v_t0}
v_mul_u32_u24 v{v_t1}, 320, v{v_t0}
v_and_b32 v{v_t2}, 3, v{v_l16}
v_lshl_add_u32 v{v_t1}, v{v_t2}, 3, v{v_t1}
s_mul_i32 s{s_tmp}, s{s_wn}, 160
s_add_u32 s{s_tmp}, s{s_tmp}, {cfg.WB}
v_add_u32 v{v_t1}, s{s_tmp}, v{v_t1}
v_and_b32 v{v_t3}, 1, v{v_g}
v_lshlrev_b32 v{v_t3}, 5, v{v_t3}
s_lshl_b32 s{s_tmp}, s{s_wn}, 1
s_sub_u32 s{s_tmp}, 1, s{s_tmp}
v_mul_lo_u32 v{v_t3}, v{v_t3}, s{s_tmp}
v_add_u32 v{v_wa}, v{v_t1}, v{v_t3}
v_sub_u32 v{v_wa+1}, v{v_t1}, v{v_t3}
v_add_u32 v{v_wa+2}, {3*cfg.WSL}, v{v_wa}
v_add_u32 v{v_wa+3}, {3*cfg.WSL}, v{v_wa+1}
v_lshlrev_b32 v{v_t0}, 5, v{v_t0}
v_lshl_add_u32 v{v_t0}, v{v_t2}, 3, v{v_t0}
v_add_u32 v{v_ea}, {cfg.EB}, v{v_t0}
""")

    def dma_groups(stage, extra):
        slot = stage % NSL
        g = []
        for i in range(NXI):
            g.append([f"s_add_u32 m0, s{s_lx}, {slot*cfg.XS + i*1024}", "s_nop 0",
                      f"buffer_load_dwordx4 v{v_xd+i}, s[{S_X}:{S_X+3}], s{s_xs} offen lds"])
        for i in range(5):
            g.append([f"s_add_u32 m0, s{s_lw}, {slot*cfg.WSL + i*1024}", "s_nop 0",
                      f"buffer_load_dwordx4 v{v_wd+i}, s[{S_W}:{S_W+3}], s{s_ws} offen lds"])
        if extra:
            for i in range(2):
                g.append([f"s_add_u32 m0, s{s_le}, {slot*2048 + i*256}", "s_nop 0",
                          f"buffer_load_dword v{v_ed+i}, s[{S_E}:{S_E+3}], s{s_es} offen lds"])
        last = [f"s_add_u32 s{s_xs}, s{s_xs}, 128", f"s_add_u32 s{s_ws}, s{s_ws}, s{s_wstep}"]
        if extra: last.append(f"s_add_u32 s{s_es}, s{s_es}, 2560")
        g.append(last)
        return g

    def xf(step, i): return v_xf + (step * NTT + i) * 4
    def wf(step, j): return v_wf + (step * 6 + j) * 4
    def acc(i, j): return v_acc + (i * 5 + j) * 4
    def acce(i): return v_acc + (NTT * 5 + i) * 4
    R.update(acc_fn=acc, acce_fn=acce)

    def read_groups(stage, step, extra):
        slot = stage % NSL
        g = []
        xs = []
        for i in range(NTT):
            reg = v_xa + (2 if (NTT == 4 and i >= 2) else 0) + step
            xs.append([f"ds_read_b128 {vr(xf(step,i),4)}, v{reg} offset:{slot*cfg.XS + (i%2)*2048}"])
        ws = []
        for j in range(5):
            rng = 0 if slot < 3 else 2
            sb = (slot if slot < 3 else slot - 3) * cfg.WSL
            reg = v_wa + rng + (j & 1)
            ws.append([f"ds_read_b64_tr_b16 {vr(wf(step,j),2)}, v{reg} offset:{sb + (32*step)*320 + j*32}",
                       f"ds_read_b64_tr_b16 {vr(wf(step,j)+2,2)}, v{reg} offset:{sb + (32*step+4)*320 + j*32}"])
        if extra:
            ws.append([f"ds_read_b64_tr_b16 {vr(wf(step,5),2)}, v{v_ea} offset:{slot*2048 + (32*step)*32}",
                       f"ds_read_b64_tr_b16 {vr(wf(step,5)+2,2)}, v{v_ea} offset:{slot*2048 + (32*step+4)*32}"])
        k = 0
        while xs or ws:
            if xs: g.append(xs.pop(0))
            if ws: g.append(ws.pop(0))
        return g

    def mfmas(step, orient, ext, first):
        m = []
        for j in range(5):
            for i in range(NTT):
                A, B = (wf(step,j), xf(step,i)) if orient == 'T' else (xf(step,i), wf(step,j))
                c = "0" if first else vr(acc(i,j),4)
                m.append(f"v_mfma_f32_16x16x32_bf16 {vr(acc(i,j),4)}, {vr(A,4)}, {vr(B,4)}, {c}")
        if ext:
            for i in range(2):
                A, B = (wf(step,5), xf(step,i)) if ext == 'T' else (xf(step,i), wf(step,5))
                c = "0" if first else vr(acce(i),4)
                m.append(f"v_mfma_f32_16x16x32_bf16 {vr(acce(i),4)}, {vr(A,4)}, {vr(B,4)}, {c}")
        return m

    for (label, orient, ext) in variants:
        a.label(label)
        D = NXI + 5 + (2 if ext else 0)
        for st in range(NSL):
            for g in dma_groups(st, ext):
                for l in g: a(l)
        for s in range(NST):
            issued = NSL - 1 if s == 0 else min(s + NSL - 2, NST - 1)
            a(f"s_waitcnt vmcnt({D*(issued - s)})")
            a("s_barrier")
            if s == 0: stamp(a, 1)
            fill = read_groups(s, 0, ext)
            if s >= 1 and s + NSL - 1 <= NST - 1:
                fill = fill + dma_groups(s + NSL - 1, ext)
            if s == 0:
                for g in fill:
                    for l in g: a(l)
            else:
                for l in merge(mfmas(1, orient, ext, False), fill): a(l)
            a("s_waitcnt lgkmcnt(0)")
            for l in merge(mfmas(0, orient, ext, s == 0), read_groups(s, 1, ext)): a(l)
            a("s_waitcnt lgkmcnt(0)")
        for l in mfmas(1, orient, ext, False): a(l)
        a("s_nop 7\ns_nop 7")
        stamp(a, 2)
        epilogue_fn(a, R, label)
    return V.n

def kd(name, vgpr, sgpr=64):
    if STAMPS: vgpr = max(vgpr, SV[0] + 6); sgpr = 96
    acc = (vgpr + 3) // 4 * 4
    return f""".section .rodata,"a"
.p2align 6
.amdhsa_kernel {name}
  .amdhsa_next_free_vgpr {vgpr}
  .amdhsa_next_free_sgpr {sgpr}
  .amdhsa_accum_offset {acc}
  .amdhsa_group_segment_fixed_size 0
  .amdhsa_kernarg_size 88
  .amdhsa_user_sgpr_count 2
  .amdhsa_user_sgpr_kernarg_segment_ptr 1
  .amdhsa_system_sgpr_workgroup_id_x 1
.end_amdhsa_kernel
.text
"""

def endp(a):
    if STAMPS:
        a("s_waitcnt vmcnt(0)")
        stamp(a, 3)
    a("s_endpgm")

def header(a, name):
    a(f".globl {name}\n.p2align 8\n.type {name},@function")
    a.label(name)

def gen_qkv(a):
    name = "qkv_kernel"
    cfg = GemmCfg(name, 128, 4); cfg.kidx = 0; cfg.wsptr = 60
    header(a, name)
    s_type, s_n, s_m = 40, 41, 42
    s_tA, s_tB = 43, 44
    def setup(a, R, S):
        S_X, S_W, S_E, S_D = S['S_X'], S['S_W'], S['S_E'], S['S_D']
        a(f"""
s_cmp_ge_u32 s2, 256
s_cbranch_scc1 L_qkv_end
s_load_dwordx4 s[48:51], s[0:1], 0
s_load_dwordx4 s[52:55], s[0:1], 24
s_load_dwordx4 s[56:59], s[0:1], 40
s_load_dwordx2 s[60:61], s[0:1], 80
s_and_b32 s3, s2, 7
s_lshr_b32 s4, s2, 3
s_lshr_b32 s5, s3, 1
s_and_b32 s3, s3, 1
s_and_b32 s6, s4, 3
s_lshl_b32 s{s_m}, s5, 2
s_add_u32 s{s_m}, s{s_m}, s6
s_lshr_b32 s4, s4, 2
s_mul_i32 s5, s3, 6
s_add_u32 s5, s5, s4
s_lshl_b32 s6, s3, 1
s_add_u32 s6, s6, s4
s_sub_u32 s6, s6, 6
s_cmp_lt_u32 s4, 6
s_cselect_b32 s{s_n}, s5, s6
s_lshr_b32 s5, s5, 2
s_lshr_b32 s7, s6, 1
s_add_u32 s7, s7, 3
s_cmp_lt_u32 s4, 6
s_cselect_b32 s{s_type}, s5, s7
s_lshl_b32 s{S['s_m0']}, s{s_m}, 7
s_mul_i32 s{S['s_n0b']}, s{s_n}, 320
s_and_b32 s{S['s_e']}, s{s_n}, 1
s_waitcnt lgkmcnt(0)
s_cmp_lt_u32 s4, 6
s_cselect_b32 s{S_X}, s48, s52
s_cselect_b32 s{S_X+1}, s49, s53
s_mov_b32 s{S_X+2}, {2048*1280}
s_mov_b32 s{S_X+3}, 0x20000
s_cselect_b32 s{S_W}, s50, s54
s_cselect_b32 s{S_W+1}, s51, s55
s_mov_b32 s3, {640*1280}
s_cselect_b32 s{S_W+2}, {640*3840}, s3
s_mov_b32 s{S_W+3}, 0x20000
s_movk_i32 s3, 1280
s_cselect_b32 s{S['s_ldw']}, 3840, s3
s_cmp_eq_u32 s{s_type}, 3
s_cselect_b32 s{S_E}, s56, s58
s_cselect_b32 s{S_E+1}, s57, s59
s_mov_b32 s{S_E+2}, {640*40}
s_mov_b32 s{S_E+3}, 0x20000
s_mov_b32 s{S_D}, s60
s_mov_b32 s{S_D+1}, s61
s_mov_b32 s{S_D+2}, {WS_SIZE}
s_mov_b32 s{S_D+3}, 0x20000
""")
    def epilogue(a, R, label):
        acc, acce = R['acc_fn'], R['acce_fn']
        t0, t1, t2, t3, ep = R['t0'], R['t1'], R['t2'], R['t3'], R['ep']
        l16, g = R['l16'], R['g']
        S_D, s_wm, s_wn, s_m0, s_tmp, s_e = R['S_D'], R['s_wm'], R['s_wn'], R['s_m0'], R['s_tmp'], R['s_e']
        srd = f"s[{S_D}:{S_D+3}]"
        def tiles_sgpr(headbase_expr_sgpr):
            a(f"""
s_lshr_b32 s{s_tmp}, s{s_m0}, 5
s_lshl_b32 s3, s{s_wm}, 1
s_add_u32 s{s_tmp}, s{s_tmp}, s3
s_add_u32 s3, s{s_tmp}, s{s_wn}
s_mul_i32 s{s_tA}, s3, {TILE_B}
s_add_u32 s{s_tA}, s{s_tA}, {headbase_expr_sgpr}
s_add_u32 s3, s{s_tmp}, 1
s_sub_u32 s3, s3, s{s_wn}
s_mul_i32 s{s_tB}, s3, {TILE_B}
s_add_u32 s{s_tB}, s{s_tB}, {headbase_expr_sgpr}
""")
        def pi16(dst):
            a(f"""
v_and_b32 v{dst}, 3, v{l16}
v_bfe_u32 v{t3}, v{l16}, 2, 1
v_lshl_add_u32 v{dst}, v{t3}, 3, v{dst}
v_bfe_u32 v{t3}, v{l16}, 3, 1
v_lshl_add_u32 v{dst}, v{t3}, 2, v{dst}
""")
        def pack(dst, src, scale=None):
            if scale is not None:
                for r in range(4):
                    a(f"v_mul_f32 v{src+r}, s{scale}, v{src+r}")
            a(f"v_cvt_pk_bf16_f32 v{dst}, v{src}, v{src+1}")
            a(f"v_cvt_pk_bf16_f32 v{dst+1}, v{src+2}, v{src+3}")
        def q_epi(isB):
            a(f"""
s_lshl_b32 s3, s{s_wm}, 6
s_add_u32 s3, s3, s{s_m0}
s_lshl_b32 s4, s{s_wn}, 5
s_add_u32 s5, s3, s4
s_add_u32 s6, s3, 32
s_sub_u32 s6, s6, s4
s_mul_i32 s5, s5, 1280
s_mul_i32 s6, s6, 1280
s_mul_i32 s7, s{s_n}, 320
s_mul_i32 s4, s{s_wn}, 160
s_add_u32 s7, s7, s4
s_add_u32 s7, s7, {WS_Q + (2048*1280 if isB else 0)}
s_add_u32 s5, s5, s7
s_add_u32 s6, s6, s7
s_add_u32 s3, s5, 20480
s_add_u32 s4, s6, 20480
v_mul_u32_u24 v{t0}, 1280, v{l16}
v_lshl_add_u32 v{t0}, v{g}, 3, v{t0}
s_mov_b32 s7, {f32bits(QSCALE):#x}
""")
            so = [5, 3, 6, 4]
            n = 0
            for i in range(4):
                for j in range(5):
                    d = ep + 2 * (n % 8); n += 1
                    pack(d, acc(i, j), 7)
                    a(f"buffer_store_dwordx2 {vr(d,2)}, v{t0}, {srd}, s{so[i]} offen offset:{j*32}")
        def k_epi():
            a(f"s_sub_u32 s4, s{s_n}, 4\ns_mul_i32 s4, s4, {8*HEAD_B}\ns_add_u32 s4, s4, {WS_KV}")
            tiles_sgpr("s4")
            pi16(t2)
            n = 0
            for j in range(5):
                a(f"""
s_mul_i32 s3, s{s_wn}, 20
s_add_u32 s3, s3, {4*j}
v_add_u32 v{t0}, s3, v{g}
v_mul_u32_u24 v{t1}, 205, v{t0}
v_lshrrev_b32 v{t1}, 10, v{t1}
v_mul_u32_u24 v{t3}, 5, v{t1}
v_sub_u32 v{t0}, v{t0}, v{t3}
s_mov_b32 s3, {HEAD_B}
v_mul_lo_u32 v{t1}, v{t1}, s3
v_lshrrev_b32 v{t3}, 1, v{t0}
v_lshl_add_u32 v{t3}, v{t3}, 5, v{t2}
v_lshlrev_b32 v{t3}, 4, v{t3}
v_and_b32 v{ep+14}, 1, v{t0}
v_lshl_add_u32 v{t3}, v{ep+14}, 3, v{t3}
v_lshlrev_b32 v{ep+14}, 3, v{t2}
v_add_u32 v{ep+14}, 3072, v{ep+14}
v_cmp_eq_u32 vcc, 4, v{t0}
v_mov_b32 v{ep+15}, 256
v_mov_b32 v{ep+13}, 128
v_cndmask_b32 v{t3}, v{t3}, v{ep+14}, vcc
v_cndmask_b32 v{ep+15}, v{ep+15}, v{ep+13}, vcc
v_add_u32 v{t0}, v{t1}, v{t3}
v_add_u32 v{t1}, v{t0}, v{ep+15}
""")
                for i in range(4):
                    d = ep + 2 * (n % 6); n += 1
                    pack(d, acc(i, j))
                    a(f"buffer_store_dwordx2 {vr(d,2)}, v{t0 if i%2==0 else t1}, {srd}, s{s_tA if i<2 else s_tB} offen")
        def v_epi():
            a(f"s_sub_u32 s4, s{s_n}, 8\ns_mul_i32 s4, s4, {8*HEAD_B}\ns_add_u32 s4, s4, {WS_KV}")
            tiles_sgpr("s4")
            a(f"""
v_lshrrev_b32 v{t2}, 1, v{g}
v_lshlrev_b32 v{t2}, 9, v{t2}
v_and_b32 v{t3}, 1, v{g}
v_lshl_add_u32 v{t2}, v{t3}, 3, v{t2}
v_add_u32 v{t2}, 1024, v{t2}
""")
            n = 0
            for j in range(5):
                a(f"""
s_mul_i32 s3, s{s_wn}, 80
s_add_u32 s3, s3, {16*j}
v_add_u32 v{t0}, s3, v{l16}
v_mul_u32_u24 v{t1}, 205, v{t0}
v_lshrrev_b32 v{t1}, 12, v{t1}
v_mul_u32_u24 v{t3}, 20, v{t1}
v_sub_u32 v{t0}, v{t0}, v{t3}
s_mov_b32 s3, {HEAD_B}
v_mul_lo_u32 v{t1}, v{t1}, s3
v_lshl_add_u32 v{t0}, v{t0}, 4, v{t2}
v_add_u32 v{t0}, v{t0}, v{t1}
""")
                for i in range(4):
                    d = ep + 2 * (n % 8); n += 1
                    pack(d, acc(i, j))
                    a(f"buffer_store_dwordx2 {vr(d,2)}, v{t0}, {srd}, s{s_tA if i<2 else s_tB} offen offset:{1024*(i%2)}")
        def ek_epi():
            a(f"s_mov_b32 s4, {WS_KV + 32*HEAD_B}")
            tiles_sgpr("s4")
            pi16(t2)
            a(f"""
v_lshrrev_b32 v{t3}, 1, v{g}
v_lshl_add_u32 v{t3}, v{t3}, 5, v{t2}
v_lshlrev_b32 v{t3}, 4, v{t3}
v_and_b32 v{t0}, 1, v{g}
v_lshl_add_u32 v{t0}, v{t0}, 3, v{t3}
v_add_u32 v{t1}, 256, v{t0}
s_cmp_eq_u32 s{s_e}, 0
s_cbranch_scc1 L_ek_go
v_lshlrev_b32 v{t0}, 3, v{t2}
v_add_u32 v{t0}, 3072, v{t0}
v_mov_b32 v{t3}, 0x7f000000
v_cmp_eq_u32 vcc, 0, v{g}
s_nop 1
v_cndmask_b32 v{t0}, v{t3}, v{t0}, vcc
v_add_u32 v{t1}, 128, v{t0}
L_ek_go:
""")
            for i in range(2):
                d = ep + 2 * i
                pack(d, acce(i))
                a(f"buffer_store_dwordx2 {vr(d,2)}, v{t0 if i==0 else t1}, {srd}, s{s_tA} offen")
        def ev_epi():
            a(f"s_mov_b32 s4, {WS_KV + 32*HEAD_B}")
            tiles_sgpr("s4")
            a(f"""
v_lshrrev_b32 v{t2}, 1, v{g}
v_lshlrev_b32 v{t2}, 9, v{t2}
v_and_b32 v{t3}, 1, v{g}
v_lshl_add_u32 v{t2}, v{t3}, 3, v{t2}
v_add_u32 v{t2}, 1024, v{t2}
s_lshl_b32 s3, s{s_e}, 4
v_add_u32 v{t0}, s3, v{l16}
v_lshl_add_u32 v{t1}, v{t0}, 4, v{t2}
v_mov_b32 v{t3}, 0x7f000000
v_cmp_gt_u32 vcc, 20, v{t0}
s_nop 1
v_cndmask_b32 v{t0}, v{t3}, v{t1}, vcc
""")
            for i in range(2):
                d = ep + 2 * i
                pack(d, acce(i))
                a(f"buffer_store_dwordx2 {vr(d,2)}, v{t0}, {srd}, s{s_tA} offen offset:{1024*i}")
        if label == "L_qkv_T":
            a(f"s_cmp_eq_u32 s{s_type}, 1\ns_cbranch_scc1 L_qkv_kepi")
            q_epi(False)
            endp(a)
            a.label("L_qkv_kepi")
            k_epi()
        elif label == "L_qkv_N":
            v_epi()
        elif label == "L_qkv_BT":
            ek_epi(); q_epi(True)
        else:
            ev_epi(); q_epi(True)
        endp(a)
    class A2:
        pass
    variants = [("L_qkv_T", 'T', None), ("L_qkv_N", 'N', None), ("L_qkv_BT", 'T', 'T'), ("L_qkv_BN", 'T', 'N')]
    orig_label = a.label
    def lab(n):
        if n == "L_qkv_T":
            a(f"""
s_cmp_eq_u32 s{s_type}, 2
s_cbranch_scc1 L_qkv_N
s_cmp_eq_u32 s{s_type}, 3
s_cbranch_scc1 L_qkv_BT
s_cmp_eq_u32 s{s_type}, 4
s_cbranch_scc1 L_qkv_BN
""")
        orig_label(n)
    a.label = lab
    nv = gemm_body(a, cfg, setup, variants, epilogue, True)
    a.label = orig_label
    a.label("L_qkv_end")
    a("s_endpgm")
    a(kd(name, nv))
    lds = cfg.EB + 4 * 2048
    return (name, 256, 256, lds)

def gen_out(a):
    name = "oproj_kernel"
    cfg = GemmCfg(name, 64, 4); cfg.kidx = 2; cfg.wsptr = 54
    header(a, name)
    s_br, s_n = 40, 41
    def setup(a, R, S):
        S_X, S_W, S_E, S_D = S['S_X'], S['S_W'], S['S_E'], S['S_D']
        a(f"""
s_cmp_ge_u32 s2, 256
s_cbranch_scc1 L_out_end
s_load_dwordx2 s[48:49], s[0:1], 16
s_load_dwordx2 s[50:51], s[0:1], 56
s_load_dwordx2 s[52:53], s[0:1], 64
s_load_dwordx2 s[54:55], s[0:1], 80
s_and_b32 s3, s2, 7
s_lshr_b32 s4, s2, 3
s_lshr_b32 s{s_br}, s3, 2
s_and_b32 s3, s3, 3
s_lshl_b32 s3, s3, 3
s_and_b32 s5, s4, 7
s_add_u32 s3, s3, s5
s_lshr_b32 s{s_n}, s4, 3
s_lshl_b32 s{S['s_m0']}, s3, 6
s_mul_i32 s{S['s_n0b']}, s{s_n}, 320
s_mov_b32 s{S['s_e']}, 0
s_mov_b32 s{S['s_ldw']}, 1280
s_mul_i32 s5, s{s_br}, {2048*1280}
s_add_u32 s5, s5, {WS_O}
s_waitcnt lgkmcnt(0)
s_add_u32 s{S_X}, s54, s5
s_addc_u32 s{S_X+1}, s55, 0
s_mov_b32 s{S_X+2}, {2048*1280}
s_mov_b32 s{S_X+3}, 0x20000
s_cmp_eq_u32 s{s_br}, 0
s_cselect_b32 s{S_W}, s48, s50
s_cselect_b32 s{S_W+1}, s49, s51
s_mov_b32 s{S_W+2}, {640*1280}
s_mov_b32 s{S_W+3}, 0x20000
s_mov_b32 s{S_D}, s52
s_mov_b32 s{S_D+1}, s53
s_mov_b32 s{S_D+2}, {2048*2560}
s_mov_b32 s{S_D+3}, 0x20000
""")
    def epilogue(a, R, label):
        acc = R['acc_fn']
        t0, ep, l16, g = R['t0'], R['ep'], R['l16'], R['g']
        S_D, s_wm, s_wn, s_m0 = R['S_D'], R['s_wm'], R['s_wn'], R['s_m0']
        a(f"""
s_lshl_b32 s3, s{s_wm}, 5
s_add_u32 s3, s3, s{s_m0}
s_mul_i32 s5, s3, 2560
s_mul_i32 s7, s{s_n}, 320
s_mul_i32 s4, s{s_wn}, 160
s_add_u32 s7, s7, s4
s_mul_i32 s4, s{s_br}, 1280
s_add_u32 s7, s7, s4
s_add_u32 s5, s5, s7
s_add_u32 s6, s5, {16*2560}
v_mul_u32_u24 v{t0}, 2560, v{l16}
v_lshl_add_u32 v{t0}, v{g}, 3, v{t0}
""")
        n = 0
        for i in range(2):
            for j in range(5):
                d = ep + 2 * (n % 8); n += 1
                src = acc(i, j)
                a(f"v_cvt_pk_bf16_f32 v{d}, v{src}, v{src+1}")
                a(f"v_cvt_pk_bf16_f32 v{d+1}, v{src+2}, v{src+3}")
                a(f"buffer_store_dwordx2 {vr(d,2)}, v{t0}, s[{S_D}:{S_D+3}], s{5+i} offen offset:{j*32}")
        endp(a)
    nv = gemm_body(a, cfg, setup, [("L_out_T", 'T', None)], epilogue, False)
    a.label("L_out_end")
    a("s_endpgm")
    a(kd(name, nv))
    lds = cfg.EB
    return (name, 256, 256, lds)
```

```python
from asmlib import *
import struct, math, os

NAME = "concat_heads__softmax_full_mha__grouped_kv_mqa__prompt_kernel"
RI_B = 1280
RIH_B = 64 * RI_B
WS_Q = 0
WS_O = 0x500000
WS_KV = 0xA00000
TILE_B = 3328
HEAD_B = 64 * TILE_B
WS_CNT = 0x10C0000
WS_SIZE = 268435456
NCNT = 24
QSCALE = math.log2(math.e) / math.sqrt(20.0)
def f32bits(x): return struct.unpack("<I", struct.pack("<f", x))[0]
NST, NSL = 10, 4
XS, WSL = 16384, 20480
WB = XS * NSL
EB = WB + WSL * NSL
STG = WB + 2 * WSL
SLOT_B = TILE_B + 16
BUF_B = 8 * SLOT_B
GCH_B = 8 * TILE_B
RING = 81920
LDS_BYTES = RING + 3 * BUF_B
SPIN_MAX = 400000
SC1 = "sc1"

def gen(a):
    a(f".globl {NAME}\n.p2align 8\n.type {NAME},@function")
    a.label(NAME)
    WS = "s[8:11]"; SX, SW, SE, SDBG = 16, 20, 24, 28
    s_w = 12; s_type, s_n, s_m0, s_e, s_ldw, s_n0b = 13, 14, 15, 32, 33, 34
    s_wm, s_wn = 35, 36
    s_t0, s_t1, s_t2, s_t3 = 3, 4, 5, 6
    s_cnt, s_slot = 37, 38
    MV, MK, MHI = "s[40:41]", "s[42:43]", "s[44:45]"
    P_IN = 48
    srd = lambda r: f"s[{r}:{r+3}]"
    lane, l16, g, t0, t1, t2, t3 = 1, 2, 3, 4, 5, 6, 7
    VB = 8

    a(f"""
s_cmp_ge_u32 s2, 256
s_cbranch_scc1 L_end
s_load_dwordx16 s[48:63], s[0:1], 0
s_load_dwordx4 s[64:67], s[0:1], 64
s_load_dwordx2 s[68:69], s[0:1], 80
v_lshrrev_b32 v{t0}, 6, v0
v_and_b32 v{lane}, 63, v0
v_readfirstlane_b32 s{s_w}, v{t0}
v_and_b32 v{l16}, 15, v0
v_bfe_u32 v{g}, v0, 4, 2
s_and_b32 s3, s2, 7
s_lshr_b32 s4, s2, 3
s_and_b32 s5, s3, 1
s_lshl_b32 s5, s5, 3
s_and_b32 s6, s4, 7
s_add_u32 s5, s5, s6
s_lshl_b32 s{s_m0}, s5, 7
s_lshr_b32 s4, s4, 3
s_lshr_b32 s3, s3, 1
s_lshl_b32 s5, s3, 2
s_add_u32 s{s_n}, s5, s4
s_lshr_b32 s6, s4, 1
s_add_u32 s6, s6, 3
s_and_b32 s{s_e}, s4, 1
s_cmp_lt_u32 s3, 3
s_cselect_b32 s{s_type}, s3, s6
s_cselect_b32 s5, s{s_n}, s4
s_mul_i32 s{s_n0b}, s5, 320
s_mov_b32 s10, {WS_SIZE}
s_mov_b32 s11, 0x20000
s_mov_b32 s{SX+2}, {2048*1280}
s_mov_b32 s{SX+3}, 0x20000
s_mov_b32 s6, {640*1280}
s_cselect_b32 s{SW+2}, {640*3840}, s6
s_mov_b32 s{SW+3}, 0x20000
s_movk_i32 s6, 1280
s_cselect_b32 s{s_ldw}, 3840, s6
s_mov_b32 s{SE+2}, {640*40}
s_mov_b32 s{SE+3}, 0x20000
s_mov_b32 s{SDBG+2}, 256
s_mov_b32 s{SDBG+3}, 0x20000
s_mov_b32 s40, 0x000fffff
s_mov_b32 s41, 0x000fffff
s_mov_b32 s42, 0xffff
s_mov_b32 s43, 0
s_mov_b32 s44, 0
s_mov_b32 s45, -1
s_waitcnt lgkmcnt(0)
s_cselect_b32 s{SX}, s48, s54
s_cselect_b32 s{SX+1}, s49, s55
s_cselect_b32 s{SW}, s50, s56
s_cselect_b32 s{SW+1}, s51, s57
s_cmp_eq_u32 s{s_type}, 3
s_cselect_b32 s{SE}, s58, s60
s_cselect_b32 s{SE+1}, s59, s61
s_mov_b32 s8, s68
s_mov_b32 s9, s69
s_mov_b32 s{SDBG}, s66
s_mov_b32 s{SDBG+1}, s67
""")
    stamp_setup(a, 0, s_w, 68, 160)
    stamp(a, 0)
    a(f"""
s_cmp_lt_u32 s{s_w}, 4
s_cbranch_scc1 L_a_comp
s_cmp_eq_u32 s{s_w}, 8
s_cbranch_scc1 L_a_aux
""")
    xd, wd, ed = VB, VB + 4, VB + 9
    s_xs, s_ws, s_es, s_wstep, s_lx, s_lw, s_le = 70 + 12, 71 + 12, 72 + 12, 73 + 12, 74 + 12, 75 + 12, 76 + 12
    a(f"""
s_sub_u32 s7, s{s_w}, 4
v_lshrrev_b32 v{t0}, 3, v{lane}
v_and_b32 v{t1}, 7, v{lane}
v_xor_b32 v{t2}, v{t1}, v{t0}
v_lshlrev_b32 v{t2}, 4, v{t2}
s_lshl_b32 s3, s7, 5
s_add_u32 s3, s3, s{s_m0}
v_add_u32 v{t3}, s3, v{t0}
v_mul_u32_u24 v{t3}, 1280, v{t3}
v_add_u32 v{xd}, v{t3}, v{t2}
v_add_u32 v{xd+1}, 10240, v{xd}
v_add_u32 v{xd+2}, 20480, v{xd}
v_add_u32 v{xd+3}, 30720, v{xd}
s_lshl_b32 s{s_lx}, s7, 12
s_mov_b32 s{s_xs}, 0
""")
    def xdma(slot_expr_const=None):
        g_ = []
        for i in range(4):
            g_ += [f"s_add_u32 m0, s{s_lx}, {i*1024}", "s_nop 0",
                   f"buffer_load_dwordx4 v{xd+i}, {srd(SX)}, s{s_xs} offen lds"]
        return g_
    for l in xdma(): a(l)
    a(f"""
s_lshl_b32 s3, s7, 4
v_add_u32 v{t3}, s3, v{t0}
v_mul_u32_u24 v{t3}, 40, v{t3}
v_lshlrev_b32 v{t1}, 2, v{t1}
s_lshl_b32 s4, s{s_e}, 5
v_add3_u32 v{ed}, v{t3}, v{t1}, s4
v_add_u32 v{ed+1}, 320, v{ed}
""")
    for i in range(5):
        a(f"""
v_add_u32 v{t0}, {64*i}, v{lane}
v_mul_u32_u24 v{t1}, 3277, v{t0}
v_lshrrev_b32 v{t1}, 16, v{t1}
v_mul_u32_u24 v{t2}, 20, v{t1}
v_sub_u32 v{t2}, v{t0}, v{t2}
v_bfe_u32 v{t3}, v{t1}, 3, 1
v_lshlrev_b32 v{t3}, 1, v{t3}
v_xor_b32 v{t2}, v{t2}, v{t3}
v_lshlrev_b32 v{t2}, 4, v{t2}
v_add_u32 v{t1}, s3, v{t1}
v_mul_lo_u32 v{t1}, v{t1}, s{s_ldw}
v_add3_u32 v{wd+i}, v{t1}, v{t2}, s{s_n0b}
""")
    a(f"""
s_mul_i32 s{s_lw}, s7, 5120
s_add_u32 s{s_lw}, s{s_lw}, {WB}
s_lshl_b32 s{s_le}, s7, 9
s_add_u32 s{s_le}, s{s_le}, {EB}
s_mov_b32 s{s_ws}, 0
s_mov_b32 s{s_es}, 0
s_lshl_b32 s{s_wstep}, s{s_ldw}, 6
s_mov_b32 s{s_slot}, 0
""")
    def wdma():
        g_ = []
        for i in range(5):
            g_ += [f"s_add_u32 m0, s{s_lw}, {i*1024}", "s_nop 0",
                   f"buffer_load_dwordx4 v{wd+i}, {srd(SW)}, s{s_ws} offen lds"]
        for i in range(2):
            g_ += [f"s_add_u32 m0, s{s_le}, {i*256}", "s_nop 0",
                   f"buffer_load_dword v{ed+i}, {srd(SE)}, s{s_es} offen lds"]
        return g_
    def adv():
        return f"""
s_add_u32 s{s_xs}, s{s_xs}, 128
s_add_u32 s{s_ws}, s{s_ws}, s{s_wstep}
s_add_u32 s{s_es}, s{s_es}, 2560
s_add_u32 s{s_lx}, s{s_lx}, {XS}
s_add_u32 s{s_lw}, s{s_lw}, {WSL}
s_add_u32 s{s_le}, s{s_le}, 2048
s_add_u32 s{s_slot}, s{s_slot}, 1
s_cmp_lt_u32 s{s_slot}, 4
s_cbranch_scc1 @SKIP@
s_sub_u32 s{s_lx}, s{s_lx}, {4*XS}
s_sub_u32 s{s_lw}, s{s_lw}, {4*WSL}
s_sub_u32 s{s_le}, s{s_le}, {4*2048}
s_mov_b32 s{s_slot}, 0
@SKIP@:
"""
    D = 11
    for l in wdma(): a(l)
    a(adv().replace("@SKIP@", "L_ld_s0"))
    a(f"s_mov_b32 s{s_cnt}, 1")
    a.label("L_ld_pro")
    for l in xdma() + wdma(): a(l)
    a(adv().replace("@SKIP@", "L_ld_s1"))
    a(f"""
s_add_u32 s{s_cnt}, s{s_cnt}, 1
s_cmp_lt_u32 s{s_cnt}, 4
s_cbranch_scc1 L_ld_pro
s_waitcnt vmcnt({3*D})
s_barrier
L_ld_loop:
s_waitcnt vmcnt({2*D})
s_barrier
""")
    for l in xdma() + wdma(): a(l)
    a(adv().replace("@SKIP@", "L_ld_s2"))
    a(f"""
s_add_u32 s{s_cnt}, s{s_cnt}, 1
s_cmp_lt_u32 s{s_cnt}, {NST}
s_cbranch_scc1 L_ld_loop
s_waitcnt vmcnt({2*D})
s_barrier
s_waitcnt vmcnt({D})
s_barrier
s_waitcnt vmcnt(0)
s_barrier
s_branch L_a_copy
""")
    a.label("L_a_aux")
    a(f"""
v_mov_b32 v{t0}, 0
v_mov_b32 v{t1}, 1
s_cmp_ge_u32 s2, {NCNT}
s_cbranch_scc1 L_aux_noinit
s_lshl_b32 s3, s2, 8
s_add_u32 s3, s3, {WS_CNT}
s_mov_b64 exec, 1
buffer_store_dword v{t0}, v{t0}, {WS}, s3 offen sc1
s_waitcnt vmcnt(0)
buffer_atomic_add v{t1}, v{t0}, {srd(SDBG)}, 0 offen sc1
s_mov_b64 exec, -1
L_aux_noinit:
s_mov_b32 s{s_cnt}, 0
L_aux_bar:
s_barrier
s_add_u32 s{s_cnt}, s{s_cnt}, 1
s_cmp_lt_u32 s{s_cnt}, {NST}
s_cbranch_scc1 L_aux_bar
s_mov_b32 s{s_cnt}, 0
L_aux_chk:
buffer_load_dword v{t2}, v{t0}, {srd(SDBG)}, 0 offen sc1
s_waitcnt vmcnt(0)
v_cmp_ne_u32 vcc, {NCNT}, v{t2}
s_add_u32 s{s_cnt}, s{s_cnt}, 1
s_cmp_gt_u32 s{s_cnt}, {SPIN_MAX}
s_cbranch_scc1 L_aux_chkd
s_cbranch_vccz L_aux_chkd
s_sleep 4
s_branch L_aux_chk
L_aux_chkd:
s_barrier
s_barrier
s_branch L_b_aux
""")
    a.label("L_a_comp")
    V = Regs(VB, 160, "v")
    xa = V.alloc("xa", 4); wa = V.alloc("wa", 2); ea = V.alloc("ea")
    acc0 = V.alloc("acc", 22 * 4, 4); xf0 = V.alloc("xf", 32, 4); wf0 = V.alloc("wf", 24, 4)
    ep = xf0
    acc = lambda i, j: acc0 + (i * 5 + j) * 4
    acce = lambda i: acc0 + (20 + i) * 4
    xf = lambda st, i: xf0 + (st * 4 + i) * 4
    wf = lambda j: wf0 + j * 4
    a(f"""
s_lshr_b32 s{s_wm}, s{s_w}, 1
s_and_b32 s{s_wn}, s{s_w}, 1
v_and_b32 v{t0}, 7, v{l16}
v_xor_b32 v{t0}, v{t0}, v{g}
v_lshlrev_b32 v{t0}, 4, v{t0}
v_lshl_add_u32 v{t0}, v{l16}, 7, v{t0}
s_lshl_b32 s3, s{s_wm}, 13
v_add_u32 v{t0}, s3, v{t0}
s_lshl_b32 s3, s{s_wn}, 12
v_add_u32 v{xa}, s3, v{t0}
v_xor_b32 v{xa+1}, 64, v{xa}
s_sub_u32 s3, 4096, s3
v_add_u32 v{xa+2}, s3, v{t0}
v_xor_b32 v{xa+3}, 64, v{xa+2}
v_lshrrev_b32 v{t0}, 2, v{l16}
v_lshl_add_u32 v{t0}, v{g}, 3, v{t0}
v_mul_u32_u24 v{t1}, 320, v{t0}
v_and_b32 v{t2}, 3, v{l16}
v_lshl_add_u32 v{t1}, v{t2}, 3, v{t1}
s_mul_i32 s3, s{s_wn}, 160
s_add_u32 s3, s3, {WB}
v_add_u32 v{t1}, s3, v{t1}
v_and_b32 v{t3}, 1, v{g}
v_lshlrev_b32 v{t3}, 5, v{t3}
s_lshl_b32 s3, s{s_wn}, 1
s_sub_u32 s3, 1, s3
v_mul_lo_u32 v{t3}, v{t3}, s3
v_add_u32 v{wa}, v{t1}, v{t3}
v_sub_u32 v{wa+1}, v{t1}, v{t3}
v_lshlrev_b32 v{t0}, 5, v{t0}
v_lshl_add_u32 v{t0}, v{t2}, 3, v{t0}
v_add_u32 v{ea}, {EB}, v{t0}
s_mov_b32 s{s_cnt}, 0
s_mov_b32 s{s_slot}, 0
""")
    for r in range(88): a(f"v_mov_b32 v{acc0+r}, 0")
    for r in range(16): a(f"v_mov_b32 v{xf(1,0)+r}, 0")
    for r in range(24): a(f"v_mov_b32 v{wf0+r}, 0")
    a(f"""
s_cmp_eq_u32 s{s_type}, 2
s_cbranch_scc1 L_g_N
s_cmp_eq_u32 s{s_type}, 3
s_cbranch_scc1 L_g_BT
s_cmp_eq_u32 s{s_type}, 4
s_cbranch_scc1 L_g_BN
""")
    def rx(st, i): return f"ds_read_b128 {vr(xf(st,i),4)}, v{xa + (2 if i >= 2 else 0) + st} offset:{(i%2)*2048}"
    def rw(st, j):
        if j < 5:
            return [f"ds_read_b64_tr_b16 {vr(wf(j),2)}, v{wa+(j&1)} offset:{(32*st)*320 + j*32}",
                    f"ds_read_b64_tr_b16 {vr(wf(j)+2,2)}, v{wa+(j&1)} offset:{(32*st+4)*320 + j*32}"]
        return [f"ds_read_b64_tr_b16 {vr(wf(5),2)}, v{ea} offset:{(32*st)*32}",
                f"ds_read_b64_tr_b16 {vr(wf(5)+2,2)}, v{ea} offset:{(32*st+4)*32}"]
    def step(st, orient, ext, reads_st):
        out = []
        nj = 6 if ext else 5
        for j in range(nj):
            o = orient if j < 5 else ext
            ni = 4 if j < 5 else 2
            for i in range(ni):
                A, B = (wf(j), xf(st, i)) if o == 'T' else (xf(st, i), wf(j))
                d = acc(i, j) if j < 5 else acce(i)
                out.append(f"v_mfma_f32_16x16x32_bf16 {vr(d,4)}, {vr(A,4)}, {vr(B,4)}, {vr(d,4)}")
                if reads_st is not None and j == 0:
                    out.append(rx(reads_st, i))
            if reads_st is not None:
                out += rw(reads_st, j)
        return out
    def gemm(label, orient, ext):
        a.label(label)
        a.label(label + "_loop")
        a("s_barrier")
        for l in step(1, orient, ext, 0): a(l)
        a("s_waitcnt lgkmcnt(0)")
        for l in step(0, orient, ext, 1): a(l)
        a(f"""
s_add_u32 s{s_slot}, s{s_slot}, 1
s_cmp_lt_u32 s{s_slot}, 4
s_mov_b32 s3, {(-3*XS) & 0xffffffff:#x}
s_cselect_b32 s3, {XS}, s3
s_mov_b32 s4, {(-3*WSL) & 0xffffffff:#x}
s_cselect_b32 s4, {WSL}, s4
s_mov_b32 s5, {(-3*2048) & 0xffffffff:#x}
s_cselect_b32 s5, 2048, s5
s_cselect_b32 s{s_slot}, s{s_slot}, 0
s_add_u32 s{s_cnt}, s{s_cnt}, 1
s_cmp_lt_u32 s{s_cnt}, {NST}
s_waitcnt lgkmcnt(0)
v_add_u32 v{xa}, s3, v{xa}
v_add_u32 v{xa+1}, s3, v{xa+1}
v_add_u32 v{xa+2}, s3, v{xa+2}
v_add_u32 v{xa+3}, s3, v{xa+3}
v_add_u32 v{wa}, s4, v{wa}
v_add_u32 v{wa+1}, s4, v{wa+1}
v_add_u32 v{ea}, s5, v{ea}
s_cbranch_scc1 {label}_loop
""")
        for l in step(1, orient, ext, None): a(l)
        a("s_nop 7\ns_nop 3")
    def pi16(dst):
        a(f"""
v_and_b32 v{dst}, 3, v{l16}
v_bfe_u32 v{t3}, v{l16}, 2, 1
v_lshl_add_u32 v{dst}, v{t3}, 3, v{dst}
v_bfe_u32 v{t3}, v{l16}, 3, 1
v_lshl_add_u32 v{dst}, v{t3}, 2, v{dst}
""")
    def pack(dst, src, scale=None):
        if scale is not None:
            for r in range(4): a(f"v_mul_f32 v{src+r}, s{scale}, v{src+r}")
        a(f"v_cvt_pk_bf16_f32 v{dst}, v{src}, v{src+1}")
        a(f"v_cvt_pk_bf16_f32 v{dst+1}, v{src+2}, v{src+3}")
    def stage_T():
        pi16(t2)
        a(f"""
s_lshl_b32 s3, s{s_wm}, 1
s_add_u32 s4, s3, s{s_wn}
s_mul_i32 s4, s4, {RI_B}
s_add_u32 s4, s4, {STG}
s_add_u32 s5, s3, 1
s_sub_u32 s5, s5, s{s_wn}
s_mul_i32 s5, s5, {RI_B}
s_add_u32 s5, s5, {STG}
""")
        n = 0
        for j in range(5):
            a(f"""
s_mul_i32 s3, s{s_wn}, 20
s_add_u32 s3, s3, {4*j}
v_add_u32 v{t0}, s3, v{g}
v_mul_u32_u24 v{t1}, 205, v{t0}
v_lshrrev_b32 v{t1}, 10, v{t1}
v_mul_u32_u24 v{t3}, 5, v{t1}
v_sub_u32 v{t0}, v{t0}, v{t3}
v_mul_u32_u24 v{t1}, {4*RI_B}, v{t1}
v_lshrrev_b32 v{t3}, 1, v{t0}
v_lshl_add_u32 v{t3}, v{t3}, 5, v{t2}
v_lshlrev_b32 v{t3}, 4, v{t3}
v_and_b32 v{ep+14}, 1, v{t0}
v_lshl_add_u32 v{t3}, v{ep+14}, 3, v{t3}
v_lshlrev_b32 v{ep+14}, 3, v{t2}
v_add_u32 v{ep+14}, 1024, v{ep+14}
v_cmp_eq_u32 vcc, 4, v{t0}
v_mov_b32 v{ep+15}, 256
v_mov_b32 v{ep+13}, 128
v_cndmask_b32 v{t3}, v{t3}, v{ep+14}, vcc
v_cndmask_b32 v{ep+15}, v{ep+15}, v{ep+13}, vcc
v_add_u32 v{t0}, v{t1}, v{t3}
v_add_u32 v{t1}, v{t0}, v{ep+15}
v_add_u32 v{ep+16}, s4, v{t0}
v_add_u32 v{ep+17}, s4, v{t1}
v_add_u32 v{ep+18}, s5, v{t0}
v_add_u32 v{ep+19}, s5, v{t1}
""")
            for i in range(4):
                d = ep + 2 * (n % 6); n += 1
                pack(d, acc(i, j), 7)
                a(f"ds_write_b64 v{ep+16+i}, {vr(d,2)}")
    def stage_N():
        a(f"""
s_lshl_b32 s3, s{s_wm}, 1
s_add_u32 s4, s3, s{s_wn}
s_mul_i32 s4, s4, {RI_B}
s_add_u32 s4, s4, {STG}
s_add_u32 s5, s3, 1
s_sub_u32 s5, s5, s{s_wn}
s_mul_i32 s5, s5, {RI_B}
s_add_u32 s5, s5, {STG}
v_lshrrev_b32 v{t2}, 1, v{g}
v_mul_u32_u24 v{t2}, 320, v{t2}
v_and_b32 v{t3}, 1, v{g}
v_lshl_add_u32 v{t2}, v{t3}, 3, v{t2}
""")
        n = 0
        for j in range(5):
            a(f"""
s_mul_i32 s3, s{s_wn}, 80
s_add_u32 s3, s3, {16*j}
v_add_u32 v{t0}, s3, v{l16}
v_mul_u32_u24 v{t1}, 205, v{t0}
v_lshrrev_b32 v{t1}, 12, v{t1}
v_mul_u32_u24 v{t3}, 20, v{t1}
v_sub_u32 v{t0}, v{t0}, v{t3}
v_mul_u32_u24 v{t1}, {4*RI_B}, v{t1}
v_lshl_add_u32 v{t0}, v{t0}, 4, v{t2}
v_add_u32 v{t0}, v{t0}, v{t1}
v_add_u32 v{ep+16}, s4, v{t0}
v_add_u32 v{ep+17}, s5, v{t0}
""")
            for i in range(4):
                d = ep + 2 * (n % 6); n += 1
                pack(d, acc(i, j))
                a(f"ds_write_b64 v{ep+16+i//2}, {vr(d,2)} offset:{640*(i%2)}")
    def extra(kind):
        a(f"""
s_lshr_b32 s3, s{s_m0}, 5
s_lshl_b32 s4, s{s_wm}, 1
s_add_u32 s3, s3, s4
s_add_u32 s3, s3, s{s_wn}
s_mul_i32 s6, s3, {TILE_B}
s_add_u32 s6, s6, {WS_KV + 32*HEAD_B}
""")
        if kind == 'k':
            pi16(t2)
            a(f"""
v_lshrrev_b32 v{t3}, 1, v{g}
v_lshl_add_u32 v{t3}, v{t3}, 5, v{t2}
v_lshlrev_b32 v{t3}, 4, v{t3}
v_and_b32 v{t0}, 1, v{g}
v_lshl_add_u32 v{t0}, v{t0}, 3, v{t3}
v_add_u32 v{t1}, 256, v{t0}
s_cmp_eq_u32 s{s_e}, 0
s_cbranch_scc1 L_ek_go
v_lshlrev_b32 v{t0}, 3, v{t2}
v_add_u32 v{t0}, 3072, v{t0}
v_mov_b32 v{t3}, 0x7f000000
v_cmp_eq_u32 vcc, 0, v{g}
s_nop 1
v_cndmask_b32 v{t0}, v{t3}, v{t0}, vcc
v_add_u32 v{t1}, 128, v{t0}
L_ek_go:
""")
        else:
            a(f"""
v_lshrrev_b32 v{t2}, 1, v{g}
v_lshlrev_b32 v{t2}, 9, v{t2}
v_and_b32 v{t3}, 1, v{g}
v_lshl_add_u32 v{t2}, v{t3}, 3, v{t2}
v_add_u32 v{t2}, 1024, v{t2}
s_lshl_b32 s3, s{s_e}, 4
v_add_u32 v{t0}, s3, v{l16}
v_lshl_add_u32 v{t1}, v{t0}, 4, v{t2}
v_mov_b32 v{t3}, 0x7f000000
v_cmp_gt_u32 vcc, 20, v{t0}
s_nop 1
v_cndmask_b32 v{t0}, v{t3}, v{t1}, vcc
v_add_u32 v{t1}, 1024, v{t0}
""")
        for i in range(2):
            d = ep + 20 + 2 * i
            pack(d, acce(i))
            a(f"buffer_store_dwordx2 {vr(d,2)}, v{t0 if i == 0 else t1}, {WS}, s6 offen {SC1}")
    gemm("L_g_T", 'T', None)
    a(f"""
s_mov_b32 s7, {f32bits(QSCALE):#x}
s_cmp_eq_u32 s{s_type}, 1
s_cselect_b32 s7, 1.0, s7
L_stT:
""")
    stage_T()
    a("s_branch L_a_copy")
    gemm("L_g_N", 'N', None)
    stage_N()
    a("s_branch L_a_copy")
    gemm("L_g_BT", 'T', 'T')
    extra('k')
    a(f"s_mov_b32 s7, {f32bits(QSCALE):#x}\ns_branch L_stT")
    gemm("L_g_BN", 'T', 'N')
    extra('v')
    a(f"s_mov_b32 s7, {f32bits(QSCALE):#x}\ns_branch L_stT")

    a.label("L_a_copy")
    stamp(a, 1)
    cp = VB + 16
    a(f"""
s_lshr_b32 s3, s{s_m0}, 5
s_and_b32 s4, s{s_n}, 3
s_lshl_b32 s4, s4, 3
s_cmp_ge_u32 s{s_type}, 3
s_cselect_b32 s5, 32, 0
s_add_u32 s5, s5, s4
s_mul_i32 s5, s5, {RIH_B}
s_mul_i32 s6, s3, {RI_B}
s_add_u32 s5, s5, s6
s_mul_i32 s4, s4, {HEAD_B}
s_mul_i32 s6, s3, {TILE_B}
s_add_u32 s4, s4, s6
s_add_u32 s4, s4, {WS_KV}
s_sub_u32 s3, s{s_type}, 1
s_cmp_lt_u32 s3, 2
s_cselect_b32 s80, s4, s5
s_mov_b32 s3, {RIH_B}
s_cselect_b32 s81, {HEAD_B}, s3
s_movk_i32 s3, {RI_B}
s_cselect_b32 s46, {TILE_B}, s3
s_movk_i32 s3, 0
s_cselect_b32 s47, {3072-1024}, s3
""")
    s_db, s_hs = 80, 81
    for i in range(5):
        ad = VB + i
        a(f"""
v_add_u32 v{t0}, {512*i}, v0
v_mul_u32_u24 v{t1}, 3277, v{t0}
v_lshrrev_b32 v{t1}, 18, v{t1}
v_mul_u32_u24 v{t2}, 80, v{t1}
v_sub_u32 v{t2}, v{t0}, v{t2}
v_lshrrev_b32 v{t3}, 2, v{t1}
v_mul_lo_u32 v{ad}, v{t3}, s{s_hs}
v_and_b32 v{t1}, 3, v{t1}
v_mul_lo_u32 v{t1}, v{t1}, s46
v_add_u32 v{ad}, v{ad}, v{t1}
v_lshlrev_b32 v{VB+5+i}, 4, v{t2}
v_cmp_le_u32 vcc, 64, v{t2}
v_mov_b32 v{t3}, s47
v_mul_u32_u24 v{t1}, 205, v{t2}
v_cndmask_b32 v{t3}, 0, v{t3}, vcc
v_lshrrev_b32 v{t1}, 12, v{t1}
v_mul_u32_u24 v{t1}, 192, v{t1}
v_add_u32 v{VB+10+i}, 1024, v{t1}
v_add_u32 v{ad}, v{ad}, v{VB+5+i}
v_mov_b32 v{VB+5+i}, v{t3}
""")
    a(f"s_cmp_eq_u32 s{s_type}, 2\ns_cselect_b64 vcc, -1, 0")
    for i in range(5):
        a(f"v_cndmask_b32 v{VB+5+i}, v{VB+5+i}, v{VB+10+i}, vcc")
        a(f"v_add_u32 v{VB+i}, v{VB+i}, v{VB+5+i}")
    a(f"""
v_lshlrev_b32 v{t0}, 4, v0
v_add_u32 v{t0}, {STG}, v{t0}
s_waitcnt lgkmcnt(0)
s_barrier
""")
    for i in range(5):
        a(f"ds_read_b128 {vr(cp+4*i,4)}, v{t0} offset:{8192*i}")
    for i in range(5):
        a(f"s_waitcnt lgkmcnt({4-i})")
        a(f"buffer_store_dwordx4 {vr(cp+4*i,4)}, v{VB+i}, {WS}, s{s_db} offen {SC1}")
    a("s_waitcnt vmcnt(0)\ns_barrier")
    stamp(a, 2)

    V = Regs(VB, 160, "v")
    vdma = V.alloc("vdma"); vAc = V.alloc("vAc"); vKc = V.alloc("vKc"); vAn = V.alloc("vAn"); vKn = V.alloc("vKn")
    vk2l = V.alloc("vk2l"); vt8 = V.alloc("vt8"); mx = V.alloc("mx", 2)
    Q1 = [V.alloc("Q1a", 4, 4), V.alloc("Q1b", 4, 4)]
    Q2 = [V.alloc("Q2a", 2, 2), V.alloc("Q2b", 2, 2)]
    K2 = [V.alloc("K2e", 2, 2), V.alloc("K2o", 2, 2)]
    K1 = [V.alloc("K1e", 4, 4), V.alloc("K1o", 4, 4)]
    V0 = [V.alloc("V0e", 4, 4), V.alloc("V0o", 4, 4)]
    V1 = [V.alloc("V1e", 4, 4), V.alloc("V1o", 4, 4)]
    P = V.alloc("P", 8, 4)
    S = [V.alloc("SA", 16, 4), V.alloc("SB", 16, 4)]
    O = [V.alloc("OA", 16, 4), V.alloc("OB", 16, 4)]
    s_gd, s_ld, s_nb, s_img, s_qb, s_br, s_head, s_qc = 13, 14, 15, 32, 33, 34, 35, 36
    def decode_b():
        a(f"""
s_and_b32 s3, s2, 7
s_lshr_b32 s6, s2, 3
s_lshr_b32 s{s_br}, s6, 4
s_and_b32 s6, s6, 15
s_lshl_b32 s3, s3, 4
s_add_u32 s3, s3, s6
s_lshr_b32 s{s_head}, s3, 2
s_and_b32 s{s_qc}, s3, 3
s_cmp_eq_u32 s{s_br}, 0
s_cselect_b32 s3, s{s_head}, 32
s_mul_i32 s{s_img}, s3, {HEAD_B}
s_add_u32 s{s_img}, s{s_img}, {WS_KV}
v_lshlrev_b32 v{vdma}, 4, v{lane}
""")
    def dma_tile(m0expr, s_g):
        return [m0expr,
                f"s_mov_b64 exec, {MV}",
                f"buffer_load_dwordx4 v{vdma}, {WS}, s{s_g} offen offset:1024 {SC1} lds",
                f"buffer_load_dwordx4 v{vdma}, {WS}, s{s_g} offen offset:2048 {SC1} lds",
                f"s_mov_b64 exec, {MK}",
                f"buffer_load_dwordx4 v{vdma}, {WS}, s{s_g} offen offset:3072 {SC1} lds",
                f"s_mov_b64 exec, -1",
                f"buffer_load_dwordx4 v{vdma}, {WS}, s{s_g} offen {SC1} lds"]
    decode_b()
    a(f"""
s_mul_i32 s{s_ld}, s{s_w}, {TILE_B}
s_add_u32 s{s_gd}, s{s_img}, s{s_ld}
s_mul_i32 s{s_ld}, s{s_w}, {SLOT_B}
s_add_u32 s{s_ld}, s{s_ld}, {RING}
s_lshl_b32 s3, s{s_br}, 5
s_add_u32 s3, s3, s{s_head}
s_lshl_b32 s3, s3, 6
s_lshl_b32 s6, s{s_qc}, 4
s_add_u32 s3, s3, s6
s_lshl_b32 s6, s{s_w}, 1
s_add_u32 s3, s3, s6
s_mul_i32 s{s_qb}, s3, {RI_B}
v_and_b32 v{t1}, 31, v{lane}
v_lshlrev_b32 v{vt8}, 3, v{t1}
v_cmp_eq_u32 vcc, 20, v{t1}
v_mov_b32 v{t2}, 0x3f803f80
v_add_u32 v{t0}, s{s_ld}, v{vdma}
v_cndmask_b32 v{P}, 0, v{t2}, vcc
v_cndmask_b32 v{P+1}, 0, v{t2}, vcc
v_cndmask_b32 v{P+2}, 0, v{t2}, vcc
v_cndmask_b32 v{P+3}, 0, v{t2}, vcc
v_mov_b32 v{S[0]}, 0x3f803f80
v_mov_b32 v{S[0]+1}, 0x3f80
v_mov_b32 v{t1}, s{s_ld}
s_not_b64 exec, {MV}
ds_write_b128 v{t0}, {vr(P,4)} offset:1024
ds_write_b128 v{t0}, {vr(P,4)} offset:2048
ds_write_b128 v{t0}, {vr(P,4)} offset:{BUF_B+1024}
ds_write_b128 v{t0}, {vr(P,4)} offset:{BUF_B+2048}
ds_write_b128 v{t0}, {vr(P,4)} offset:{2*BUF_B+1024}
ds_write_b128 v{t0}, {vr(P,4)} offset:{2*BUF_B+2048}
s_mov_b64 exec, 1
ds_write_b64 v{t1}, {vr(S[0],2)} offset:{TILE_B}
ds_write_b64 v{t1}, {vr(S[0],2)} offset:{BUF_B+TILE_B}
ds_write_b64 v{t1}, {vr(S[0],2)} offset:{2*BUF_B+TILE_B}
s_mov_b64 exec, -1
v_add_u32 v{t0}, {RING+3072}, v{vt8}
v_mov_b32 v{t1}, {RING+TILE_B}
v_cndmask_b32 v{vk2l}, v{t0}, v{t1}, {MHI}
v_add_u32 v{vAc}, {RING}, v{vdma}
v_mov_b32 v{vKc}, v{vk2l}
v_add_u32 v{vAn}, {RING+BUF_B}, v{vdma}
v_add_u32 v{vKn}, {BUF_B}, v{vk2l}
s_mov_b32 s{s_nb}, {2*BUF_B}
s_mov_b32 s{s_cnt}, 0
""")
    for r in range(16):
        a(f"v_mov_b32 v{O[0]+r}, 0\nv_mov_b32 v{O[1]+r}, 0")
    for r in range(4):
        a(f"v_mov_b32 v{P+4+r}, 0\nv_mov_b32 v{V1[1]+r}, 0")
    a("s_barrier")
    stamp(a, 3)
    for l in dma_tile(f"s_mov_b32 m0, s{s_ld}", s_gd): a(l)
    a(f"""
buffer_load_dwordx4 {vr(Q1[0],4)}, v{vdma}, {WS}, s{s_qb} offen {SC1}
buffer_load_dwordx2 {vr(Q2[0],2)}, v{vt8}, {WS}, s{s_qb} offen offset:1024 {SC1}
buffer_load_dwordx4 {vr(Q1[1],4)}, v{vdma}, {WS}, s{s_qb} offen offset:{RI_B} {SC1}
buffer_load_dwordx2 {vr(Q2[1],2)}, v{vt8}, {WS}, s{s_qb} offen offset:{RI_B+1024} {SC1}
s_waitcnt vmcnt(0) lgkmcnt(0)
s_barrier
ds_read_b128 {vr(K1[0],4)}, v{vAc}
ds_read_b64 {vr(K2[0],2)}, v{vKc}
ds_read_b128 {vr(V0[0],4)}, v{vAc} offset:1024
ds_read_b128 {vr(V1[0],4)}, v{vAc} offset:2048
ds_read_b128 {vr(K1[1],4)}, v{vAc} offset:{SLOT_B}
ds_read_b64 {vr(K2[1],2)}, v{vKc} offset:{SLOT_B}
""")
    def zero_off():
        for x in range(2):
            a(f"v_cndmask_b32 v{Q2[x]}, v{Q2[x]}, 0, {MHI}")
            a(f"v_cndmask_b32 v{Q2[x]+1}, v{Q2[x]+1}, 0, {MHI}")
    def qk(x, kb):
        return [f"v_mfma_f32_32x32x16_bf16 {vr(S[x],16)}, {vr(K1[kb],4)}, {vr(Q1[x],4)}, 0",
                f"v_mfma_f32_32x32x8_bf16 {vr(S[x],16)}, {vr(K2[kb],2)}, {vr(Q2[x],2)}, {vr(S[x],16)}"]
    def rowmax(x, dst, first):
        s = S[x]
        if first:
            a(f"v_max3_f32 v{dst}, v{s}, v{s+1}, v{s+2}")
            a(f"v_max_f32 v{dst}, v{dst}, v{s+3}")
            rs = range(4, 16, 2)
        else:
            rs = range(0, 16, 2)
        for r in rs:
            a(f"v_max3_f32 v{dst}, v{dst}, v{s+r}, v{s+r+1}")
    def set_off(x, m):
        a(f"""
v_mov_b32 v{t0}, v{m}
s_nop 1
v_permlane32_swap_b32 v{m}, v{t0}
s_nop 1
v_max_f32 v{t0}, v{m}, v{t0}
v_sub_f32 v{t0}, 0, v{t0}
v_and_b32 v{t1}, 0xffff0000, v{t0}
v_sub_f32 v{t0}, v{t0}, v{t1}
v_and_b32 v{t2}, 0xffff0000, v{t0}
v_sub_f32 v{t0}, v{t0}, v{t2}
s_mov_b32 s3, 0x07060302
v_perm_b32 v{t1}, v{t2}, v{t1}, s3
v_lshrrev_b32 v{t0}, 16, v{t0}
v_cndmask_b32 v{Q2[x]}, v{Q2[x]}, v{t1}, {MHI}
v_cndmask_b32 v{Q2[x]+1}, v{Q2[x]+1}, v{t0}, {MHI}
""")
    zero_off()
    a("s_waitcnt lgkmcnt(4)")
    for x in range(2):
        for l in qk(x, 0): a(l)
    a("s_nop 7\ns_nop 3")
    rowmax(0, mx, True)
    set_off(0, mx)
    a("s_nop 1")
    for l in qk(0, 0): a(l)
    rowmax(1, mx + 1, True)
    set_off(1, mx + 1)
    a("s_waitcnt lgkmcnt(0)")

    def unit(x, t):
        y = 1 - x
        s = S[x]
        e = t & 1; o = 1 - e
        E = [f"v_exp_f32 v{s+i}, v{s+i}" for i in range(16)]
        C = [f"v_cvt_pk_bf16_f32 v{P+i}, v{s+2*i}, v{s+2*i+1}" for i in range(8)]
        M1, M3 = qk(y, e if x == 0 else o)
        M2 = f"v_mfma_f32_32x32x16_bf16 {vr(O[y],16)}, {vr(V1[o if x == 0 else e],4)}, {vr(P+4,4)}, {vr(O[y],16)}"
        M4 = f"v_mfma_f32_32x32x16_bf16 {vr(O[x],16)}, {vr(V0[e],4)}, {vr(P,4)}, {vr(O[x],16)}"
        def addr(tt):
            return (vAc, vKc, tt * SLOT_B) if tt < 8 else (vAn, vKn, (tt - 8) * SLOT_B)
        A1, _, o1 = addr(t + 1)
        A2, B2, o2 = addr(t + 2)
        if x == 0:
            f1 = [f"ds_read_b128 {vr(V0[o],4)}, v{A1} offset:{o1+1024}"]
            f2 = [f"ds_read_b128 {vr(V1[o],4)}, v{A1} offset:{o1+2048}"]
            f4 = [f"ds_read_b128 {vr(K1[e],4)}, v{A2} offset:{o2}"]
        else:
            f1 = [f"ds_read_b64 {vr(K2[e],2)}, v{B2} offset:{o2}"]
            f2 = ["s_barrier"] if t == 5 else []
            f4 = ["s_waitcnt lgkmcnt(0)"]
        out = []
        out += [M1] + f1 + E[0:4]
        out += [M2] + f2 + [E[4], C[0], E[5], C[1], E[6], E[7]]
        out += [M3] + [E[8], C[2], E[9], C[3], E[10], E[11]]
        out += [M4] + f4 + [E[12], C[4], E[13], C[5], E[14], E[15], C[6], C[7]]
        return out
    stamp(a, 4)
    a(".p2align 6")
    a.label("L_attn_loop")
    for t in range(8):
        for x in range(2):
            for l in unit(x, t): a(l)
    a(f"""
v_mov_b32 v{vAc}, v{vAn}
v_mov_b32 v{vKc}, v{vKn}
s_add_u32 s3, s{s_nb}, {RING}
v_add_u32 v{vAn}, s3, v{vdma}
v_add_u32 v{vKn}, s{s_nb}, v{vk2l}
s_add_u32 s{s_nb}, s{s_nb}, {BUF_B}
s_cmp_eq_u32 s{s_nb}, {3*BUF_B}
s_cselect_b32 s{s_nb}, 0, s{s_nb}
s_add_u32 s{s_cnt}, s{s_cnt}, 1
s_cmp_lt_u32 s{s_cnt}, 8
s_cbranch_scc1 L_attn_loop
v_mfma_f32_32x32x16_bf16 {vr(O[1],16)}, {vr(V1[1],4)}, {vr(P+4,4)}, {vr(O[1],16)}
s_nop 7
s_nop 7
""")
    stamp(a, 5)
    def getl(x, dst):
        a(f"""
v_mov_b32 v{dst}, v{O[x]+8}
v_mov_b32 v{t0}, v{O[x]+8}
s_nop 1
v_permlane32_swap_b32 v{t0}, v{dst}
s_nop 1
""")
    a(f"s_mov_b32 s4, {f32bits(2.0**-20):#x}\ns_mov_b32 s5, {f32bits(2.0**60):#x}\ns_mov_b32 s3, 0x7f800000\ns_mov_b64 s[46:47], -1")
    for x in range(2):
        getl(x, mx + x)
        o = O[x]
        a(f"v_add_f32 v{t3}, abs(v{o}), abs(v{o+1})")
        for r in range(2, 8):
            a(f"v_add_f32 v{t3}, v{t3}, abs(v{o+r})")
        a(f"v_add_f32 v{t0}, abs(v{o+8}), abs(v{o+9})")
        a(f"v_add_f32 v{t0}, v{t0}, abs(v{o+10})")
        a(f"v_add_f32 v{t0}, v{t0}, abs(v{o+11})")
        a(f"v_cndmask_b32 v{t0}, v{t0}, 0, {MHI}")
        a(f"v_add_f32 v{t3}, v{t3}, v{t0}")
        a(f"""
v_cmp_gt_f32 vcc, s3, v{t3}
s_and_b64 s[46:47], s[46:47], vcc
v_cmp_le_f32 vcc, s4, v{mx+x}
s_and_b64 s[46:47], s[46:47], vcc
v_cmp_ge_f32 vcc, s5, v{mx+x}
s_and_b64 s[46:47], s[46:47], vcc
""")
    a(f"""
s_cmp_eq_u64 s[46:47], -1
s_cbranch_scc0 L_attn_slow
L_attn_fin:
s_add_u32 s{s_qb}, s{s_qb}, {WS_O - WS_Q}
v_lshlrev_b32 v{t1}, 3, v{lane}
v_lshrrev_b32 v{t2}, 5, v{lane}
v_mul_u32_u24 v{t2}, {RI_B - 256}, v{t2}
v_add_u32 v{t1}, v{t1}, v{t2}
""")
    for x in range(2):
        o = O[x]; d = S[x]
        a(f"v_rcp_f32 v{t0}, v{mx+x}\ns_nop 0")
        for r in range(12):
            a(f"v_mul_f32 v{o+r}, v{o+r}, v{t0}")
        a(f"""
v_cvt_pk_bf16_f32 v{d}, v{o}, v{o+1}
v_cvt_pk_bf16_f32 v{d+1}, v{o+2}, v{o+3}
v_cvt_pk_bf16_f32 v{d+2}, v{o+4}, v{o+5}
v_cvt_pk_bf16_f32 v{d+3}, v{o+6}, v{o+7}
v_cvt_pk_bf16_f32 v{P+2*x}, v{o+8}, v{o+9}
v_cvt_pk_bf16_f32 v{P+2*x+1}, v{o+10}, v{o+11}
v_permlane32_swap_b32 v{d}, v{d+2}
v_permlane32_swap_b32 v{d+1}, v{d+3}
s_nop 1
buffer_store_dwordx4 {vr(d,4)}, v{vdma}, {WS}, s{s_qb} offen offset:{RI_B*x} {SC1}
""")
    a(f"""
v_permlane32_swap_b32 v{P}, v{P+2}
v_permlane32_swap_b32 v{P+1}, v{P+3}
s_nop 1
buffer_store_dwordx2 {vr(P,2)}, v{t1}, {WS}, s{s_qb} offen offset:1024 {SC1}
""")
    V = Regs(VB, 160, "v")
    om = V.alloc("om"); ot = V.alloc("ot"); wr = V.alloc("wr", 2); oa = V.alloc("oa")
    OF = V.alloc("OF", 80, 4); CA = V.alloc("CA", 20, 4); WF = V.alloc("WF", 40, 4)
    SO = SX
    s_cm, s_cn = 13, 14
    def decode_c():
        a(f"""
s_and_b32 s3, s2, 7
s_lshr_b32 s4, s2, 3
s_lshr_b32 s{s_br}, s3, 2
s_and_b32 s3, s3, 3
s_lshl_b32 s3, s3, 2
s_and_b32 s5, s4, 3
s_add_u32 s{s_cm}, s3, s5
s_lshr_b32 s{s_cn}, s4, 2
""")
    decode_c()
    pi16(t2)
    a(f"""
s_lshl_b32 s3, s{s_br}, 11
s_lshl_b32 s4, s{s_cm}, 2
s_add_u32 s3, s3, s4
s_lshr_b32 s4, s{s_w}, 1
s_add_u32 s3, s3, s4
s_mul_i32 s3, s3, {RI_B}
s_add_u32 s33, s3, {WS_O}
s_and_b32 s4, s{s_w}, 1
s_lshl_b32 s4, s4, 4
v_add_u32 v{t2}, s4, v{t2}
v_lshrrev_b32 v{t0}, 1, v{g}
s_mov_b32 s5, {RIH_B}
v_mul_lo_u32 v{t0}, v{t0}, s5
v_and_b32 v{t1}, 1, v{g}
v_lshlrev_b32 v{t1}, 9, v{t1}
v_lshl_add_u32 v{t1}, v{t2}, 4, v{t1}
v_add_u32 v{om}, v{t0}, v{t1}
s_mov_b32 s5, {2*RIH_B}
v_mul_lo_u32 v{t0}, v{g}, s5
v_lshl_add_u32 v{ot}, v{t2}, 3, v{t0}
v_lshrrev_b32 v{t0}, 1, v{g}
v_mul_u32_u24 v{t0}, 2560, v{t0}
v_and_b32 v{t1}, 1, v{g}
v_lshl_add_u32 v{t0}, v{t1}, 7, v{t0}
v_lshl_add_u32 v{wr}, v{l16}, 3, v{t0}
v_add_u32 v{wr+1}, 51200, v{wr}
s_lshl_b32 s3, s{s_cm}, 7
s_lshl_b32 s4, s{s_w}, 4
s_add_u32 s3, s3, s4
s_mul_i32 s3, s3, 2560
s_mul_i32 s4, s{s_br}, 1280
s_add_u32 s3, s3, s4
s_mul_i32 s4, s{s_cn}, 160
s_add_u32 s15, s3, s4
v_mul_u32_u24 v{oa}, 2560, v{l16}
v_lshl_add_u32 v{oa}, v{g}, 3, v{oa}
s_mov_b32 s{SO}, s64
s_mov_b32 s{SO+1}, s65
s_mov_b32 s{SO+2}, {2048*2560}
s_mov_b32 s{SO+3}, 0x20000
s_waitcnt vmcnt(0)
s_barrier
""")
    stamp(a, 6)
    for r in range(20): a(f"v_mov_b32 v{CA+r}, 0")
    a("s_barrier")
    for s in range(16):
        a(f"buffer_load_dwordx4 {vr(OF+4*s,4)}, v{om}, {WS}, s33 offen {SC1}")
        a(f"s_add_u32 s33, s33, {2*RIH_B}")
    a(f"s_sub_u32 s33, s33, {32*RIH_B - 1024}\ns_add_u32 s4, s33, {RIH_B}")
    for u in range(4):
        a(f"buffer_load_dwordx2 {vr(OF+64+4*u,2)}, v{ot}, {WS}, s33 offen {SC1}")
        a(f"buffer_load_dwordx2 {vr(OF+66+4*u,2)}, v{ot}, {WS}, s4 offen {SC1}")
        if u < 3: a(f"s_add_u32 s33, s33, {8*RIH_B}\ns_add_u32 s4, s4, {8*RIH_B}")
    def rwo(st):
        b = WF + (st % 2) * 20
        reg, base = (wr, st * 5120) if st < 10 else (wr + 1, (st - 10) * 5120)
        out = []
        for j in range(5):
            out.append([f"ds_read_b64_tr_b16 {vr(b+4*j,2)}, v{reg} offset:{base + j*256}",
                        f"ds_read_b64_tr_b16 {vr(b+4*j+2,2)}, v{reg} offset:{base + 1280 + j*256}"])
        return out
    for gl in rwo(0):
        for l in gl: a(l)
    for st in range(20):
        b = WF + (st % 2) * 20
        nl = 24 - (st + 1) if st < 16 else 24 - (16 + 2 * (st - 15))
        a(f"s_waitcnt vmcnt({nl}) lgkmcnt(0)")
        m = [f"v_mfma_f32_16x16x32_bf16 {vr(CA+4*j,4)}, {vr(b+4*j,4)}, {vr(OF+4*st,4)}, {vr(CA+4*j,4)}" for j in range(5)]
        for l in (merge(m, rwo(st + 1)) if st < 19 else m): a(l)
    a("s_nop 7\ns_nop 3")
    for j in range(5):
        d = WF + 2 * j
        a(f"v_cvt_pk_bf16_f32 v{d}, v{CA+4*j}, v{CA+4*j+1}")
        a(f"v_cvt_pk_bf16_f32 v{d+1}, v{CA+4*j+2}, v{CA+4*j+3}")
        a(f"buffer_store_dwordx2 {vr(d,2)}, v{oa}, {srd(SO)}, s15 offen offset:{j*32}")
    if STAMPS:
        a("s_waitcnt vmcnt(0)")
        stamp(a, 7)
    a("s_endpgm")

    def signal(cnt_sgpr):
        a(f"""
s_lshl_b32 s3, s{cnt_sgpr}, 8
s_add_u32 s3, s3, {WS_CNT}
v_mov_b32 v{t0}, 0
v_mov_b32 v{t1}, 1
s_mov_b64 exec, 1
buffer_atomic_add v{t1}, v{t0}, {WS}, s3 offen sc1
s_mov_b64 exec, -1
""")
    def poll(lab, execmask, want):
        a(f"""
s_mov_b64 exec, {execmask}
s_mov_b32 s{s_cnt}, 0
{lab}:
buffer_load_dword v{t3}, v{t2}, {WS}, 0 offen sc1
s_waitcnt vmcnt(0)
v_cmp_ne_u32 vcc, {want}, v{t3}
s_add_u32 s{s_cnt}, s{s_cnt}, 1
s_cmp_gt_u32 s{s_cnt}, {SPIN_MAX}
s_cbranch_scc1 {lab}_d
s_cbranch_vccz {lab}_d
s_sleep 2
s_branch {lab}
{lab}_d:
s_mov_b64 exec, -1
""")
    a.label("L_b_aux")
    signal(s_n)
    decode_b()
    a(f"""
s_lshr_b32 s3, s{s_head}, 3
v_min_u32 v{t2}, 2, v{lane}
v_lshlrev_b32 v{t2}, 2, v{t2}
v_add_u32 v{t2}, s3, v{t2}
v_add_u32 v{t3}, 12, v{lane}
s_cmp_eq_u32 s{s_br}, 0
s_cselect_b64 vcc, -1, 0
v_cndmask_b32 v{t2}, v{t3}, v{t2}, vcc
v_lshlrev_b32 v{t2}, 8, v{t2}
v_add_u32 v{t2}, {WS_CNT}, v{t2}
s_add_u32 s{s_gd}, s{s_img}, {GCH_B}
s_mov_b32 s{s_nb}, {RING+BUF_B}
""")
    poll("L_poll1", 15, 16)
    a("s_barrier")
    def prod_chunk():
        for t in range(8):
            for l in dma_tile(f"s_add_u32 m0, s{s_nb}, {t*SLOT_B}", s_gd): a(l)
            a(f"s_add_u32 s{s_gd}, s{s_gd}, {TILE_B}")
        a(f"""
s_add_u32 s{s_nb}, s{s_nb}, {BUF_B}
s_cmp_eq_u32 s{s_nb}, {RING+3*BUF_B}
s_cselect_b32 s{s_nb}, {RING}, s{s_nb}
""")
    prod_chunk()
    wm_, wt_ = VB + 16, VB + 21
    s_cbr, s_ccn = 46, 47
    a(f"""
s_and_b32 s3, s2, 7
s_lshr_b32 s{s_cbr}, s3, 2
s_lshr_b32 s{s_ccn}, s2, 5
s_mul_i32 s{s_ccn}, s{s_ccn}, 160
s_cmp_eq_u32 s{s_cbr}, 0
s_cselect_b32 s{SW}, s52, s62
s_cselect_b32 s{SW+1}, s53, s63
s_mov_b32 s{SW+2}, {640*1280}
s_mov_b32 s{SW+3}, 0x20000
""")
    for i in range(5):
        a(f"""
v_add_u32 v{t0}, {4*i}, v{g}
v_mul_u32_u24 v{t1}, 205, v{t0}
v_lshrrev_b32 v{t1}, 10, v{t1}
v_mul_u32_u24 v{t2}, 5, v{t1}
v_sub_u32 v{t0}, v{t0}, v{t2}
v_lshlrev_b32 v{t0}, 5, v{t0}
v_and_b32 v{t2}, 1, v{lane}
v_lshl_add_u32 v{t0}, v{t2}, 4, v{t0}
v_add_u32 v{t0}, s{s_ccn}, v{t0}
v_bfe_u32 v{t2}, v{lane}, 1, 2
v_bfe_u32 v{t3}, v{lane}, 3, 1
v_lshrrev_b32 v{wm_+i}, 1, v{t1}
v_mul_u32_u24 v{wm_+i}, 20, v{wm_+i}
v_lshl_add_u32 v{wm_+i}, v{t3}, 3, v{wm_+i}
v_and_b32 v{wt_+i}, 1, v{t1}
v_lshl_add_u32 v{wm_+i}, v{wt_+i}, 2, v{wm_+i}
v_add_u32 v{wm_+i}, v{wm_+i}, v{t2}
v_mul_u32_u24 v{wm_+i}, 1280, v{wm_+i}
v_add_u32 v{wm_+i}, v{wm_+i}, v{t0}
v_lshrrev_b32 v{t1}, 1, v{t1}
v_lshl_add_u32 v{t1}, v{t1}, 1, v{t3}
v_lshl_add_u32 v{wt_+i}, v{t1}, 1, v{wt_+i}
v_mul_u32_u24 v{wt_+i}, 20, v{wt_+i}
v_add3_u32 v{wt_+i}, v{wt_+i}, v{t2}, 16
v_mul_u32_u24 v{wt_+i}, 1280, v{wt_+i}
v_add_u32 v{wt_+i}, v{wt_+i}, v{t0}
""")
    s_wl, s_wg = 39, 7
    def wo_step(regs, rows):
        for i in range(5):
            a(f"s_add_u32 m0, s{s_wl}, {i*1024}\ns_nop 0")
            a(f"buffer_load_dwordx4 v{regs+i}, {srd(SW)}, s{s_wg} offen lds")
        a(f"s_add_u32 s{s_wl}, s{s_wl}, 5120\ns_add_u32 s{s_wg}, s{s_wg}, {rows*1280}")
    a(f"""
s_mov_b32 s{s_wl}, 0
s_mov_b32 s{s_wg}, 0
s_mov_b32 s{s_cnt}, 2
s_barrier
L_ploop:
s_waitcnt vmcnt(0)
s_barrier
""")
    prod_chunk()
    for _ in range(3): wo_step(wm_, 40)
    a(f"""
s_add_u32 s{s_cnt}, s{s_cnt}, 1
s_cmp_lt_u32 s{s_cnt}, 7
s_cbranch_scc1 L_ploop
s_waitcnt vmcnt(0)
s_barrier
""")
    prod_chunk()
    wo_step(wm_, 40)
    a(f"""
s_waitcnt vmcnt(0)
s_barrier
s_barrier
s_mov_b32 s{s_wg}, 0
""")
    for _ in range(4): wo_step(wt_, 160)
    a(f"""
s_lshl_b32 s4, s{s_br}, 2
s_add_u32 s4, s4, s{s_qc}
s_add_u32 s4, s4, 16
s_and_b32 s5, s2, 7
s_add_u32 s5, s5, 16
s_lshl_b32 s5, s5, 8
s_add_u32 s5, s5, {WS_CNT}
v_mov_b32 v{t2}, s5
s_barrier
""")
    signal(4)
    poll("L_poll2", 1, 32)
    a("s_barrier\ns_endpgm")

    a.label("L_attn_slow")
    zero_off()
    a(f"""
v_and_b32 v{t3}, 31, v{lane}
v_cmp_eq_u32 s[46:47], 20, v{t3}
v_mov_b32 v{vAn}, 0x3f803f80
v_mov_b32 v{vKn}, 0x3f80
v_mov_b32 v{mx}, 0xff800000
v_mov_b32 v{mx+1}, 0xff800000
s_mov_b32 s{s_gd}, s{s_img}
s_mov_b32 s{s_cnt}, 0
L_attn_slow1:
buffer_load_dwordx4 {vr(K1[0],4)}, v{vdma}, {WS}, s{s_gd} offen {SC1}
buffer_load_dwordx2 {vr(K2[0],2)}, v{vt8}, {WS}, s{s_gd} offen offset:3072 {SC1}
s_waitcnt vmcnt(0)
v_cndmask_b32 v{K2[0]}, v{K2[0]}, v{vAn}, {MHI}
v_cndmask_b32 v{K2[0]+1}, v{K2[0]+1}, v{vKn}, {MHI}
s_nop 1
""")
    for x in range(2):
        for l in qk(x, 0): a(l)
    a("s_nop 7\ns_nop 7")
    for x in range(2):
        rowmax(x, mx + x, False)
    a(f"""
s_add_u32 s{s_gd}, s{s_gd}, {TILE_B}
s_add_u32 s{s_cnt}, s{s_cnt}, 1
s_cmp_lt_u32 s{s_cnt}, 64
s_cbranch_scc1 L_attn_slow1
""")
    for x in range(2):
        set_off(x, mx + x)
    for r in range(16):
        a(f"v_mov_b32 v{O[0]+r}, 0\nv_mov_b32 v{O[1]+r}, 0")
    a(f"""
s_mov_b32 s{s_gd}, s{s_img}
s_mov_b32 s{s_cnt}, 0
L_attn_slow2:
buffer_load_dwordx4 {vr(K1[0],4)}, v{vdma}, {WS}, s{s_gd} offen {SC1}
buffer_load_dwordx2 {vr(K2[0],2)}, v{vt8}, {WS}, s{s_gd} offen offset:3072 {SC1}
buffer_load_dwordx4 {vr(V0[0],4)}, v{vdma}, {WS}, s{s_gd} offen offset:1024 {SC1}
buffer_load_dwordx4 {vr(V1[0],4)}, v{vdma}, {WS}, s{s_gd} offen offset:2048 {SC1}
s_waitcnt vmcnt(0)
v_cndmask_b32 v{K2[0]}, v{K2[0]}, v{vAn}, {MHI}
v_cndmask_b32 v{K2[0]+1}, v{K2[0]+1}, v{vKn}, {MHI}
""")
    for r in range(4):
        a(f"v_cndmask_b32 v{V0[0]+r}, v{V0[0]+r}, v{vAn}, s[46:47]")
        a(f"v_cndmask_b32 v{V1[0]+r}, v{V1[0]+r}, v{vAn}, s[46:47]")
    a("s_nop 1")
    for x in range(2):
        for l in qk(x, 0): a(l)
    a("s_nop 7\ns_nop 7")
    for x in range(2):
        s = S[x]
        for i in range(16): a(f"v_exp_f32 v{s+i}, v{s+i}")
        a("s_nop 0")
        for i in range(8): a(f"v_cvt_pk_bf16_f32 v{P+i}, v{s+2*i}, v{s+2*i+1}")
        a("s_nop 1")
        a(f"v_mfma_f32_32x32x16_bf16 {vr(O[x],16)}, {vr(V0[0],4)}, {vr(P,4)}, {vr(O[x],16)}")
        a(f"v_mfma_f32_32x32x16_bf16 {vr(O[x],16)}, {vr(V1[0],4)}, {vr(P+4,4)}, {vr(O[x],16)}")
    a(f"""
s_add_u32 s{s_gd}, s{s_gd}, {TILE_B}
s_add_u32 s{s_cnt}, s{s_cnt}, 1
s_cmp_lt_u32 s{s_cnt}, 64
s_cbranch_scc1 L_attn_slow2
s_nop 7
s_nop 7
""")
    for x in range(2):
        getl(x, mx + x)
    a("s_branch L_attn_fin")
    a.label("L_end")
    a("s_endpgm")
    nv = 168 if STAMPS else 160
    a(f""".section .rodata,"a"
.p2align 6
.amdhsa_kernel {NAME}
  .amdhsa_next_free_vgpr {nv}
  .amdhsa_next_free_sgpr 96
  .amdhsa_accum_offset {nv}
  .amdhsa_group_segment_fixed_size 0
  .amdhsa_kernarg_size 88
  .amdhsa_user_sgpr_count 2
  .amdhsa_user_sgpr_kernarg_segment_ptr 1
  .amdhsa_system_sgpr_workgroup_id_x 1
.end_amdhsa_kernel
""")

if __name__ == "__main__":
    import sys
    REF = open('concat_heads__softmax_full_mha__grouped_kv_mqa__prompt.s.ref').read()
    hdr = [l for l in REF.split("\n") if l.startswith(";") and "@launch" not in l]
    a = Asm()
    a('.amdgcn_target "amdgcn-amd-amdhsa--gfx950"\n.text')
    gen(a)
    out = "\n".join(hdr) + f"\n; @launch grid=(256,1,1) block=(576,1,1) lds={LDS_BYTES}\n" + a.text()
    path = sys.argv[1] if len(sys.argv) > 1 else 'concat_heads__softmax_full_mha__grouped_kv_mqa__prompt.s'
    open(path, 'w').write(out)
    open('launches_f.txt', 'w').write(f"{NAME} 256 1 1 576 1 1 {LDS_BYTES}\n")
```

```python
from asmlib import *
import struct, math, os

NAME = "concat_heads__softmax_full_mha__grouped_kv_mqa__prompt_kernel"
RI_B = 1280
RIH_B = 64 * RI_B
WS_O = 0x500000
WS_KV = 0xA00000
TILE_B = 3328
HEAD_B = 64 * TILE_B
WS_CNT = 0x10C0000
WS_SIZE = 268435456
C_KV, C_EX, C_O, NCNT = 0, 32, 40, 72
QSCALE = math.log2(math.e) / math.sqrt(20.0)
def f32bits(x): return struct.unpack("<I", struct.pack("<f", x))[0]
NST = 10
SL = 32768
STG = 4 * SL
SLOT_B = TILE_B + 16
TS_B = 4 * SLOT_B
WO1 = 8 * TS_B
STGE = STG + 16 * RI_B
NWO1 = 11
LDS_BYTES = 163840
assert WO1 + NWO1 * 5120 <= LDS_BYTES
SPIN_MAX = 60000
SC1 = "sc1"
XP = os.environ.get("EXPT", "")
PFM = os.environ.get("PFM", "aux")
LEAD = int(os.environ.get("LEAD", "20"))
PFN = int(os.environ.get("PFN", "4"))

def stamp2(a, idx):
    if not STAMPS: return
    b = SV[0]
    a(f"""
s_memrealtime s[76:77]
s_add_u32 s71, s70, 0x80000
s_waitcnt lgkmcnt(0)
v_mov_b32 v{b}, s76
v_mov_b32 v{b+1}, s77
buffer_store_dwordx2 v[{b}:{b+1}], v{b+4}, s[72:75], s71 offen offset:{idx*8}
""")

def gen(a):
    a(f".globl {NAME}\n.p2align 8\n.type {NAME},@function")
    a.label(NAME)
    srd = lambda r: f"s[{r}:{r+3}]"
    WS = "s[8:11]"
    s_w, s_br, s_hg, s_mt, s_c16, s_mu = 12, 13, 14, 15, 32, 33
    s_cnt, s_slot, s_rnd, s_type = 34, 35, 36, 37
    MV, MK, MHI = "s[40:41]", "s[42:43]", "s[44:45]"
    SX, SDBG = 16, 28
    lane, l16, g, t0, t1, t2, t3 = 1, 2, 3, 4, 5, 6, 7
    VB = 8
    Q1 = [148, 152]; Q2 = [156, 158]

    a(f"""
s_cmp_ge_u32 s2, 256
s_cbranch_scc1 L_end
s_load_dwordx16 s[48:63], s[0:1], 0
s_load_dwordx4 s[64:67], s[0:1], 64
s_load_dwordx2 s[68:69], s[0:1], 80
v_lshrrev_b32 v{t0}, 6, v0
v_and_b32 v{lane}, 63, v0
v_readfirstlane_b32 s{s_w}, v{t0}
v_and_b32 v{l16}, 15, v0
v_bfe_u32 v{g}, v0, 4, 2
s_bfe_u32 s{s_br}, s2, 0x10002
s_and_b32 s3, s2, 3
s_bfe_u32 s6, s2, 0x20003
s_lshr_b32 s{s_hg}, s2, 5
s_lshl_b32 s5, s3, 2
s_add_u32 s{s_mt}, s5, s6
s_lshr_b32 s5, s3, 1
s_lshl_b32 s5, s5, 3
s_add_u32 s{s_c16}, s5, s{s_hg}
s_and_b32 s5, s3, 1
s_lshl_b32 s5, s5, 2
s_add_u32 s5, s5, s6
s_lshl_b32 s7, s{s_br}, 3
s_add_u32 s{s_mu}, s5, s7
s_mov_b32 s10, {WS_SIZE}
s_mov_b32 s11, 0x20000
s_mov_b32 s{SDBG+2}, 256
s_mov_b32 s{SDBG+3}, 0x20000
s_mov_b32 s40, 0x000fffff
s_mov_b32 s41, 0x000fffff
s_mov_b32 s42, 0xffff
s_mov_b32 s43, 0
s_mov_b32 s44, 0
s_mov_b32 s45, -1
s_mov_b32 s{s_rnd}, 0
s_waitcnt lgkmcnt(0)
s_mov_b32 s8, s68
s_mov_b32 s9, s69
s_mov_b32 s{SDBG}, s66
s_mov_b32 s{SDBG+1}, s67
""")
    stamp_setup(a, 0, s_w, 68, 160)
    stamp(a, 0)
    a(f"""
s_cmp_lt_u32 s{s_w}, 4
s_cbranch_scc1 L_comp
s_cmp_eq_u32 s{s_w}, 8
s_cbranch_scc1 L_aux
""")
    xd = VB; gd = VB + 4; grow = VB + 8; gcol = VB + 12
    SW = 20
    s_xs, s_gs, s_gst, s_lx, s_lg, s_ldw = 88, 89, 90, 38, 39, 46
    s_lw = 47
    a(f"""
s_sub_u32 s{s_lw}, s{s_w}, 4
v_lshrrev_b32 v{t0}, 3, v{lane}
v_and_b32 v{t1}, 7, v{lane}
v_xor_b32 v{t2}, v{t1}, v{t0}
v_lshlrev_b32 v{t2}, 4, v{t2}
s_lshl_b32 s3, s{s_lw}, 5
v_add_u32 v{t3}, s3, v{t0}
v_mul_u32_u24 v{t3}, 1280, v{t3}
v_add_u32 v{xd}, v{t3}, v{t2}
v_add_u32 v{xd+1}, 10240, v{xd}
v_add_u32 v{xd+2}, 20480, v{xd}
v_add_u32 v{xd+3}, 30720, v{xd}
s_lshl_b32 s{s_lx}, s{s_lw}, 12
s_mul_i32 s4, s{s_lw}, 3
s_lshl_b32 s5, s{s_lw}, 1
s_add_u32 s5, s5, 2
s_min_u32 s91, s4, s5
s_lshl_b32 s{s_lg}, s91, 10
s_add_u32 s{s_lg}, s{s_lg}, 16384
s_mov_b32 s{SW+3}, 0x20000
s_mov_b32 s{SX+2}, {2048*1280}
s_mov_b32 s{SX+3}, 0x20000
s_mov_b32 s{s_slot}, 0
""")
    def ld_x_round():
        a(f"""
s_add_u32 s3, s{s_br}, s{s_rnd}
s_cmp_eq_u32 s3, 1
s_cselect_b32 s4, s{s_mt}, s{s_mu}
s_mul_i32 s{s_xs}, s4, {128*1280}
s_cmp_gt_u32 s{s_br}, s{s_rnd}
s_cselect_b32 s{SX}, s54, s48
s_cselect_b32 s{SX+1}, s55, s49
""")
    def xdma():
        o = []
        for i in range(4):
            o += [f"s_add_u32 m0, s{s_lx}, {i*1024}", "s_nop 0", f"buffer_load_dwordx4 v{xd+i}, {srd(SX)}, s{s_xs} offen lds"]
        return o
    ld_x_round()
    for l in xdma(): a(l)
    for j in range(3):
        a(f"""
s_add_u32 s3, s91, {j}
s_cmp_ge_u32 s3, 5
s_cselect_b32 s4, 5, 0
s_cselect_b32 s5, 32, 0
s_sub_u32 s4, s3, s4
s_lshl_b32 s4, s4, 2
v_add_u32 v{t0}, s4, v{g}
v_mul_u32_u24 v{t1}, 205, v{t0}
v_lshrrev_b32 v{t1}, 10, v{t1}
v_mul_u32_u24 v{t2}, 5, v{t1}
v_sub_u32 v{t0}, v{t0}, v{t2}
v_lshlrev_b32 v{t0}, 5, v{t0}
v_and_b32 v{t2}, 1, v{lane}
v_lshl_add_u32 v{gcol+j}, v{t2}, 4, v{t0}
v_lshrrev_b32 v{t0}, 1, v{t1}
v_lshlrev_b32 v{t0}, 4, v{t0}
v_and_b32 v{t1}, 1, v{t1}
v_lshl_add_u32 v{t0}, v{t1}, 2, v{t0}
v_bfe_u32 v{t1}, v{lane}, 3, 1
v_lshl_add_u32 v{t0}, v{t1}, 3, v{t0}
v_bfe_u32 v{t1}, v{lane}, 1, 2
v_add3_u32 v{grow+j}, v{t0}, v{t1}, s5
""")
    def ld_g_round(tag):
        a(f"""
s_add_u32 s3, s{s_br}, s{s_rnd}
s_mul_i32 s4, s{s_hg}, 160
s_mul_i32 s5, s{s_c16}, 160
s_add_u32 s5, s5, 1280
s_cmp_eq_u32 s3, 1
s_cselect_b32 s{s_gs}, s4, s5
s_movk_i32 s4, 3840
s_mov_b32 s5, {640*3840}
s_cmp_gt_u32 s{s_br}, s{s_rnd}
s_cselect_b32 s{s_ldw}, 1280, s4
s_cselect_b32 s{SW+2}, {640*1280}, s5
s_cselect_b32 s{SW}, s56, s50
s_cselect_b32 s{SW+1}, s57, s51
s_lshl_b32 s{s_gst}, s{s_ldw}, 6
""")
        for j in range(3):
            a(f"v_mad_u32_u24 v{gd+j}, v{grow+j}, s{s_ldw}, v{gcol+j}")
    gd_n = [0]
    def gdma():
        o = []
        for j in range(3):
            if j == 2:
                gd_n[0] += 1
                o += [f"s_cmp_ge_u32 s{s_lw}, 2", f"s_cbranch_scc1 L_g2_{gd_n[0]}"]
            o += [f"s_add_u32 m0, s{s_lg}, {j*1024}", "s_nop 0", f"buffer_load_dwordx4 v{gd+j}, {srd(SW)}, s{s_gs} offen lds"]
        o.append(f"L_g2_{gd_n[0]}:")
        return o
    def ladv(lab):
        a(f"s_add_u32 s{s_xs}, s{s_xs}, 128")
        a(f"s_add_u32 s{s_gs}, s{s_gs}, s{s_gst}")
        a(f"""
s_add_u32 s{s_lx}, s{s_lx}, {SL}
s_add_u32 s{s_lg}, s{s_lg}, {SL}
s_and_b32 s{s_lx}, s{s_lx}, {4*SL-1}
s_and_b32 s{s_lg}, s{s_lg}, {4*SL-1}
s_add_u32 s{s_cnt}, s{s_cnt}, 1
""")
    D = 6
    pv = VB + 16
    a(f"""
v_and_b32 v{t2}, 1, v{lane}
v_lshlrev_b32 v{t2}, 3, v{t2}
v_add_u32 v{t2}, s{s_hg}, v{t2}
v_and_b32 v{t3}, 7, v{lane}
v_add_u32 v{t3}, {C_EX}, v{t3}
s_cmp_eq_u32 s{s_br}, 0
s_cselect_b64 vcc, -1, 0
s_cselect_b32 s92, 8, 16
v_cndmask_b32 v{t2}, v{t3}, v{t2}, vcc
v_lshlrev_b32 v{t2}, 8, v{t2}
v_add_u32 v{pv}, {WS_CNT}, v{t2}
""")
    ld_g_round("a")
    for l in gdma(): a(l)
    a(f"s_mov_b32 s{s_cnt}, 0")
    ladv("")
    a.label("L_ld_pro")
    for l in xdma() + gdma(): a(l)
    ladv("")
    a(f"""
s_cmp_lt_u32 s{s_cnt}, 4
s_cbranch_scc1 L_ld_pro
s_waitcnt vmcnt({3*D})
s_barrier
L_ld_loop:
s_cmp_lg_u32 s{s_cnt}, {NST}
s_cbranch_scc1 L_ld_same
s_mov_b32 s{s_rnd}, 1
""")
    ld_x_round()
    ld_g_round("b")
    a(f"""
L_ld_same:
s_waitcnt vmcnt({2*D})
s_barrier
""")
    a(f"""
s_cmp_lg_u32 s{s_cnt}, 13
s_cbranch_scc1 L_ld_noq
s_cmp_eq_u32 s{s_br}, 0
s_cbranch_scc1 L_ld_noq
""")
    def read_q():
        a(f"""
s_mul_i32 s3, s{s_w}, {2*RI_B}
s_add_u32 s3, s3, {STG}
v_lshlrev_b32 v{t0}, 4, v{lane}
v_add_u32 v{t0}, s3, v{t0}
v_and_b32 v{t1}, 31, v{lane}
v_lshlrev_b32 v{t1}, 3, v{t1}
v_add_u32 v{t1}, s3, v{t1}
ds_read_b128 {vr(Q1[0],4)}, v{t0}
ds_read_b64 {vr(Q2[0],2)}, v{t1} offset:1024
ds_read_b128 {vr(Q1[1],4)}, v{t0} offset:{RI_B}
ds_read_b64 {vr(Q2[1],2)}, v{t1} offset:{RI_B+1024}
s_waitcnt lgkmcnt(0)
""")
    read_q()
    a.label("L_ld_noq")
    a(f"""
s_cmp_lg_u32 s{s_cnt}, {2*NST-1}
s_cbranch_scc1 L_ld_nop
buffer_load_dword v{pv+1}, v{pv}, {WS}, 0 offen sc1
L_ld_nop:
""")
    if "nodma" not in XP:
        for l in xdma() + gdma(): a(l)
    ladv("")
    a(f"""
s_cmp_lt_u32 s{s_cnt}, {2*NST}
s_cbranch_scc1 L_ld_loop
""")
    vdma = VB; cst = VB + 4
    s_img, s_gd, s_nh = 20, 21, 22
    def poll(lab, execmask, want):
        a(f"""
s_mov_b64 exec, {execmask}
s_mov_b32 s3, 0
{lab}:
buffer_load_dword v{t3}, v{t2}, {WS}, 0 offen sc1
s_waitcnt vmcnt(0)
v_cmp_ne_u32 vcc, {want}, v{t3}
s_add_u32 s3, s3, 1
s_cmp_gt_u32 s3, {SPIN_MAX}
s_cbranch_scc1 {lab}_d
s_cbranch_vccz {lab}_d
s_sleep 2
s_branch {lab}
{lab}_d:
s_mov_b64 exec, -1
""")
    def dma_tile(m0expr, s_g):
        return [m0expr,
                f"s_mov_b64 exec, {MV}",
                f"buffer_load_dwordx4 v{vdma}, {WS}, s{s_g} offen offset:1024 {SC1} lds",
                f"buffer_load_dwordx4 v{vdma}, {WS}, s{s_g} offen offset:2048 {SC1} lds",
                f"s_mov_b64 exec, {MK}",
                f"buffer_load_dwordx4 v{vdma}, {WS}, s{s_g} offen offset:3072 {SC1} lds",
                f"s_mov_b64 exec, -1",
                f"buffer_load_dwordx4 v{vdma}, {WS}, s{s_g} offen {SC1} lds"]
    def img_base():
        a(f"""
s_lshl_b32 s3, s{s_hg}, 2
s_cmp_eq_u32 s{s_br}, 0
s_cselect_b32 s3, s3, 32
s_cselect_b32 s{s_nh}, 4, 1
s_mul_i32 s{s_img}, s3, {HEAD_B}
s_add_u32 s{s_img}, s{s_img}, {WS_KV}
v_lshlrev_b32 v{vdma}, 4, v{lane}
""")
    def consts(t):
        r = VB + 1 if t < 4 else VB + 2
        o = (t % 4) * TS_B
        a(f"""
s_not_b64 exec, {MV}
ds_write_b128 v{r}, {vr(cst,4)} offset:{o+1024}
ds_write_b128 v{r}, {vr(cst,4)} offset:{o+2048}
s_mov_b64 exec, 1
ds_write_b64 v{r}, {vr(cst+4,2)} offset:{o+TILE_B}
s_mov_b64 exec, -1
""")
    def first_tile(t):
        for l in dma_tile(f"s_add_u32 m0, s23, {t*TS_B}", s_gd): a(l)
        a(f"s_add_u32 s{s_gd}, s{s_gd}, {TILE_B}")
    img_base()
    a(f"""
s_cmp_ge_u32 s{s_lw}, s{s_nh}
s_cbranch_scc1 L_ld_idle0
s_mul_i32 s3, s{s_lw}, {HEAD_B}
s_add_u32 s{s_gd}, s{s_img}, s3
s_mul_i32 s23, s{s_lw}, {SLOT_B}
v_and_b32 v{t1}, 31, v{lane}
v_cmp_eq_u32 vcc, 20, v{t1}
v_mov_b32 v{t2}, 0x3f803f80
v_add_u32 v{VB+1}, s23, v{vdma}
v_cndmask_b32 v{cst}, 0, v{t2}, vcc
v_cndmask_b32 v{cst+1}, 0, v{t2}, vcc
v_cndmask_b32 v{cst+2}, 0, v{t2}, vcc
v_cndmask_b32 v{cst+3}, 0, v{t2}, vcc
v_mov_b32 v{cst+4}, 0x3f803f80
v_mov_b32 v{cst+5}, 0x3f80
v_add_u32 v{VB+2}, {4*TS_B}, v{VB+1}
s_waitcnt vmcnt({2*D})
s_barrier
s_waitcnt vmcnt({D})
v_cmp_ne_u32 vcc, s92, v{pv+1}
s_and_b32 s3, vcc_lo, 0xff
s_cbranch_scc1 L_ld_slow
""")
    first_tile(0); first_tile(1); consts(0); consts(1)
    a("s_barrier")
    first_tile(2); first_tile(3); consts(2); consts(3)
    a("s_waitcnt vmcnt(16)\ns_barrier")
    first_tile(4)
    a("s_barrier\ns_branch L_ld_fin")
    a.label("L_ld_slow")
    consts(0); consts(1)
    a(f"""
s_barrier
buffer_load_dword v{pv+1}, v{pv}, {WS}, 0 offen sc1
""")
    consts(2); consts(3)
    a(f"""
s_waitcnt vmcnt(1)
s_barrier
s_mov_b32 s4, 0
L_pollL:
s_waitcnt vmcnt(0)
v_cmp_ne_u32 vcc, s92, v{pv+1}
s_add_u32 s4, s4, 1
s_cmp_gt_u32 s4, {SPIN_MAX}
s_cbranch_scc1 L_pollL_d
s_and_b32 s3, vcc_lo, 0xff
s_cbranch_scc0 L_pollL_d
s_sleep 1
buffer_load_dword v{pv+1}, v{pv}, {WS}, 0 offen sc1
s_branch L_pollL
L_pollL_d:
""")
    for t in range(3): first_tile(t)
    a("s_barrier")
    for t in range(3, 5): first_tile(t)
    a.label("L_ld_fin")
    consts(4); consts(5); consts(6); consts(7)
    a("s_mov_b32 s18, 1")
    a(f"""
s_waitcnt lgkmcnt(0)
s_branch L_join
L_ld_idle0:
s_mov_b32 s18, 0
s_waitcnt vmcnt({2*D})
s_barrier
s_waitcnt vmcnt({D})
s_barrier
s_waitcnt vmcnt(0)
s_barrier
s_barrier
s_branch L_join
""")

    a.label("L_comp")
    V = Regs(VB, 147, "v")
    xa = V.alloc("xa", 2); xe = V.alloc("xe", 2); wr_ = V.alloc("wr"); er = V.alloc("er")
    sa = V.alloc("sa", 10)
    sn = V.alloc("sn", 5)
    acc0 = V.alloc("acc", 44, 4); xf0 = V.alloc("xf", 24, 4); wf0 = V.alloc("wf", 24, 4); ep = V.alloc("ep", 12, 4)
    acc = lambda i, j: acc0 + (i * 5 + j) * 4
    acce = acc0 + 40
    xf = lambda st, i: xf0 + (st * 3 + i) * 4
    wf = lambda j: wf0 + j * 4
    a(f"""
v_and_b32 v{t0}, 7, v{l16}
v_xor_b32 v{t0}, v{t0}, v{g}
v_lshlrev_b32 v{t0}, 4, v{t0}
v_lshl_add_u32 v{t0}, v{l16}, 7, v{t0}
s_lshl_b32 s3, s{s_w}, 12
v_add_u32 v{xa}, s3, v{t0}
v_xor_b32 v{xa+1}, 64, v{xa}
s_lshl_b32 s3, s{s_hg}, 11
v_add_u32 v{xe}, s3, v{t0}
v_xor_b32 v{xe+1}, 64, v{xe}
v_lshrrev_b32 v{t0}, 1, v{g}
v_mul_u32_u24 v{t0}, 2560, v{t0}
v_and_b32 v{t1}, 1, v{g}
v_lshl_add_u32 v{t0}, v{t1}, 7, v{t0}
v_lshl_add_u32 v{t0}, v{l16}, 3, v{t0}
v_add_u32 v{wr_}, 16384, v{t0}
v_lshrrev_b32 v{t0}, 2, v{l16}
v_lshl_add_u32 v{t0}, v{g}, 3, v{t0}
v_mul_u32_u24 v{t0}, 40, v{t0}
v_and_b32 v{t1}, 3, v{l16}
v_lshl_add_u32 v{t0}, v{t1}, 3, v{t0}
s_lshr_b32 s3, s{s_w}, 1
s_mul_i32 s3, s3, 3072
s_and_b32 s4, s{s_w}, 1
s_lshl_b32 s4, s4, 5
s_add_u32 s3, s3, s4
s_add_u32 s3, s3, {16384+10240}
v_add_u32 v{er}, s3, v{t0}
s_mov_b32 s{s_slot}, 0
s_mov_b32 s46, 0
""")
    def pi16(dst):
        a(f"""
v_and_b32 v{dst}, 3, v{l16}
v_bfe_u32 v{t3}, v{l16}, 2, 1
v_lshl_add_u32 v{dst}, v{t3}, 3, v{dst}
v_bfe_u32 v{t3}, v{l16}, 3, 1
v_lshl_add_u32 v{dst}, v{t3}, 2, v{dst}
""")
    a(f"s_mul_i32 s4, s{s_w}, {RI_B}\ns_add_u32 s4, s4, {STG}")
    pi16(t2)
    for j in range(5):
        a(f"""
v_add_u32 v{t0}, {4*j}, v{g}
v_mul_u32_u24 v{t1}, 205, v{t0}
v_lshrrev_b32 v{t1}, 10, v{t1}
v_mul_u32_u24 v{t3}, 5, v{t1}
v_sub_u32 v{t0}, v{t0}, v{t3}
v_mul_u32_u24 v{t1}, {4*RI_B}, v{t1}
v_lshrrev_b32 v{t3}, 1, v{t0}
v_lshl_add_u32 v{t3}, v{t3}, 5, v{t2}
v_lshlrev_b32 v{t3}, 4, v{t3}
v_and_b32 v{ep}, 1, v{t0}
v_lshl_add_u32 v{t3}, v{ep}, 3, v{t3}
v_lshlrev_b32 v{ep}, 3, v{t2}
v_add_u32 v{ep}, 1024, v{ep}
v_cmp_eq_u32 vcc, 4, v{t0}
v_mov_b32 v{ep+1}, 256
v_mov_b32 v{ep+2}, 128
v_cndmask_b32 v{t3}, v{t3}, v{ep}, vcc
v_cndmask_b32 v{ep+1}, v{ep+1}, v{ep+2}, vcc
v_add3_u32 v{sa+2*j}, v{t1}, v{t3}, s4
v_add_u32 v{sa+2*j+1}, v{sa+2*j}, v{ep+1}
""")
    a(f"""
v_lshrrev_b32 v{t2}, 1, v{g}
v_mul_u32_u24 v{t2}, 320, v{t2}
v_and_b32 v{t3}, 1, v{g}
v_lshl_add_u32 v{t2}, v{t3}, 3, v{t2}
""")
    for j in range(5):
        a(f"""
v_add_u32 v{t0}, {16*j}, v{l16}
v_mul_u32_u24 v{t1}, 205, v{t0}
v_lshrrev_b32 v{t1}, 12, v{t1}
v_mul_u32_u24 v{t3}, 20, v{t1}
v_sub_u32 v{t0}, v{t0}, v{t3}
v_mul_u32_u24 v{t1}, {4*RI_B}, v{t1}
v_lshl_add_u32 v{t0}, v{t0}, 4, v{t2}
v_add3_u32 v{sn+j}, v{t0}, v{t1}, s4
""")
    for r in range(44): a(f"v_mov_b32 v{acc0+r}, 0")
    JK = 147
    if PFM == "comp":
        a(f"""
v_lshrrev_b32 v{ep}, 2, v{lane}
v_and_b32 v{t3}, 3, v{lane}
v_lshlrev_b32 v{t3}, 6, v{t3}
v_mul_u32_u24 v{ep+1}, 1280, v{ep}
v_add_u32 v{ep+1}, v{ep+1}, v{t3}
v_min_u32 v{t3}, 156, v{t3}
s_mov_b32 s18, {2048*1280}
s_mov_b32 s19, 0x20000
s_mov_b32 s23, 0x20000
""")
        for rnd in range(2):
            nrow = 24 if rnd == 0 else 40
            a(f"""
s_add_u32 s3, s{s_br}, {rnd}
s_mul_i32 s4, s{s_hg}, 160
s_mul_i32 s5, s{s_c16}, 160
s_add_u32 s5, s5, 1280
s_cmp_eq_u32 s3, 1
s_cselect_b32 s7, s4, s5
s_cselect_b32 s4, s{s_mt}, s{s_mu}
s_lshl_b32 s4, s4, 7
s_lshl_b32 s5, s{s_hg}, 4
s_add_u32 s4, s4, s5
s_mul_i32 s24, s4, 1280
s_lshl_b32 s5, s{s_w}, 8
s_add_u32 s25, s24, s5
s_movk_i32 s4, 3840
s_mov_b32 s5, {640*3840}
s_cmp_gt_u32 s{s_br}, {rnd}
s_cselect_b32 s6, 1280, s4
s_cselect_b32 s22, {640*1280}, s5
s_cselect_b32 s20, s56, s50
s_cselect_b32 s21, s57, s51
s_cselect_b32 s16, s54, s48
s_cselect_b32 s17, s55, s49
s_lshl_b32 s5, s{s_w}, 2
s_bfe_u32 s4, s2, 0x20003
s_add_u32 s5, s5, s4
s_mul_i32 s5, s5, {nrow}
s_add_u32 s5, s5, {256 if rnd == 0 else 0}
s_mul_i32 s5, s5, s6
s_add_u32 s26, s5, s7
s_mul_i32 s5, s6, {nrow - 16}
s_add_u32 s27, s26, s5
v_mad_u32_u24 v{t0}, v{ep}, s6, v{t3}
""")
            if rnd == 0:
                a(f"""
buffer_load_dword v{JK}, v{ep+1}, s[16:19], s25 offen offset:256
buffer_load_dword v{JK}, v{t0}, s[20:23], s26 offen
buffer_load_dword v{JK}, v{t0}, s[20:23], s27 offen
""")
            else:
                a(f"""
buffer_load_dword v{JK}, v{ep+1}, s[16:19], s25 offen
buffer_load_dword v{JK}, v{t0}, s[20:23], s26 offen
s_lshl_b32 s5, s6, 4
s_add_u32 s26, s26, s5
buffer_load_dword v{JK}, v{t0}, s[20:23], s26 offen
buffer_load_dword v{JK}, v{t0}, s[20:23], s27 offen
buffer_load_dword v{JK}, v{ep+1}, s[16:19], s24 offen offset:1024
""")
    a.label("L_round")
    a(f"""
s_mov_b32 s{s_cnt}, 0
s_add_u32 s3, s{s_br}, s{s_rnd}
s_lshr_b32 s4, s{s_c16}, 3
s_add_u32 s4, s4, 1
s_mul_i32 s5, s{s_br}, 3
s_cmp_eq_u32 s3, 1
s_cselect_b32 s{s_type}, s5, s4
v_add_u32 v{xa}, s46, v{xa}
v_add_u32 v{xa+1}, s46, v{xa+1}
v_add_u32 v{wr_}, s46, v{wr_}
s_waitcnt lgkmcnt(0)
s_barrier
s_cmp_lg_u32 s3, 2
s_cbranch_scc1 L_rnd_noq
""")
    read_q()
    a.label("L_rnd_noq")
    ENTRY_HOOK = True
    def rx(st, i):
        if i < 2: return f"ds_read_b128 {vr(xf(st,i),4)}, v{xa+st} offset:{i*2048}"
        return f"ds_read_b128 {vr(xf(st,2),4)}, v{xe+st}"
    def rw(st, j, h):
        if j < 5: return f"ds_read_b64_tr_b16 {vr(wf(j)+2*h,2)}, v{wr_} offset:{st*5120 + h*1280 + j*256}"
        return f"ds_read_b64_tr_b16 {vr(wf(5)+2*h,2)}, v{er} offset:{(32*st+4*h)*40}"
    def mf_list(st, orient, ext):
        out = []
        for j in range(5):
            for i in range(2):
                A, B = (wf(j), xf(st, i)) if orient == 'T' else (xf(st, i), wf(j))
                out.append((f"v_mfma_f32_16x16x32_bf16 {vr(acc(i,j),4)}, {vr(A,4)}, {vr(B,4)}, {vr(acc(i,j),4)}", [("x", st, i), ("w", j)]))
        if ext:
            A, B = (wf(5), xf(st, 2)) if ext == 'T' else (xf(st, 2), wf(5))
            out.append((f"v_mfma_f32_16x16x32_bf16 {vr(acce,4)}, {vr(A,4)}, {vr(B,4)}, {vr(acce,4)}", [("x", st, 2), ("w", 5)]))
        return out
    def gaps(rs, ext, late):
        W = lambda j, h: (rw(rs, j, h), ("w", j))
        X = lambda i: (rx(rs, i), ("x", rs, i))
        if late:
            gp = {1: [W(0,0), W(0,1)], 2: [X(0)], 3: [W(1,0), X(1)], 4: [W(1,1)], 5: [W(2,0)], 6: [W(2,1)], 7: [W(3,0)], 8: [W(3,1)], 9: [W(4,0), W(4,1)]}
        else:
            gp = {0: [X(0)], 1: [W(0,0), W(0,1)], 2: [X(1)], 3: [W(1,0)], 4: [W(1,1)], 5: [W(2,0)], 6: [W(2,1)], 7: [W(3,0)], 8: [W(3,1)], 9: [W(4,0), W(4,1)]}
        if ext:
            gp[6] = gp[6] + [X(2)]
            gp[10] = [W(5,0), W(5,1)]
        return gp
    def body(orient, ext, pend):
        out = []
        for st, rs, late in ((1, 0, True), (0, 1, False)):
            gp = gaps(rs, ext, late)
            if not late: out.append("@MID@")
            for m, (ins, needs) in enumerate(mf_list(st, orient, ext)):
                k = max([i for i, tg in enumerate(pend) if tg in needs], default=-1)
                if k >= 0:
                    n = len(pend) - 1 - k
                    out.append(f"s_waitcnt lgkmcnt({min(n, 15)})")
                    pend[:] = pend[k+1:] if n <= 15 else pend[len(pend)-15:]
                out.append(ins)
                if late and m == 1:
                    out += ["@ADV@", "s_waitcnt lgkmcnt(0)", "s_barrier"]; pend[:] = []
                for (r, tg) in gp.get(m, []):
                    out.append(r); pend.append(tg)
        return out
    def entry_reads(ext):
        for i in range(3 if ext else 2): a(rx(0, i))
        for j in range(6 if ext else 5):
            a(rw(0, j, 0)); a(rw(0, j, 1))
    entry_reads(False)
    a(f"""
s_cmp_eq_u32 s{s_type}, 2
s_waitcnt lgkmcnt(0)
s_cbranch_scc1 L_g_N_mid
s_cmp_eq_u32 s{s_type}, 3
s_cbranch_scc0 L_g_T_mid
""")
    a(rx(0, 2)); a(rw(0, 5, 0)); a(rw(0, 5, 1))
    a(f"""
s_cmp_lt_u32 s{s_w}, 2
s_waitcnt lgkmcnt(0)
s_cbranch_scc1 L_g_ET_mid
s_branch L_g_EN_mid
""")
    def gemm(label, orient, ext):
        a.label(label)
        pend = []
        body(orient, ext, pend)
        p0 = list(pend)
        code = body(orient, ext, pend)
        assert pend == p0
        regs = [xa, xa + 1, wr_] + ([xe, xe + 1, er] if ext else [])
        if "nomfma" in XP: code = [l for l in code if not l.startswith("v_mfma")]
        if "noread" in XP: code = [l for l in code if not l.startswith("ds_read")]
        for l in code:
            if l == "@ADV@":
                for r in regs: a(f"v_add_u32 v{r}, s46, v{r}")
            elif l == "@MID@": a.label(label + "_mid")
            else: a(l)
        a(f"""
s_add_u32 s{s_slot}, s{s_slot}, 1
s_and_b32 s{s_slot}, s{s_slot}, 3
s_mov_b32 s46, {(-3*SL) & 0xffffffff:#x}
s_cselect_b32 s46, {SL}, s46
s_add_u32 s{s_cnt}, s{s_cnt}, 1
s_cmp_lt_u32 s{s_cnt}, {NST}
s_cbranch_scc1 {label}
""")
        for m, (ins, needs) in enumerate(mf_list(1, orient, ext)):
            k = max([i for i, tg in enumerate(pend) if tg in needs], default=-1)
            if k >= 0:
                a(f"s_waitcnt lgkmcnt({min(len(pend) - 1 - k, 15)})"); pend[:] = pend[k+1:]
            a(ins)
    def pack(dst, src, scale=None):
        if scale is not None:
            a(f"v_pk_mul_f32 {vr(src,2)}, {vr(src,2)}, s[{scale}:{scale+1}]")
            a(f"v_pk_mul_f32 {vr(src+2,2)}, {vr(src+2,2)}, s[{scale}:{scale+1}]")
        a(f"v_cvt_pk_bf16_f32 v{dst}, v{src}, v{src+1}")
        a(f"v_cvt_pk_bf16_f32 v{dst+1}, v{src+2}, v{src+3}")
    def extra():
        a(f"""
s_lshl_b32 s3, s{s_w}, 9
s_add_u32 s3, s3, {STGE}
v_lshlrev_b32 v{t0}, 3, v{lane}
v_add_u32 v{t0}, s3, v{t0}
s_nop 7
""")
        pack(ep + 8, acce)
        a(f"ds_write_b64 v{t0}, {vr(ep+8,2)}")
    gemm("L_g_ET", 'T', 'T')
    extra()
    a("s_branch L_epi")
    gemm("L_g_EN", 'T', 'N')
    extra()
    a("s_branch L_epi")
    def epi(orient):
        n = 0
        for j in range(5):
            for i in range(2):
                d = ep + 2 * (n % 4); n += 1
                pack(d, acc(i, j), 6 if orient == 'T' else None)
                if orient == 'T': a(f"ds_write_b64 v{sa+2*j+i}, {vr(d,2)}")
                else: a(f"ds_write_b64 v{sn+j}, {vr(d,2)} offset:{640*i}")
                for r in range(4): a(f"v_mov_b32 v{acc(i,j)+r}, 0")
    gemm("L_g_N", 'N', None)
    a("s_nop 3")
    epi('N')
    a("s_branch L_epid")
    gemm("L_g_T", 'T', None)
    a.label("L_epi")
    a(f"""
s_mov_b32 s6, {f32bits(QSCALE):#x}
s_cmp_eq_u32 s{s_type}, 1
s_cselect_b32 s6, 1.0, s6
s_mov_b32 s7, s6
s_nop 3
""")
    epi('T')
    a.label("L_epid")
    a(f"""
s_cmp_eq_u32 s{s_rnd}, 1
s_mov_b32 s{s_rnd}, 1
s_cbranch_scc0 L_round
s_mov_b32 s18, 0
s_waitcnt lgkmcnt(0)
s_barrier
""")
    a.label("L_join")
    stamp(a, 1)
    a(f"s_cmp_eq_u32 s{s_br}, 1\ns_cbranch_scc1 L_haveq")
    read_q()
    a.label("L_haveq")
    V = Regs(VB, 148, "v")
    vdma = V.alloc("vdma"); vA = V.alloc("vA", 2); vK = V.alloc("vK", 2); vt8 = V.alloc("vt8"); mx = V.alloc("mx", 2)
    K2 = [V.alloc("K2e", 2, 2), V.alloc("K2o", 2, 2)]
    K1 = [V.alloc("K1e", 4, 4), V.alloc("K1o", 4, 4)]
    V0 = [V.alloc("V0e", 4, 4), V.alloc("V0o", 4, 4)]
    V1 = [V.alloc("V1e", 4, 4), V.alloc("V1o", 4, 4)]
    P = V.alloc("P", 8, 4)
    S = [V.alloc("SA", 16, 4), V.alloc("SB", 16, 4)]
    O = [V.alloc("OA", 16, 4), V.alloc("OB", 16, 4)]
    assert vdma == VB
    s_ob = 19
    img_base()
    a(f"""
s_lshr_b32 s3, s{s_w}, 1
s_cmp_eq_u32 s{s_br}, 0
s_cselect_b32 s4, s3, 0
s_mul_i32 s5, s4, {HEAD_B}
s_add_u32 s{s_img}, s{s_img}, s5
s_mul_i32 s4, s4, {SLOT_B}
v_add_u32 v{vA}, s4, v{vdma}
v_add_u32 v{vA+1}, {4*TS_B}, v{vA}
v_and_b32 v{t1}, 31, v{lane}
v_lshlrev_b32 v{vt8}, 3, v{t1}
v_add_u32 v{t0}, 3072, v{vt8}
v_mov_b32 v{t1}, {TILE_B}
v_cndmask_b32 v{t0}, v{t0}, v{t1}, {MHI}
v_add_u32 v{vK}, s4, v{t0}
v_add_u32 v{vK+1}, {4*TS_B}, v{vK}
s_lshl_b32 s4, s{s_br}, 5
s_lshl_b32 s5, s{s_hg}, 2
s_add_u32 s4, s4, s5
s_add_u32 s4, s4, s3
s_lshl_b32 s4, s4, 6
s_lshl_b32 s5, s{s_mt}, 2
s_add_u32 s4, s4, s5
s_and_b32 s5, s{s_w}, 1
s_lshl_b32 s5, s5, 1
s_add_u32 s4, s4, s5
s_mul_i32 s{s_ob}, s4, {RI_B}
s_add_u32 s{s_ob}, s{s_ob}, {WS_O}
s_mov_b32 s{s_cnt}, 0
""")
    for r in range(16):
        a(f"v_mov_b32 v{O[0]+r}, 0\nv_mov_b32 v{O[1]+r}, 0")
    for r in range(4):
        a(f"v_mov_b32 v{P+4+r}, 0\nv_mov_b32 v{V1[1]+r}, 0")
    def zero_off():
        for x in range(2):
            a(f"v_cndmask_b32 v{Q2[x]}, v{Q2[x]}, 0, {MHI}")
            a(f"v_cndmask_b32 v{Q2[x]+1}, v{Q2[x]+1}, 0, {MHI}")
    zero_off()
    a(f"""
s_waitcnt vmcnt(8) lgkmcnt(0)
s_barrier
ds_read_b128 {vr(K1[0],4)}, v{vA}
ds_read_b64 {vr(K2[0],2)}, v{vK}
ds_read_b128 {vr(V0[0],4)}, v{vA} offset:1024
ds_read_b128 {vr(V1[0],4)}, v{vA} offset:2048
ds_read_b128 {vr(K1[1],4)}, v{vA} offset:{TS_B}
ds_read_b64 {vr(K2[1],2)}, v{vK} offset:{TS_B}
""")
    a("s_cmp_eq_u32 s18, 0\ns_cbranch_scc1 L_no56")
    first_tile(5); first_tile(6)
    a.label("L_no56")
    stamp(a, 3)
    def qk(x, kb):
        return [f"v_mfma_f32_32x32x16_bf16 {vr(S[x],16)}, {vr(K1[kb],4)}, {vr(Q1[x],4)}, 0",
                f"v_mfma_f32_32x32x8_bf16 {vr(S[x],16)}, {vr(K2[kb],2)}, {vr(Q2[x],2)}, {vr(S[x],16)}"]
    def rowmax(x, dst, first):
        s = S[x]
        if first:
            a(f"v_max3_f32 v{dst}, v{s}, v{s+1}, v{s+2}")
            a(f"v_max_f32 v{dst}, v{dst}, v{s+3}")
            rs = range(4, 16, 2)
        else:
            rs = range(0, 16, 2)
        for r in rs:
            a(f"v_max3_f32 v{dst}, v{dst}, v{s+r}, v{s+r+1}")
    def set_off(x, m):
        a(f"""
v_mov_b32 v{t0}, v{m}
s_nop 1
v_permlane32_swap_b32 v{m}, v{t0}
s_nop 1
v_max_f32 v{t0}, v{m}, v{t0}
v_sub_f32 v{t0}, 0, v{t0}
v_and_b32 v{t1}, 0xffff0000, v{t0}
v_sub_f32 v{t0}, v{t0}, v{t1}
v_and_b32 v{t2}, 0xffff0000, v{t0}
v_sub_f32 v{t0}, v{t0}, v{t2}
s_mov_b32 s3, 0x07060302
v_perm_b32 v{t1}, v{t2}, v{t1}, s3
v_lshrrev_b32 v{t0}, 16, v{t0}
v_cndmask_b32 v{Q2[x]}, v{Q2[x]}, v{t1}, {MHI}
v_cndmask_b32 v{Q2[x]+1}, v{Q2[x]+1}, v{t0}, {MHI}
""")
    a("s_waitcnt lgkmcnt(4)")
    for x in range(2):
        for l in qk(x, 0): a(l)
    a("s_nop 7\ns_nop 3")
    rowmax(0, mx, True)
    set_off(0, mx)
    a("s_nop 1")
    for l in qk(0, 0): a(l)
    rowmax(1, mx + 1, True)
    set_off(1, mx + 1)
    a("s_waitcnt vmcnt(8) lgkmcnt(0)")

    def unit(x, t):
        y = 1 - x
        s = S[x]
        e = t & 1; o = 1 - e
        E = [f"v_exp_f32 v{s+i}, v{s+i}" for i in range(16)]
        C = [f"v_cvt_pk_bf16_f32 v{P+i}, v{s+2*i}, v{s+2*i+1}" for i in range(8)]
        M1, M3 = qk(y, e if x == 0 else o)
        M2 = f"v_mfma_f32_32x32x16_bf16 {vr(O[y],16)}, {vr(V1[o if x == 0 else e],4)}, {vr(P+4,4)}, {vr(O[y],16)}"
        M4 = f"v_mfma_f32_32x32x16_bf16 {vr(O[x],16)}, {vr(V0[e],4)}, {vr(P,4)}, {vr(O[x],16)}"
        def addr(tt):
            tt %= 8
            return (vA + tt // 4, vK + tt // 4, (tt % 4) * TS_B)
        A1, _, o1 = addr(t + 1)
        A2, B2, o2 = addr(t + 2)
        if x == 0:
            f1 = [f"ds_read_b128 {vr(V0[o],4)}, v{A1} offset:{o1+1024}"]
            f2 = [f"ds_read_b128 {vr(V1[o],4)}, v{A1} offset:{o1+2048}"]
            f4 = [f"ds_read_b128 {vr(K1[e],4)}, v{A2} offset:{o2}"]
        else:
            f1 = [f"ds_read_b64 {vr(K2[e],2)}, v{B2} offset:{o2}"]
            f2 = ["s_barrier"] if t % 2 == 0 else (["s_waitcnt vmcnt(0)"] if t == 1 else [])
            f4 = ["s_waitcnt lgkmcnt(0)"]
        out = []
        out += [M1] + f1 + E[0:4]
        out += [M2] + f2 + [E[4], C[0], E[5], C[1], E[6], E[7]]
        out += [M3] + [E[8], C[2], E[9], C[3], E[10], E[11]]
        out += [M4] + f4 + [E[12], C[4], E[13], C[5], E[14], E[15], C[6], C[7]]
        return out
    stamp(a, 4)
    a(".p2align 6")
    a.label("L_attn_loop")
    for t in range(8):
        for x in range(2):
            for l in unit(x, t): a(l)
    a(f"""
s_add_u32 s{s_cnt}, s{s_cnt}, 1
s_cmp_lt_u32 s{s_cnt}, 8
s_cbranch_scc1 L_attn_loop
v_mfma_f32_32x32x16_bf16 {vr(O[1],16)}, {vr(V1[1],4)}, {vr(P+4,4)}, {vr(O[1],16)}
s_nop 7
s_nop 7
""")
    stamp(a, 5)
    def getl(x, dst):
        a(f"""
v_mov_b32 v{dst}, v{O[x]+8}
v_mov_b32 v{t0}, v{O[x]+8}
s_nop 1
v_permlane32_swap_b32 v{t0}, v{dst}
s_nop 1
""")
    a(f"s_mov_b32 s4, {f32bits(2.0**-20):#x}\ns_mov_b32 s5, {f32bits(2.0**60):#x}\ns_mov_b32 s3, 0x7f800000\ns_mov_b64 s[46:47], -1")
    for x in range(2):
        getl(x, mx + x)
        o = O[x]
        a(f"v_add_f32 v{t3}, abs(v{o}), abs(v{o+1})")
        for r in range(2, 8):
            a(f"v_add_f32 v{t3}, v{t3}, abs(v{o+r})")
        a(f"v_add_f32 v{t0}, abs(v{o+8}), abs(v{o+9})")
        a(f"v_add_f32 v{t0}, v{t0}, abs(v{o+10})")
        a(f"v_add_f32 v{t0}, v{t0}, abs(v{o+11})")
        a(f"v_cndmask_b32 v{t0}, v{t0}, 0, {MHI}")
        a(f"v_add_f32 v{t3}, v{t3}, v{t0}")
        a(f"""
v_cmp_gt_f32 vcc, s3, v{t3}
s_and_b64 s[46:47], s[46:47], vcc
v_cmp_le_f32 vcc, s4, v{mx+x}
s_and_b64 s[46:47], s[46:47], vcc
v_cmp_ge_f32 vcc, s5, v{mx+x}
s_and_b64 s[46:47], s[46:47], vcc
""")
    a(f"""
s_cmp_eq_u64 s[46:47], -1
s_cbranch_scc0 L_attn_slow
L_attn_fin:
v_lshlrev_b32 v{t1}, 3, v{lane}
v_lshrrev_b32 v{t2}, 5, v{lane}
v_mul_u32_u24 v{t2}, {RI_B - 256}, v{t2}
v_add_u32 v{t1}, v{t1}, v{t2}
""")
    for x in range(2):
        o = O[x]; d = S[x]
        a(f"v_rcp_f32 v{t0}, v{mx+x}\ns_nop 0")
        for r in range(12):
            a(f"v_mul_f32 v{o+r}, v{o+r}, v{t0}")
        a(f"""
v_cvt_pk_bf16_f32 v{d}, v{o}, v{o+1}
v_cvt_pk_bf16_f32 v{d+1}, v{o+2}, v{o+3}
v_cvt_pk_bf16_f32 v{d+2}, v{o+4}, v{o+5}
v_cvt_pk_bf16_f32 v{d+3}, v{o+6}, v{o+7}
v_cvt_pk_bf16_f32 v{P+2*x}, v{o+8}, v{o+9}
v_cvt_pk_bf16_f32 v{P+2*x+1}, v{o+10}, v{o+11}
v_permlane32_swap_b32 v{d}, v{d+2}
v_permlane32_swap_b32 v{d+1}, v{d+3}
s_nop 1
buffer_store_dwordx4 {vr(d,4)}, v{vdma}, {WS}, s{s_ob} offen offset:{RI_B*x} {SC1}
""")
    a(f"""
v_permlane32_swap_b32 v{P}, v{P+2}
v_permlane32_swap_b32 v{P+1}, v{P+3}
s_nop 1
buffer_store_dwordx2 {vr(P,2)}, v{t1}, {WS}, s{s_ob} offen offset:1024 {SC1}
""")
    V = Regs(VB + 1, 160, "v")
    om = V.alloc("om"); ot = V.alloc("ot"); wr = V.alloc("wr", 2); oa = V.alloc("oa")
    OF = V.alloc("OF", 80, 4); CA = V.alloc("CA", 20, 4); WF = V.alloc("WF", 40, 4)
    SO = SX
    pi16(t2)
    a(f"""
s_lshl_b32 s3, s{s_br}, 11
s_lshl_b32 s4, s{s_mt}, 2
s_add_u32 s3, s3, s4
s_lshr_b32 s4, s{s_w}, 1
s_add_u32 s3, s3, s4
s_mul_i32 s3, s3, {RI_B}
s_add_u32 s33, s3, {WS_O}
s_and_b32 s4, s{s_w}, 1
s_lshl_b32 s4, s4, 4
v_add_u32 v{t2}, s4, v{t2}
v_lshrrev_b32 v{t0}, 1, v{g}
s_mov_b32 s5, {RIH_B}
v_mul_lo_u32 v{t0}, v{t0}, s5
v_and_b32 v{t3}, 1, v{g}
v_lshlrev_b32 v{t3}, 9, v{t3}
v_lshl_add_u32 v{t3}, v{t2}, 4, v{t3}
v_add_u32 v{om}, v{t0}, v{t3}
s_mov_b32 s5, {2*RIH_B}
v_mul_lo_u32 v{t0}, v{g}, s5
v_lshl_add_u32 v{ot}, v{t2}, 3, v{t0}
v_lshrrev_b32 v{t0}, 1, v{g}
v_mul_u32_u24 v{t0}, 2560, v{t0}
v_and_b32 v{t3}, 1, v{g}
v_lshl_add_u32 v{t0}, v{t3}, 7, v{t0}
v_lshl_add_u32 v{wr+1}, v{l16}, 3, v{t0}
v_add_u32 v{wr}, {WO1}, v{wr+1}
s_lshl_b32 s3, s{s_mt}, 7
s_lshl_b32 s4, s{s_w}, 4
s_add_u32 s3, s3, s4
s_mul_i32 s3, s3, 2560
s_mul_i32 s4, s{s_br}, 1280
s_add_u32 s3, s3, s4
s_mul_i32 s4, s{s_hg}, 160
s_add_u32 s32, s3, s4
v_mul_u32_u24 v{oa}, 2560, v{l16}
v_lshl_add_u32 v{oa}, v{g}, 3, v{oa}
s_mov_b32 s{SO}, s64
s_mov_b32 s{SO+1}, s65
s_mov_b32 s{SO+2}, {2048*2560}
s_mov_b32 s{SO+3}, 0x20000
s_waitcnt vmcnt(0)
s_barrier
""")
    stamp(a, 6)
    def rwo(st):
        b = WF + (st % 2) * 20
        reg, base = (wr, st * 5120) if st < NWO1 else (wr + 1, (st - NWO1) * 5120)
        return [[f"ds_read_b64_tr_b16 {vr(b+4*j,2)}, v{reg} offset:{base + j*256}",
                 f"ds_read_b64_tr_b16 {vr(b+4*j+2,2)}, v{reg} offset:{base + 1280 + j*256}"] for j in range(5)]
    for r in range(20): a(f"v_mov_b32 v{CA+r}, 0")
    for gl in rwo(0):
        for l in gl: a(l)
    a("s_barrier")
    stamp2(a, 10)
    for s_ in range(16):
        a(f"buffer_load_dwordx4 {vr(OF+4*s_,4)}, v{om}, {WS}, s33 offen {SC1}")
        a(f"s_add_u32 s33, s33, {2*RIH_B}")
    a(f"s_sub_u32 s33, s33, {32*RIH_B - 1024}\ns_add_u32 s4, s33, {RIH_B}")
    for u in range(4):
        a(f"buffer_load_dwordx2 {vr(OF+64+4*u,2)}, v{ot}, {WS}, s33 offen {SC1}")
        a(f"buffer_load_dwordx2 {vr(OF+66+4*u,2)}, v{ot}, {WS}, s4 offen {SC1}")
        if u < 3: a(f"s_add_u32 s33, s33, {8*RIH_B}\ns_add_u32 s4, s4, {8*RIH_B}")
    for st in range(20):
        b = WF + (st % 2) * 20
        nl = 24 - (st + 1) if st < 16 else 24 - (16 + 2 * (st - 15))
        a(f"s_waitcnt vmcnt({nl}) lgkmcnt(0)")
        m = [f"v_mfma_f32_16x16x32_bf16 {vr(CA+4*j,4)}, {vr(b+4*j,4)}, {vr(OF+4*st,4)}, {vr(CA+4*j,4)}" for j in range(5)]
        for l in (merge(m, rwo(st + 1)) if st < 19 else m): a(l)
    a("s_nop 7\ns_nop 3")
    stamp2(a, 11)
    for j in range(5):
        d = WF + 2 * j
        a(f"v_cvt_pk_bf16_f32 v{d}, v{CA+4*j}, v{CA+4*j+1}")
        a(f"v_cvt_pk_bf16_f32 v{d+1}, v{CA+4*j+2}, v{CA+4*j+3}")
        a(f"buffer_store_dwordx2 {vr(d,2)}, v{oa}, {srd(SO)}, s32 offen offset:{j*32}")
    if STAMPS:
        a("s_waitcnt vmcnt(0)")
        stamp(a, 7)
    a("s_endpgm")

    a.label("L_aux")
    aux_start = len(a.lines)
    SA_, SB_ = 80, 84
    wm_, wt_ = VB + 6, VB + 11
    def wo_addr():
        a(f"s_mul_i32 s7, s{s_hg}, 160")
        for i in range(5):
            a(f"""
v_add_u32 v{t0}, {4*i}, v{g}
v_mul_u32_u24 v{t1}, 205, v{t0}
v_lshrrev_b32 v{t1}, 10, v{t1}
v_mul_u32_u24 v{t2}, 5, v{t1}
v_sub_u32 v{t0}, v{t0}, v{t2}
v_lshlrev_b32 v{t0}, 5, v{t0}
v_and_b32 v{t2}, 1, v{lane}
v_lshl_add_u32 v{t0}, v{t2}, 4, v{t0}
v_add_u32 v{t0}, s7, v{t0}
v_bfe_u32 v{t2}, v{lane}, 1, 2
v_bfe_u32 v{t3}, v{lane}, 3, 1
v_lshrrev_b32 v{wm_+i}, 1, v{t1}
v_mul_u32_u24 v{wm_+i}, 20, v{wm_+i}
v_lshl_add_u32 v{wm_+i}, v{t3}, 3, v{wm_+i}
v_and_b32 v{wt_+i}, 1, v{t1}
v_lshl_add_u32 v{wm_+i}, v{wt_+i}, 2, v{wm_+i}
v_add_u32 v{wm_+i}, v{wm_+i}, v{t2}
v_mul_u32_u24 v{wm_+i}, 1280, v{wm_+i}
v_add_u32 v{wm_+i}, v{wm_+i}, v{t0}
v_lshrrev_b32 v{t1}, 1, v{t1}
v_lshl_add_u32 v{t1}, v{t1}, 1, v{t3}
v_lshl_add_u32 v{wt_+i}, v{t1}, 1, v{wt_+i}
v_mul_u32_u24 v{wt_+i}, 20, v{wt_+i}
v_add3_u32 v{wt_+i}, v{wt_+i}, v{t2}, 16
v_mul_u32_u24 v{wt_+i}, 1280, v{wt_+i}
v_add_u32 v{wt_+i}, v{wt_+i}, v{t0}
""")
    def signal(cnt_sgpr):
        a(f"""
s_lshl_b32 s3, s{cnt_sgpr}, 8
s_add_u32 s3, s3, {WS_CNT}
v_mov_b32 v{t0}, 0
v_mov_b32 v{t1}, 1
s_mov_b64 exec, 1
buffer_atomic_add v{t1}, v{t0}, {WS}, s3 offen sc1
s_mov_b64 exec, -1
""")
    a(f"""
s_setprio 3
v_mov_b32 v{t0}, 0
v_mov_b32 v{t1}, 1
s_cmp_ge_u32 s2, {NCNT}
s_cbranch_scc1 L_aux_noinit
s_lshl_b32 s3, s2, 8
s_add_u32 s3, s3, {WS_CNT}
s_mov_b64 exec, 1
buffer_store_dword v{t0}, v{t0}, {WS}, s3 offen sc1
s_waitcnt vmcnt(0)
buffer_atomic_add v{t1}, v{t0}, {srd(SDBG)}, 0 offen sc1
s_mov_b64 exec, -1
L_aux_noinit:
""")
    ca = VB + 24; cd = VB + 48
    for i in range(5):
        a(f"""
v_add_u32 v{t0}, {64*i}, v{lane}
v_mul_u32_u24 v{t1}, 3277, v{t0}
v_lshrrev_b32 v{t1}, 18, v{t1}
v_mul_u32_u24 v{t2}, 80, v{t1}
v_sub_u32 v{t2}, v{t0}, v{t2}
v_mul_u32_u24 v{t1}, {TILE_B}, v{t1}
v_lshl_add_u32 v{ca+i}, v{t2}, 4, v{t1}
v_cmp_le_u32 vcc, 64, v{t2}
v_mov_b32 v{t3}, 2048
v_mul_u32_u24 v{t1}, 205, v{t2}
v_cndmask_b32 v{t3}, 0, v{t3}, vcc
v_lshrrev_b32 v{t1}, 12, v{t1}
v_mul_u32_u24 v{t1}, 192, v{t1}
v_add_u32 v{t1}, 1024, v{t1}
s_cmp_ge_u32 s{s_c16}, 8
s_cselect_b64 vcc, -1, 0
v_cndmask_b32 v{t3}, v{t3}, v{t1}, vcc
v_add_u32 v{ca+i}, v{ca+i}, v{t3}
""")
    wo_addr()
    a(f"""
s_and_b32 s3, s{s_c16}, 7
s_lshl_b32 s3, s3, 8
s_lshl_b32 s4, s{s_mu}, 2
s_add_u32 s3, s3, s4
s_mul_i32 s26, s3, {TILE_B}
s_add_u32 s26, s26, {WS_KV}
v_lshlrev_b32 v{vdma}, 4, v{lane}
v_add_u32 v{VB+3}, {STG}, v{vdma}
v_mov_b32 v{VB+31}, 0
""")
    pfx, pfw = VB + 33, VB + 34
    PX, PW = [92, 16], [96, 20]
    s_px, s_pw, s_pws = [24, 25], [88, 89], [90, 91]
    if PFM == "aux":
        for rnd in range(2):
            a(f"""
s_add_u32 s3, s{s_br}, {rnd}
s_mul_i32 s4, s{s_hg}, 160
s_mul_i32 s5, s{s_c16}, 160
s_add_u32 s5, s5, 1280
s_cmp_eq_u32 s3, 1
s_cselect_b32 s7, s4, s5
s_cselect_b32 s4, s{s_mt}, s{s_mu}
s_lshl_b32 s4, s4, 7
s_lshl_b32 s5, s{s_hg}, 4
s_add_u32 s4, s4, s5
s_mul_i32 s{s_px[rnd]}, s4, 1280
s_movk_i32 s4, 3840
s_mov_b32 s5, {640*3840}
s_cmp_gt_u32 s{s_br}, {rnd}
s_cselect_b32 s6, 1280, s4
s_cselect_b32 s{PW[rnd]+2}, {640*1280}, s5
s_cselect_b32 s{PW[rnd]}, s56, s50
s_cselect_b32 s{PW[rnd]+1}, s57, s51
s_cselect_b32 s{PX[rnd]}, s54, s48
s_cselect_b32 s{PX[rnd]+1}, s55, s49
s_mov_b32 s{PX[rnd]+2}, {2048*1280}
s_mov_b32 s{PX[rnd]+3}, 0x20000
s_mov_b32 s{PW[rnd]+3}, 0x20000
s_bfe_u32 s5, s2, 0x20003
s_lshl_b32 s5, s5, 4
s_add_u32 s5, s5, {256 if rnd == 0 else 0}
s_mul_i32 s5, s5, s6
s_add_u32 s{s_pw[rnd]}, s5, s7
s_lshl_b32 s{s_pws[rnd]}, s6, 6
v_lshrrev_b32 v{pfw+rnd}, 2, v{lane}
v_mul_lo_u32 v{pfw+rnd}, v{pfw+rnd}, s6
v_and_b32 v{t3}, 3, v{lane}
v_lshlrev_b32 v{t3}, 6, v{t3}
v_min_u32 v{t2}, 156, v{t3}
v_add_u32 v{pfw+rnd}, v{pfw+rnd}, v{t2}
""")
        a(f"""
v_lshrrev_b32 v{pfx}, 2, v{lane}
v_mul_u32_u24 v{pfx}, 1280, v{pfx}
v_add_u32 v{pfx}, v{pfx}, v{t3}
""")
    auxq = []
    def pf(stage):
        if PFM != "aux" or stage >= 20: return
        r, st = divmod(stage, 10)
        if st % 2 == 0:
            a(f"buffer_load_dword v{VB+4}, v{pfx}, {srd(PX[r])}, s{s_px[r]} offen offset:{128*st}"); auxq.append("p")
        a(f"buffer_load_dword v{VB+5}, v{pfw+r}, {srd(PW[r])}, s{s_pw[r]} offen"); auxq.append("p")
        a(f"s_add_u32 s{s_pw[r]}, s{s_pw[r]}, s{s_pws[r]}")
    a(f"""
s_mov_b32 s80, s58
s_mov_b32 s81, s59
s_mov_b32 s82, {640*40}
s_mov_b32 s83, 0x20000
s_mov_b32 s84, s60
s_mov_b32 s85, s61
s_mov_b32 s86, {640*40}
s_mov_b32 s87, 0x20000
""")
    def edma(st):
        a(f"s_cmp_eq_u32 s{s_br}, 0\ns_cbranch_scc1 L_e{st}\ns_movk_i32 s5, {2560*st}")
        for m, sr_ in enumerate((80, 84)):
            a(f"s_mov_b32 m0, {(st%4)*SL + 26624 + m*3072}\ns_nop 0")
            for n in range(3):
                a(f"buffer_load_dwordx4 v{vdma}, {srd(sr_)}, s5 offen offset:{n*1024} lds")
        a(f"L_e{st}:")
        auxq.extend([("e", st)] * 6)
    for st in range(4): edma(st)
    a(f"""
s_lshr_b32 s5, s2, 3
s_lshl_b32 s5, s5, 10
v_lshlrev_b32 v{t0}, 6, v{l16}
s_mov_b64 exec, 0xffff
buffer_load_dword v{VB+4}, v{t0}, s[80:83], s5 offen
buffer_load_dword v{VB+5}, v{t0}, s[84:87], s5 offen
s_mov_b64 exec, -1
""")
    auxq.extend(["p"] * 2)
    PRE = int(os.environ.get("PRE", "4"))
    for st in range(4, PRE): pf(st)
    nxt = [max(PRE, 4)]
    for k in range(0, 11):
        if k < 10:
            last = max(i for i, tg in enumerate(auxq) if tg == ("e", k))
            a(f"s_waitcnt vmcnt({min(len(auxq) - 1 - last, 63)})")
        a("s_barrier")
        if 1 <= k <= 6: edma(k + 3)
        if k == 5:
            a(f"buffer_load_dword v{VB+32}, v{VB+31}, {srd(SDBG)}, 0 offen sc1"); auxq.append("d")
        n = 0
        while nxt[0] <= k + LEAD and nxt[0] < 20 and n < PFN:
            pf(nxt[0]); nxt[0] += 1; n += 1
        if k == 9:
            a(f"""
s_mov_b32 s4, 0
s_waitcnt vmcnt({auxq[auxq.index("d"):].count("p")})
L_aux_chk:
v_cmp_ne_u32 vcc, {NCNT}, v{VB+32}
s_add_u32 s4, s4, 1
s_cmp_gt_u32 s4, {SPIN_MAX}
s_cbranch_scc1 L_aux_chkd
s_cbranch_vccz L_aux_chkd
s_sleep 4
buffer_load_dword v{VB+32}, v{VB+31}, {srd(SDBG)}, 0 offen sc1
s_waitcnt vmcnt(0)
s_branch L_aux_chk
L_aux_chkd:
""")
    def copy_unit(lo, hi):
        for i in range(lo, hi):
            a(f"ds_read_b128 {vr(cd+4*i,4)}, v{VB+3} offset:{1024*i}")
        for i in range(lo, hi):
            a(f"s_waitcnt lgkmcnt({hi-1-i})")
            if i % 5 == 0: a(f"s_add_u32 s6, s26, {(i//5)*HEAD_B}")
            a(f"buffer_store_dwordx4 {vr(cd+4*i,4)}, v{ca+i%5}, {WS}, s6 offen {SC1}")
    a(f"s_cmp_eq_u32 s{s_br}, 0\ns_cbranch_scc0 L_aux_ex")
    copy_unit(0, 10)
    a("s_barrier")
    copy_unit(10, 20)
    a(f"s_barrier\ns_mov_b32 s4, s{s_c16}\ns_branch L_aux_sig0")
    a.label("L_aux_ex")
    pi16(t2)
    a(f"""
v_lshlrev_b32 v{t0}, 3, v{lane}
v_add_u32 v{t0}, {STGE}, v{t0}
ds_read_b64 {vr(cd,2)}, v{t0}
ds_read_b64 {vr(cd+2,2)}, v{t0} offset:512
ds_read_b64 {vr(cd+4,2)}, v{t0} offset:1024
ds_read_b64 {vr(cd+6,2)}, v{t0} offset:1536
s_lshl_b32 s3, s{s_mt}, 2
s_lshr_b32 s4, s{s_hg}, 1
s_add_u32 s3, s3, s4
s_mul_i32 s6, s3, {TILE_B}
s_add_u32 s6, s6, {WS_KV + 32*HEAD_B}
s_and_b32 s4, s{s_hg}, 1
s_lshl_b32 s5, s4, 4
v_add_u32 v{t2}, s5, v{t2}
v_lshrrev_b32 v{t3}, 1, v{g}
v_lshl_add_u32 v{t3}, v{t3}, 5, v{t2}
v_lshlrev_b32 v{t3}, 4, v{t3}
v_and_b32 v{t0}, 1, v{g}
v_lshl_add_u32 v{cd+8}, v{t0}, 3, v{t3}
v_lshlrev_b32 v{cd+9}, 3, v{t2}
v_lshrrev_b32 v{t3}, 1, v{g}
v_lshlrev_b32 v{t3}, 9, v{t3}
v_lshl_add_u32 v{t3}, v{t0}, 3, v{t3}
s_lshl_b32 s4, s4, 10
v_add_u32 v{t3}, s4, v{t3}
v_lshl_add_u32 v{cd+10}, v{l16}, 4, v{t3}
s_waitcnt lgkmcnt(0)
buffer_store_dwordx2 {vr(cd,2)}, v{cd+8}, {WS}, s6 offen {SC1}
buffer_store_dwordx2 {vr(cd+4,2)}, v{cd+10}, {WS}, s6 offen offset:1024 {SC1}
s_mov_b64 exec, 0xffff
buffer_store_dwordx2 {vr(cd+2,2)}, v{cd+9}, {WS}, s6 offen offset:3072 {SC1}
s_mov_b32 exec_lo, 0x000f000f
s_mov_b32 exec_hi, 0x000f000f
buffer_store_dwordx2 {vr(cd+6,2)}, v{cd+10}, {WS}, s6 offen offset:{1024+256} {SC1}
s_mov_b64 exec, -1
s_barrier
s_barrier
s_lshr_b32 s4, s{s_mt}, 1
s_add_u32 s4, s4, {C_EX}
L_aux_sig0:
s_mov_b32 s27, s4
s_barrier
""")
    a(f"""
s_cmp_eq_u32 s{s_br}, 0
s_cselect_b32 s{SB_}, s52, s62
s_cselect_b32 s{SB_+1}, s53, s63
s_mov_b32 s{SB_+2}, {640*1280}
s_mov_b32 s{SB_+3}, 0x20000
s_barrier
s_waitcnt vmcnt(0)
""")
    signal(27)
    img_base()
    a(f"""
s_add_u32 s{s_gd}, s{s_img}, {7*TILE_B}
""")
    a("""
s_barrier
s_barrier
s_barrier
s_barrier
s_barrier
s_barrier
""")
    s_wl, s_wg, s_sl = 25, 24, 27
    a(f"""
s_mov_b32 s{s_wl}, {WO1}
s_mov_b32 s{s_wg}, 0
s_mov_b32 s{s_sl}, {7*TS_B}
s_mov_b32 s{s_cnt}, 0
s_barrier
s_cmp_eq_u32 s{s_br}, 0
s_cbranch_scc0 L_pB
""")
    def wo_step(regs, rows):
        for i in range(5):
            a(f"s_add_u32 m0, s{s_wl}, {i*1024}\ns_nop 0")
            a(f"buffer_load_dwordx4 v{regs+i}, {srd(SB_)}, s{s_wg} offen lds")
        a(f"s_add_u32 s{s_wl}, s{s_wl}, 5120\ns_add_u32 s{s_wg}, s{s_wg}, {rows*1280}")
    def one_tile(nh):
        for h in range(nh):
            if h: a(f"s_add_u32 s4, s{s_gd}, {h*HEAD_B}")
            for l in dma_tile(f"s_add_u32 m0, s{s_sl}, {h*SLOT_B}", 4 if h else s_gd): a(l)
        a(f"""
s_add_u32 s{s_gd}, s{s_gd}, {TILE_B}
s_add_u32 s{s_sl}, s{s_sl}, {TS_B}
s_cmp_eq_u32 s{s_sl}, {8*TS_B}
s_cselect_b32 s{s_sl}, 0, s{s_sl}
""")
    def producer(lab, nh):
        B_ = 8 * nh
        a(f"""
s_barrier
""")
        one_tile(nh); one_tile(nh)
        if nh == 1:
            copy_unit(0, 10); copy_unit(10, 20)
        else:
            a(f"""
v_and_b32 v{t2}, 1, v{lane}
v_lshlrev_b32 v{t2}, 3, v{t2}
v_add_u32 v{t2}, s{s_hg}, v{t2}
v_add_u32 v{t2}, 16, v{t2}
v_lshlrev_b32 v{t2}, 8, v{t2}
v_add_u32 v{t2}, {WS_CNT}, v{t2}
""")
        a(f"s_mov_b32 s{s_cnt}, 1")
        a.label(lab + "_w")
        a(f"s_waitcnt vmcnt({B_})\ns_barrier")
        a(f"s_cmp_lg_u32 s{s_cnt}, {2 if nh == 1 else 11}\ns_cbranch_scc1 {lab}_h")
        if nh == 1:
            a(f"s_add_u32 s4, s{s_c16}, 16")
            signal(4)
        else:
            poll(lab + "_late", 3, 8)
        a.label(lab + "_h")
        wo_step(wm_, 40)
        one_tile(nh); one_tile(nh)
        a(f"""
s_add_u32 s{s_cnt}, s{s_cnt}, 1
s_cmp_lt_u32 s{s_cnt}, {NWO1+1}
s_cbranch_scc1 {lab}_w
""")
        a.label(lab + "_n")
        a(f"s_waitcnt vmcnt({B_})\ns_barrier")
        one_tile(nh); one_tile(nh)
        a(f"""
s_add_u32 s{s_cnt}, s{s_cnt}, 1
s_cmp_lt_u32 s{s_cnt}, 28
s_cbranch_scc1 {lab}_n
s_waitcnt vmcnt({B_})
s_barrier
""")
        one_tile(nh)
        a(f"""
s_waitcnt vmcnt({B_//2})
s_barrier
s_waitcnt vmcnt(0)
s_barrier
""")
    producer("L_pA", 4)
    a("s_branch L_pend")
    a.label("L_pB")
    producer("L_pBq", 1)
    a.label("L_pend")
    a(f"s_mov_b32 s{s_wl}, 0")
    for _ in range(16 - NWO1): wo_step(wm_, 40)
    a(f"s_barrier\ns_mov_b32 s{s_wg}, 0")
    for _ in range(4): wo_step(wt_, 160)
    a(f"""
s_lshl_b32 s4, s{s_br}, 4
s_add_u32 s4, s4, s{s_mt}
s_add_u32 s4, s4, {C_O}
s_lshl_b32 s5, s4, 8
s_add_u32 s5, s5, {WS_CNT}
v_mov_b32 v{t2}, s5
s_barrier
""")
    signal(4)
    poll("L_poll2", 1, 8)
    a("s_barrier")
    if STAMPS:
        new = []
        stop = False
        for l in a.lines[aux_start:]:
            new.append(l)
            if l.strip().startswith("L_pA_w") or "L_pB" in l: stop = True
            if l.strip() == "s_barrier" and not stop:
                new += ["    s_memrealtime s[76:77]", "    s_waitcnt lgkmcnt(0)", "    s_mov_b32 m0, s100", "    s_nop 1", "    v_writelane_b32 v166, s76, m0", "    s_add_u32 s100, s100, 1"]
        a.lines[aux_start:] = ["    s_mov_b32 s100, 0", "    v_mov_b32 v166, 0"] + new
        a(f"""
s_getreg_b32 s76, hwreg(HW_REG_XCC_ID)
v_writelane_b32 v166, s76, 40
s_getreg_b32 s76, hwreg(HW_REG_HW_ID)
v_writelane_b32 v166, s76, 41
v_lshlrev_b32 v167, 2, v{lane}
s_lshl_b32 s71, s70, 1
buffer_store_dword v166, v167, s[72:75], s71 offen
""")
    a("s_endpgm")

    a.label("L_attn_slow")
    zero_off()
    a(f"""
v_and_b32 v{t3}, 31, v{lane}
v_cmp_eq_u32 s[46:47], 20, v{t3}
v_mov_b32 v{vA}, 0x3f803f80
v_mov_b32 v{vK}, 0x3f80
v_mov_b32 v{mx}, 0xff800000
v_mov_b32 v{mx+1}, 0xff800000
s_mov_b32 s{s_gd}, s{s_img}
s_mov_b32 s{s_cnt}, 0
L_attn_slow1:
buffer_load_dwordx4 {vr(K1[0],4)}, v{vdma}, {WS}, s{s_gd} offen {SC1}
buffer_load_dwordx2 {vr(K2[0],2)}, v{vt8}, {WS}, s{s_gd} offen offset:3072 {SC1}
s_waitcnt vmcnt(0)
v_cndmask_b32 v{K2[0]}, v{K2[0]}, v{vA}, {MHI}
v_cndmask_b32 v{K2[0]+1}, v{K2[0]+1}, v{vK}, {MHI}
s_nop 1
""")
    for x in range(2):
        for l in qk(x, 0): a(l)
    a("s_nop 7\ns_nop 7")
    for x in range(2):
        rowmax(x, mx + x, False)
    a(f"""
s_add_u32 s{s_gd}, s{s_gd}, {TILE_B}
s_add_u32 s{s_cnt}, s{s_cnt}, 1
s_cmp_lt_u32 s{s_cnt}, 64
s_cbranch_scc1 L_attn_slow1
""")
    for x in range(2):
        set_off(x, mx + x)
    for r in range(16):
        a(f"v_mov_b32 v{O[0]+r}, 0\nv_mov_b32 v{O[1]+r}, 0")
    a(f"""
s_mov_b32 s{s_gd}, s{s_img}
s_mov_b32 s{s_cnt}, 0
L_attn_slow2:
buffer_load_dwordx4 {vr(K1[0],4)}, v{vdma}, {WS}, s{s_gd} offen {SC1}
buffer_load_dwordx2 {vr(K2[0],2)}, v{vt8}, {WS}, s{s_gd} offen offset:3072 {SC1}
buffer_load_dwordx4 {vr(V0[0],4)}, v{vdma}, {WS}, s{s_gd} offen offset:1024 {SC1}
buffer_load_dwordx4 {vr(V1[0],4)}, v{vdma}, {WS}, s{s_gd} offen offset:2048 {SC1}
s_waitcnt vmcnt(0)
v_cndmask_b32 v{K2[0]}, v{K2[0]}, v{vA}, {MHI}
v_cndmask_b32 v{K2[0]+1}, v{K2[0]+1}, v{vK}, {MHI}
""")
    for r in range(4):
        a(f"v_cndmask_b32 v{V0[0]+r}, v{V0[0]+r}, v{vA}, s[46:47]")
        a(f"v_cndmask_b32 v{V1[0]+r}, v{V1[0]+r}, v{vA}, s[46:47]")
    a("s_nop 1")
    for x in range(2):
        for l in qk(x, 0): a(l)
    a("s_nop 7\ns_nop 7")
    for x in range(2):
        s_ = S[x]
        for i in range(16): a(f"v_exp_f32 v{s_+i}, v{s_+i}")
        a("s_nop 0")
        for i in range(8): a(f"v_cvt_pk_bf16_f32 v{P+i}, v{s_+2*i}, v{s_+2*i+1}")
        a("s_nop 1")
        a(f"v_mfma_f32_32x32x16_bf16 {vr(O[x],16)}, {vr(V0[0],4)}, {vr(P,4)}, {vr(O[x],16)}")
        a(f"v_mfma_f32_32x32x16_bf16 {vr(O[x],16)}, {vr(V1[0],4)}, {vr(P+4,4)}, {vr(O[x],16)}")
    a(f"""
s_add_u32 s{s_gd}, s{s_gd}, {TILE_B}
s_add_u32 s{s_cnt}, s{s_cnt}, 1
s_cmp_lt_u32 s{s_cnt}, 64
s_cbranch_scc1 L_attn_slow2
s_nop 7
s_nop 7
""")
    for x in range(2):
        getl(x, mx + x)
    a("s_branch L_attn_fin")
    a.label("L_end")
    a("s_endpgm")
    nv = 168 if STAMPS else 160
    a(f""".section .rodata,"a"
.p2align 6
.amdhsa_kernel {NAME}
  .amdhsa_next_free_vgpr {nv}
  .amdhsa_next_free_sgpr 102
  .amdhsa_accum_offset {nv}
  .amdhsa_group_segment_fixed_size 0
  .amdhsa_kernarg_size 88
  .amdhsa_user_sgpr_count 2
  .amdhsa_user_sgpr_kernarg_segment_ptr 1
  .amdhsa_system_sgpr_workgroup_id_x 1
.end_amdhsa_kernel
""")

if __name__ == "__main__":
    import sys
    REF = open('concat_heads__softmax_full_mha__grouped_kv_mqa__prompt.s.ref').read()
    hdr = [l for l in REF.split("\n") if l.startswith(";") and "@launch" not in l]
    a = Asm()
    a('.amdgcn_target "amdgcn-amd-amdhsa--gfx950"\n.text')
    gen(a)
    out = "\n".join(hdr) + f"\n; @launch grid=(256,1,1) block=(576,1,1) lds={LDS_BYTES}\n" + a.text()
    path = sys.argv[1] if len(sys.argv) > 1 else 'concat_heads__softmax_full_mha__grouped_kv_mqa__prompt.s'
    open(path, 'w').write(out)
    open('launches_f.txt', 'w').write(f"{NAME} 256 1 1 576 1 1 {LDS_BYTES}\n")
```

```python
from asmlib import *
import struct, math, os

NAME = "concat_heads__softmax_full_mha__grouped_kv_mqa__prompt_kernel"
RI_B = 1280
RIH_B = 64 * RI_B
WS_O = 0x500000
WS_KV = 0xA00000
TILE_B = 3328
HEAD_B = 64 * TILE_B
WS_CNT = 0x10C0000
WS_SIZE = 268435456
C_KV, C_EX, C_O, NCNT = 0, 32, 40, 72
QSCALE = math.log2(math.e) / math.sqrt(20.0)
def f32bits(x): return struct.unpack("<I", struct.pack("<f", x))[0]
NST = 10
SL = 32768
STG = 4 * SL
SLOT_B = TILE_B + 16
TS_B = 4 * SLOT_B
WO1 = 8 * TS_B
STGE = STG + 16 * RI_B
NWO1 = 11
LDS_BYTES = 163840
assert WO1 + NWO1 * 5120 <= LDS_BYTES
SPIN_MAX = 60000
SC1 = "sc1"
XP = os.environ.get("EXPT", "")
APOL = os.environ.get("APOL", "")
PPOL = os.environ.get("PPOL", "")
ROT = int(os.environ.get("ROT", "1"))
CROT = int(os.environ.get("CROT", "1"))
PFM = os.environ.get("PFM", "none")
LEAD = int(os.environ.get("LEAD", "20"))
PFN = int(os.environ.get("PFN", "4"))

def stamp2(a, idx):
    if not STAMPS: return
    b = SV[0]
    a(f"""
s_memrealtime s[76:77]
s_add_u32 s71, s70, 0x80000
s_waitcnt lgkmcnt(0)
v_mov_b32 v{b}, s76
v_mov_b32 v{b+1}, s77
buffer_store_dwordx2 v[{b}:{b+1}], v{b+4}, s[72:75], s71 offen offset:{idx*8}
""")

DIAG = os.environ.get("DIAG") == "1"
def diag(a, idx, vreg):
    if not DIAG: return
    a(f"""
s_or_b32 s101, s2, 0xdead0000
v_mov_b32 v158, s101
v_mov_b32 v159, {WS_CNT + 0x8000 + idx*1024}
v_mbcnt_lo_u32_b32 v157, -1, 0
v_mbcnt_hi_u32_b32 v157, -1, v157
v_lshl_add_u32 v159, v157, 3, v159
buffer_store_dword v158, v159, s[8:11], 0 offen
buffer_store_dword v{vreg}, v159, s[8:11], 0 offen offset:4
""")

def gen(a):
    a(f".globl {NAME}\n.p2align 8\n.type {NAME},@function")
    a.label(NAME)
    srd = lambda r: f"s[{r}:{r+3}]"
    WS = "s[8:11]"
    s_w, s_br, s_hg, s_mt, s_c16, s_mu = 12, 13, 14, 15, 32, 33
    s_cnt, s_slot, s_rnd, s_type = 34, 35, 36, 37
    MV, MK, MHI = "s[40:41]", "s[42:43]", "s[44:45]"
    SX, SDBG = 16, 28
    lane, l16, g, t0, t1, t2, t3 = 1, 2, 3, 4, 5, 6, 7
    VB = 8
    Q1 = [148, 152]; Q2 = [156, 158]

    a(f"""
s_cmp_ge_u32 s2, 256
s_cbranch_scc1 L_end
s_load_dwordx16 s[48:63], s[0:1], 0
s_load_dwordx4 s[64:67], s[0:1], 64
s_load_dwordx2 s[68:69], s[0:1], 80
v_lshrrev_b32 v{t0}, 6, v0
v_and_b32 v{lane}, 63, v0
v_readfirstlane_b32 s{s_w}, v{t0}
v_and_b32 v{l16}, 15, v0
v_bfe_u32 v{g}, v0, 4, 2
s_bfe_u32 s{s_br}, s2, 0x10002
s_and_b32 s3, s2, 3
s_bfe_u32 s6, s2, 0x20003
s_lshr_b32 s{s_hg}, s2, 5
s_lshl_b32 s5, s3, 2
s_add_u32 s{s_mt}, s5, s6
s_lshr_b32 s5, s3, 1
s_lshl_b32 s5, s5, 3
s_add_u32 s{s_c16}, s5, s{s_hg}
s_and_b32 s5, s3, 1
s_lshl_b32 s5, s5, 2
s_add_u32 s5, s5, s6
s_lshl_b32 s7, s{s_br}, 3
s_add_u32 s{s_mu}, s5, s7
s_mul_i32 s94, s6, 3
s_add_u32 s94, s94, s{s_hg}
s_cmp_ge_u32 s94, 10
s_cselect_b32 s5, 10, 0
s_sub_u32 s94, s94, s5
s_mul_i32 s94, s94, {ROT}
s_mov_b32 s10, {WS_SIZE}
s_mov_b32 s11, 0x20000
s_mov_b32 s{SDBG+2}, 256
s_mov_b32 s{SDBG+3}, 0x20000
s_mov_b32 s40, 0x000fffff
s_mov_b32 s41, 0x000fffff
s_mov_b32 s42, 0xffff
s_mov_b32 s43, 0
s_mov_b32 s44, 0
s_mov_b32 s45, -1
s_mov_b32 s{s_rnd}, 0
s_waitcnt lgkmcnt(0)
s_mov_b32 s8, s68
s_mov_b32 s9, s69
s_mov_b32 s{SDBG}, s66
s_mov_b32 s{SDBG+1}, s67
""")
    stamp_setup(a, 0, s_w, 68, 160)
    stamp(a, 0)
    a(f"""
s_cmp_lt_u32 s{s_w}, 4
s_cbranch_scc1 L_comp
s_cmp_eq_u32 s{s_w}, 8
s_cbranch_scc1 L_aux
""")
    xd = VB; gd = VB + 4; grow = VB + 8; gcol = VB + 12
    SW = 20
    s_xs, s_gs, s_gst, s_lx, s_lg, s_ldw = 88, 89, 90, 38, 39, 46
    s_lw = 47
    a(f"""
s_sub_u32 s{s_lw}, s{s_w}, 4
v_lshrrev_b32 v{t0}, 3, v{lane}
v_and_b32 v{t1}, 7, v{lane}
v_xor_b32 v{t2}, v{t1}, v{t0}
v_lshlrev_b32 v{t2}, 4, v{t2}
s_lshl_b32 s3, s{s_lw}, 5
v_add_u32 v{t3}, s3, v{t0}
v_mul_u32_u24 v{t3}, 1280, v{t3}
v_add_u32 v{xd}, v{t3}, v{t2}
v_add_u32 v{xd+1}, 10240, v{xd}
v_add_u32 v{xd+2}, 20480, v{xd}
v_add_u32 v{xd+3}, 30720, v{xd}
s_lshl_b32 s{s_lx}, s{s_lw}, 12
s_mul_i32 s4, s{s_lw}, 3
s_lshl_b32 s5, s{s_lw}, 1
s_add_u32 s5, s5, 2
s_min_u32 s91, s4, s5
s_lshl_b32 s{s_lg}, s91, 10
s_add_u32 s{s_lg}, s{s_lg}, 16384
s_mov_b32 s{SW+3}, 0x20000
s_mov_b32 s{SX+2}, {2048*1280}
s_mov_b32 s{SX+3}, 0x20000
s_mov_b32 s{s_slot}, 0
""")
    def ld_x_round():
        a(f"""
s_add_u32 s3, s{s_br}, s{s_rnd}
s_cmp_eq_u32 s3, 1
s_cselect_b32 s4, s{s_mt}, s{s_mu}
s_mul_i32 s{s_xs}, s4, {128*1280}
s_lshl_b32 s4, s94, 7
s_add_u32 s{s_xs}, s{s_xs}, s4
s_mov_b32 s95, s94
s_cmp_gt_u32 s{s_br}, s{s_rnd}
s_cselect_b32 s{SX}, s54, s48
s_cselect_b32 s{SX+1}, s55, s49
""")
    def xdma():
        o = []
        for i in range(4):
            o += [f"s_add_u32 m0, s{s_lx}, {i*1024}", "s_nop 0", f"buffer_load_dwordx4 v{xd+i}, {srd(SX)}, s{s_xs} offen {APOL} lds"]
        return o
    ld_x_round()
    for l in xdma(): a(l)
    for j in range(3):
        a(f"""
s_add_u32 s3, s91, {j}
s_cmp_ge_u32 s3, 5
s_cselect_b32 s4, 5, 0
s_cselect_b32 s5, 32, 0
s_sub_u32 s4, s3, s4
s_lshl_b32 s4, s4, 2
v_add_u32 v{t0}, s4, v{g}
v_mul_u32_u24 v{t1}, 205, v{t0}
v_lshrrev_b32 v{t1}, 10, v{t1}
v_mul_u32_u24 v{t2}, 5, v{t1}
v_sub_u32 v{t0}, v{t0}, v{t2}
v_lshlrev_b32 v{t0}, 5, v{t0}
v_and_b32 v{t2}, 1, v{lane}
v_lshl_add_u32 v{gcol+j}, v{t2}, 4, v{t0}
v_lshrrev_b32 v{t0}, 1, v{t1}
v_lshlrev_b32 v{t0}, 4, v{t0}
v_and_b32 v{t1}, 1, v{t1}
v_lshl_add_u32 v{t0}, v{t1}, 2, v{t0}
v_bfe_u32 v{t1}, v{lane}, 3, 1
v_lshl_add_u32 v{t0}, v{t1}, 3, v{t0}
v_bfe_u32 v{t1}, v{lane}, 1, 2
v_add3_u32 v{grow+j}, v{t0}, v{t1}, s5
""")
    def ld_g_round(tag):
        a(f"""
s_add_u32 s3, s{s_br}, s{s_rnd}
s_mul_i32 s4, s{s_hg}, 160
s_mul_i32 s5, s{s_c16}, 160
s_add_u32 s5, s5, 1280
s_cmp_eq_u32 s3, 1
s_cselect_b32 s{s_gs}, s4, s5
s_movk_i32 s4, 3840
s_mov_b32 s5, {640*3840}
s_cmp_gt_u32 s{s_br}, s{s_rnd}
s_cselect_b32 s{s_ldw}, 1280, s4
s_cselect_b32 s{SW+2}, {640*1280}, s5
s_cselect_b32 s{SW}, s56, s50
s_cselect_b32 s{SW+1}, s57, s51
s_lshl_b32 s{s_gst}, s{s_ldw}, 6
s_mul_i32 s4, s{s_gst}, s94
s_add_u32 s{s_gs}, s{s_gs}, s4
s_mul_i32 s96, s{s_gst}, 10
""")
        for j in range(3):
            a(f"v_mad_u32_u24 v{gd+j}, v{grow+j}, s{s_ldw}, v{gcol+j}")
    gd_n = [0]
    def gdma():
        o = []
        for j in range(3):
            if j == 2:
                gd_n[0] += 1
                o += [f"s_cmp_ge_u32 s{s_lw}, 2", f"s_cbranch_scc1 L_g2_{gd_n[0]}"]
            o += [f"s_add_u32 m0, s{s_lg}, {j*1024}", "s_nop 0", f"buffer_load_dwordx4 v{gd+j}, {srd(SW)}, s{s_gs} offen {APOL} lds"]
        o.append(f"L_g2_{gd_n[0]}:")
        return o
    def ladv(lab):
        a(f"s_add_u32 s{s_xs}, s{s_xs}, 128")
        a(f"""
s_add_u32 s{s_gs}, s{s_gs}, s{s_gst}
s_add_u32 s95, s95, 1
s_cmp_eq_u32 s95, 10
s_cselect_b32 s4, 1280, 0
s_cselect_b32 s5, s96, 0
s_cselect_b32 s95, 0, s95
s_sub_u32 s{s_xs}, s{s_xs}, s4
s_sub_u32 s{s_gs}, s{s_gs}, s5
""")
        a(f"""
s_add_u32 s{s_lx}, s{s_lx}, {SL}
s_add_u32 s{s_lg}, s{s_lg}, {SL}
s_and_b32 s{s_lx}, s{s_lx}, {4*SL-1}
s_and_b32 s{s_lg}, s{s_lg}, {4*SL-1}
s_add_u32 s{s_cnt}, s{s_cnt}, 1
""")
    D = 6
    pv = VB + 16
    a(f"""
v_and_b32 v{t2}, 1, v{lane}
v_lshlrev_b32 v{t2}, 3, v{t2}
v_add_u32 v{t2}, s{s_hg}, v{t2}
v_and_b32 v{t3}, 7, v{lane}
v_add_u32 v{t3}, {C_EX}, v{t3}
s_cmp_eq_u32 s{s_br}, 0
s_cselect_b64 vcc, -1, 0
s_cselect_b32 s92, 8, 16
v_cndmask_b32 v{t2}, v{t3}, v{t2}, vcc
v_lshlrev_b32 v{t2}, 8, v{t2}
v_add_u32 v{pv}, {WS_CNT}, v{t2}
v_mov_b32 v{pv+1}, 0
s_mul_i32 s3, s{s_br}, s{s_lw}
s_cmp_eq_u32 s3, 0
s_cselect_b32 s93, {2*NST-1}, 99
""")
    ld_g_round("a")
    for l in gdma(): a(l)
    a(f"s_mov_b32 s{s_cnt}, 0")
    ladv("")
    a.label("L_ld_pro")
    for l in xdma() + gdma(): a(l)
    ladv("")
    a(f"""
s_cmp_lt_u32 s{s_cnt}, 4
s_cbranch_scc1 L_ld_pro
s_waitcnt vmcnt({3*D})
s_barrier
L_ld_loop:
s_cmp_lg_u32 s{s_cnt}, {NST}
s_cbranch_scc1 L_ld_same
s_mov_b32 s{s_rnd}, 1
""")
    ld_x_round()
    ld_g_round("b")
    a(f"""
L_ld_same:
s_waitcnt vmcnt({2*D})
s_barrier
""")
    a(f"""
s_cmp_lg_u32 s{s_cnt}, 13
s_cbranch_scc1 L_ld_noq
s_cmp_eq_u32 s{s_br}, 0
s_cbranch_scc1 L_ld_noq
""")
    def read_q():
        a(f"""
s_mul_i32 s3, s{s_w}, {2*RI_B}
s_add_u32 s3, s3, {STG}
v_lshlrev_b32 v{t0}, 4, v{lane}
v_add_u32 v{t0}, s3, v{t0}
v_and_b32 v{t1}, 31, v{lane}
v_lshlrev_b32 v{t1}, 3, v{t1}
v_add_u32 v{t1}, s3, v{t1}
ds_read_b128 {vr(Q1[0],4)}, v{t0}
ds_read_b64 {vr(Q2[0],2)}, v{t1} offset:1024
ds_read_b128 {vr(Q1[1],4)}, v{t0} offset:{RI_B}
ds_read_b64 {vr(Q2[1],2)}, v{t1} offset:{RI_B+1024}
s_waitcnt lgkmcnt(0)
""")
    read_q()
    a.label("L_ld_noq")
    a(f"""
s_cmp_lg_u32 s{s_cnt}, s93
s_cbranch_scc1 L_ld_nop
buffer_load_dword v{pv+1}, v{pv}, {WS}, 0 offen sc1
L_ld_nop:
""")
    if "nodma" not in XP:
        for l in xdma() + gdma(): a(l)
    ladv("")
    a(f"""
s_cmp_lt_u32 s{s_cnt}, {2*NST}
s_cbranch_scc1 L_ld_loop
""")
    vdma = VB; cst = VB + 4
    s_img, s_gd, s_nh = 20, 21, 22
    def poll(lab, execmask, want):
        a(f"""
s_mov_b64 exec, {execmask}
s_mov_b32 s3, 0
{lab}:
buffer_load_dword v{t3}, v{t2}, {WS}, 0 offen sc1
s_waitcnt vmcnt(0)
v_cmp_ne_u32 vcc, {want}, v{t3}
s_add_u32 s3, s3, 1
s_cmp_gt_u32 s3, {SPIN_MAX}
s_cbranch_scc1 {lab}_t
s_cbranch_vccz {lab}_d
s_sleep 2
s_branch {lab}
{lab}_t:
""")
        diag(a, 2 if "late" in lab else 3, t3)
        a(f"""
{lab}_d:
s_mov_b64 exec, -1
""")
    def dma_tile(m0expr, s_g):
        return [m0expr,
                f"s_mov_b64 exec, {MV}",
                f"buffer_load_dwordx4 v{vdma}, {WS}, s{s_g} offen offset:1024 {SC1} lds",
                f"buffer_load_dwordx4 v{vdma}, {WS}, s{s_g} offen offset:2048 {SC1} lds",
                f"s_mov_b64 exec, {MK}",
                f"buffer_load_dwordx4 v{vdma}, {WS}, s{s_g} offen offset:3072 {SC1} lds",
                f"s_mov_b64 exec, -1",
                f"buffer_load_dwordx4 v{vdma}, {WS}, s{s_g} offen {SC1} lds"]
    def img_base():
        a(f"""
s_lshl_b32 s3, s{s_hg}, 2
s_cmp_eq_u32 s{s_br}, 0
s_cselect_b32 s3, s3, 32
s_cselect_b32 s{s_nh}, 4, 1
s_mul_i32 s{s_img}, s3, {HEAD_B}
s_add_u32 s{s_img}, s{s_img}, {WS_KV}
v_lshlrev_b32 v{vdma}, 4, v{lane}
""")
    def consts(t):
        r = VB + 1 if t < 4 else VB + 2
        o = (t % 4) * TS_B
        a(f"""
s_not_b64 exec, {MV}
ds_write_b128 v{r}, {vr(cst,4)} offset:{o+1024}
ds_write_b128 v{r}, {vr(cst,4)} offset:{o+2048}
s_mov_b64 exec, 1
ds_write_b64 v{r}, {vr(cst+4,2)} offset:{o+TILE_B}
s_mov_b64 exec, -1
""")
    def first_tile(t):
        for l in dma_tile(f"s_add_u32 m0, s23, {t*TS_B}", s_gd): a(l)
        a(f"s_add_u32 s{s_gd}, s{s_gd}, {TILE_B}")
    img_base()
    a(f"""
s_cmp_ge_u32 s{s_lw}, s{s_nh}
s_cbranch_scc1 L_ld_idle0
s_mul_i32 s3, s{s_lw}, {HEAD_B}
s_add_u32 s{s_gd}, s{s_img}, s3
s_mul_i32 s23, s{s_lw}, {SLOT_B}
v_and_b32 v{t1}, 31, v{lane}
v_cmp_eq_u32 vcc, 20, v{t1}
v_mov_b32 v{t2}, 0x3f803f80
v_add_u32 v{VB+1}, s23, v{vdma}
v_cndmask_b32 v{cst}, 0, v{t2}, vcc
v_cndmask_b32 v{cst+1}, 0, v{t2}, vcc
v_cndmask_b32 v{cst+2}, 0, v{t2}, vcc
v_cndmask_b32 v{cst+3}, 0, v{t2}, vcc
v_mov_b32 v{cst+4}, 0x3f803f80
v_mov_b32 v{cst+5}, 0x3f80
v_add_u32 v{VB+2}, {4*TS_B}, v{VB+1}
s_waitcnt vmcnt({2*D})
s_barrier
s_waitcnt vmcnt({D})
v_cmp_ne_u32 vcc, s92, v{pv+1}
s_and_b32 s3, vcc_lo, 0xff
s_cbranch_scc1 L_ld_slow
""")
    first_tile(0); first_tile(1); consts(0); consts(1)
    a("s_barrier")
    first_tile(2); first_tile(3); consts(2); consts(3)
    a("s_waitcnt vmcnt(16)\ns_barrier")
    first_tile(4)
    a("s_barrier\ns_branch L_ld_fin")
    a.label("L_ld_slow")
    consts(0); consts(1)
    a(f"""
s_barrier
buffer_load_dword v{pv+1}, v{pv}, {WS}, 0 offen sc1
""")
    consts(2); consts(3)
    a(f"""
s_waitcnt vmcnt(1)
s_barrier
s_mov_b32 s4, 0
L_pollL:
s_waitcnt vmcnt(0)
v_cmp_ne_u32 vcc, s92, v{pv+1}
s_add_u32 s4, s4, 1
s_cmp_gt_u32 s4, {SPIN_MAX}
s_cbranch_scc1 L_pollL_t
s_and_b32 s3, vcc_lo, 0xff
s_cbranch_scc0 L_pollL_d
s_sleep 1
buffer_load_dword v{pv+1}, v{pv}, {WS}, 0 offen sc1
s_branch L_pollL
L_pollL_t:
""")
    diag(a, 1, pv + 1)
    a.label("L_pollL_d")
    for t in range(3): first_tile(t)
    a("s_barrier")
    for t in range(3, 5): first_tile(t)
    a.label("L_ld_fin")
    consts(4); consts(5); consts(6); consts(7)
    a("s_mov_b32 s18, 1")
    a(f"""
s_waitcnt lgkmcnt(0)
s_branch L_join
L_ld_idle0:
s_mov_b32 s18, 0
s_waitcnt vmcnt({2*D})
s_barrier
s_waitcnt vmcnt({D})
s_barrier
s_waitcnt vmcnt(0)
s_barrier
s_barrier
s_branch L_join
""")

    a.label("L_comp")
    V = Regs(VB, 147, "v")
    xa = V.alloc("xa", 2); xe = V.alloc("xe", 2); wr_ = V.alloc("wr"); er = V.alloc("er")
    sa = V.alloc("sa", 10)
    sn = V.alloc("sn", 5)
    acc0 = V.alloc("acc", 44, 4); xf0 = V.alloc("xf", 24, 4); wf0 = V.alloc("wf", 24, 4); ep = V.alloc("ep", 12, 4)
    acc = lambda i, j: acc0 + (i * 5 + j) * 4
    acce = acc0 + 40
    xf = lambda st, i: xf0 + (st * 3 + i) * 4
    wf = lambda j: wf0 + j * 4
    a(f"""
v_and_b32 v{t0}, 7, v{l16}
v_xor_b32 v{t0}, v{t0}, v{g}
v_lshlrev_b32 v{t0}, 4, v{t0}
v_lshl_add_u32 v{t0}, v{l16}, 7, v{t0}
s_lshl_b32 s3, s{s_w}, 12
v_add_u32 v{xa}, s3, v{t0}
v_xor_b32 v{xa+1}, 64, v{xa}
s_lshl_b32 s3, s{s_hg}, 11
v_add_u32 v{xe}, s3, v{t0}
v_xor_b32 v{xe+1}, 64, v{xe}
v_lshrrev_b32 v{t0}, 1, v{g}
v_mul_u32_u24 v{t0}, 2560, v{t0}
v_and_b32 v{t1}, 1, v{g}
v_lshl_add_u32 v{t0}, v{t1}, 7, v{t0}
v_lshl_add_u32 v{t0}, v{l16}, 3, v{t0}
v_add_u32 v{wr_}, 16384, v{t0}
v_lshrrev_b32 v{t0}, 2, v{l16}
v_lshl_add_u32 v{t0}, v{g}, 3, v{t0}
v_mul_u32_u24 v{t0}, 40, v{t0}
v_and_b32 v{t1}, 3, v{l16}
v_lshl_add_u32 v{t0}, v{t1}, 3, v{t0}
s_lshr_b32 s3, s{s_w}, 1
s_mul_i32 s3, s3, 3072
s_and_b32 s4, s{s_w}, 1
s_lshl_b32 s4, s4, 5
s_add_u32 s3, s3, s4
s_add_u32 s3, s3, {16384+10240}
v_add_u32 v{er}, s3, v{t0}
s_mov_b32 s{s_slot}, 0
s_mov_b32 s46, 0
""")
    def pi16(dst):
        a(f"""
v_and_b32 v{dst}, 3, v{l16}
v_bfe_u32 v{t3}, v{l16}, 2, 1
v_lshl_add_u32 v{dst}, v{t3}, 3, v{dst}
v_bfe_u32 v{t3}, v{l16}, 3, 1
v_lshl_add_u32 v{dst}, v{t3}, 2, v{dst}
""")
    a(f"s_mul_i32 s4, s{s_w}, {RI_B}\ns_add_u32 s4, s4, {STG}")
    pi16(t2)
    for j in range(5):
        a(f"""
v_add_u32 v{t0}, {4*j}, v{g}
v_mul_u32_u24 v{t1}, 205, v{t0}
v_lshrrev_b32 v{t1}, 10, v{t1}
v_mul_u32_u24 v{t3}, 5, v{t1}
v_sub_u32 v{t0}, v{t0}, v{t3}
v_mul_u32_u24 v{t1}, {4*RI_B}, v{t1}
v_lshrrev_b32 v{t3}, 1, v{t0}
v_lshl_add_u32 v{t3}, v{t3}, 5, v{t2}
v_lshlrev_b32 v{t3}, 4, v{t3}
v_and_b32 v{ep}, 1, v{t0}
v_lshl_add_u32 v{t3}, v{ep}, 3, v{t3}
v_lshlrev_b32 v{ep}, 3, v{t2}
v_add_u32 v{ep}, 1024, v{ep}
v_cmp_eq_u32 vcc, 4, v{t0}
v_mov_b32 v{ep+1}, 256
v_mov_b32 v{ep+2}, 128
v_cndmask_b32 v{t3}, v{t3}, v{ep}, vcc
v_cndmask_b32 v{ep+1}, v{ep+1}, v{ep+2}, vcc
v_add3_u32 v{sa+2*j}, v{t1}, v{t3}, s4
v_add_u32 v{sa+2*j+1}, v{sa+2*j}, v{ep+1}
""")
    a(f"""
v_lshrrev_b32 v{t2}, 1, v{g}
v_mul_u32_u24 v{t2}, 320, v{t2}
v_and_b32 v{t3}, 1, v{g}
v_lshl_add_u32 v{t2}, v{t3}, 3, v{t2}
""")
    for j in range(5):
        a(f"""
v_add_u32 v{t0}, {16*j}, v{l16}
v_mul_u32_u24 v{t1}, 205, v{t0}
v_lshrrev_b32 v{t1}, 12, v{t1}
v_mul_u32_u24 v{t3}, 20, v{t1}
v_sub_u32 v{t0}, v{t0}, v{t3}
v_mul_u32_u24 v{t1}, {4*RI_B}, v{t1}
v_lshl_add_u32 v{t0}, v{t0}, 4, v{t2}
v_add3_u32 v{sn+j}, v{t0}, v{t1}, s4
""")
    for r in range(44): a(f"v_mov_b32 v{acc0+r}, 0")
    JK = 147
    if PFM == "comp":
        a(f"""
v_lshrrev_b32 v{ep}, 2, v{lane}
v_and_b32 v{t3}, 3, v{lane}
v_lshlrev_b32 v{t3}, 6, v{t3}
v_mul_u32_u24 v{ep+1}, 1280, v{ep}
v_add_u32 v{ep+1}, v{ep+1}, v{t3}
v_min_u32 v{t3}, 156, v{t3}
s_mov_b32 s18, {2048*1280}
s_mov_b32 s19, 0x20000
s_mov_b32 s23, 0x20000
""")
        for rnd in range(2):
            nrow = 24 if rnd == 0 else 40
            a(f"""
s_add_u32 s3, s{s_br}, {rnd}
s_mul_i32 s4, s{s_hg}, 160
s_mul_i32 s5, s{s_c16}, 160
s_add_u32 s5, s5, 1280
s_cmp_eq_u32 s3, 1
s_cselect_b32 s7, s4, s5
s_cselect_b32 s4, s{s_mt}, s{s_mu}
s_lshl_b32 s4, s4, 7
s_lshl_b32 s5, s{s_hg}, 4
s_add_u32 s4, s4, s5
s_mul_i32 s24, s4, 1280
s_lshl_b32 s5, s{s_w}, 8
s_add_u32 s25, s24, s5
s_movk_i32 s4, 3840
s_mov_b32 s5, {640*3840}
s_cmp_gt_u32 s{s_br}, {rnd}
s_cselect_b32 s6, 1280, s4
s_cselect_b32 s22, {640*1280}, s5
s_cselect_b32 s20, s56, s50
s_cselect_b32 s21, s57, s51
s_cselect_b32 s16, s54, s48
s_cselect_b32 s17, s55, s49
s_lshl_b32 s5, s{s_w}, 2
s_bfe_u32 s4, s2, 0x20003
s_add_u32 s5, s5, s4
s_mul_i32 s5, s5, {nrow}
s_add_u32 s5, s5, {256 if rnd == 0 else 0}
s_mul_i32 s5, s5, s6
s_add_u32 s26, s5, s7
s_mul_i32 s5, s6, {nrow - 16}
s_add_u32 s27, s26, s5
v_mad_u32_u24 v{t0}, v{ep}, s6, v{t3}
""")
            if rnd == 0:
                a(f"""
buffer_load_dword v{JK}, v{ep+1}, s[16:19], s25 offen offset:256
buffer_load_dword v{JK}, v{t0}, s[20:23], s26 offen
buffer_load_dword v{JK}, v{t0}, s[20:23], s27 offen
""")
            else:
                a(f"""
buffer_load_dword v{JK}, v{ep+1}, s[16:19], s25 offen
buffer_load_dword v{JK}, v{t0}, s[20:23], s26 offen
s_lshl_b32 s5, s6, 4
s_add_u32 s26, s26, s5
buffer_load_dword v{JK}, v{t0}, s[20:23], s26 offen
buffer_load_dword v{JK}, v{t0}, s[20:23], s27 offen
buffer_load_dword v{JK}, v{ep+1}, s[16:19], s24 offen offset:1024
""")
    a.label("L_round")
    a(f"""
s_mov_b32 s{s_cnt}, 0
s_add_u32 s3, s{s_br}, s{s_rnd}
s_lshr_b32 s4, s{s_c16}, 3
s_add_u32 s4, s4, 1
s_mul_i32 s5, s{s_br}, 3
s_cmp_eq_u32 s3, 1
s_cselect_b32 s{s_type}, s5, s4
v_add_u32 v{xa}, s46, v{xa}
v_add_u32 v{xa+1}, s46, v{xa+1}
v_add_u32 v{wr_}, s46, v{wr_}
s_waitcnt lgkmcnt(0)
s_barrier
s_cmp_lg_u32 s3, 2
s_cbranch_scc1 L_rnd_noq
""")
    read_q()
    a.label("L_rnd_noq")
    ENTRY_HOOK = True
    def rx(st, i):
        if i < 2: return f"ds_read_b128 {vr(xf(st,i),4)}, v{xa+st} offset:{i*2048}"
        return f"ds_read_b128 {vr(xf(st,2),4)}, v{xe+st}"
    def rw(st, j, h):
        if j < 5: return f"ds_read_b64_tr_b16 {vr(wf(j)+2*h,2)}, v{wr_} offset:{st*5120 + h*1280 + j*256}"
        return f"ds_read_b64_tr_b16 {vr(wf(5)+2*h,2)}, v{er} offset:{(32*st+4*h)*40}"
    def mf_list(st, orient, ext):
        out = []
        for j in range(5):
            for i in range(2):
                A, B = (wf(j), xf(st, i)) if orient == 'T' else (xf(st, i), wf(j))
                out.append((f"v_mfma_f32_16x16x32_bf16 {vr(acc(i,j),4)}, {vr(A,4)}, {vr(B,4)}, {vr(acc(i,j),4)}", [("x", st, i), ("w", j)]))
        if ext:
            A, B = (wf(5), xf(st, 2)) if ext == 'T' else (xf(st, 2), wf(5))
            out.append((f"v_mfma_f32_16x16x32_bf16 {vr(acce,4)}, {vr(A,4)}, {vr(B,4)}, {vr(acce,4)}", [("x", st, 2), ("w", 5)]))
        return out
    def gaps(rs, ext, late):
        W = lambda j, h: (rw(rs, j, h), ("w", j))
        X = lambda i: (rx(rs, i), ("x", rs, i))
        if late:
            gp = {1: [W(0,0), W(0,1)], 2: [X(0)], 3: [W(1,0), X(1)], 4: [W(1,1)], 5: [W(2,0)], 6: [W(2,1)], 7: [W(3,0)], 8: [W(3,1)], 9: [W(4,0), W(4,1)]}
        else:
            gp = {0: [X(0)], 1: [W(0,0), W(0,1)], 2: [X(1)], 3: [W(1,0)], 4: [W(1,1)], 5: [W(2,0)], 6: [W(2,1)], 7: [W(3,0)], 8: [W(3,1)], 9: [W(4,0), W(4,1)]}
        if ext:
            gp[6] = gp[6] + [X(2)]
            gp[10] = [W(5,0), W(5,1)]
        return gp
    def body(orient, ext, pend):
        out = []
        for st, rs, late in ((1, 0, True), (0, 1, False)):
            gp = gaps(rs, ext, late)
            if not late: out.append("@MID@")
            for m, (ins, needs) in enumerate(mf_list(st, orient, ext)):
                k = max([i for i, tg in enumerate(pend) if tg in needs], default=-1)
                if k >= 0:
                    n = len(pend) - 1 - k
                    out.append(f"s_waitcnt lgkmcnt({min(n, 15)})")
                    pend[:] = pend[k+1:] if n <= 15 else pend[len(pend)-15:]
                out.append(ins)
                if late and m == 1:
                    out += ["@ADV@", "s_waitcnt lgkmcnt(0)", "s_barrier"]; pend[:] = []
                for (r, tg) in gp.get(m, []):
                    out.append(r); pend.append(tg)
        return out
    def entry_reads(ext):
        for i in range(3 if ext else 2): a(rx(0, i))
        for j in range(6 if ext else 5):
            a(rw(0, j, 0)); a(rw(0, j, 1))
    entry_reads(False)
    a(f"""
s_cmp_eq_u32 s{s_type}, 2
s_waitcnt lgkmcnt(0)
s_cbranch_scc1 L_g_N_mid
s_cmp_eq_u32 s{s_type}, 3
s_cbranch_scc0 L_g_T_mid
""")
    a(rx(0, 2)); a(rw(0, 5, 0)); a(rw(0, 5, 1))
    a(f"""
s_cmp_lt_u32 s{s_w}, 2
s_waitcnt lgkmcnt(0)
s_cbranch_scc1 L_g_ET_mid
s_branch L_g_EN_mid
""")
    def gemm(label, orient, ext):
        a.label(label)
        pend = []
        body(orient, ext, pend)
        p0 = list(pend)
        code = body(orient, ext, pend)
        assert pend == p0
        regs = [xa, xa + 1, wr_] + ([xe, xe + 1, er] if ext else [])
        if "nomfma" in XP: code = [l for l in code if not l.startswith("v_mfma")]
        if "noread" in XP: code = [l for l in code if not l.startswith("ds_read")]
        for l in code:
            if l == "@ADV@":
                for r in regs: a(f"v_add_u32 v{r}, s46, v{r}")
            elif l == "@MID@": a.label(label + "_mid")
            else: a(l)
        a(f"""
s_add_u32 s{s_slot}, s{s_slot}, 1
s_and_b32 s{s_slot}, s{s_slot}, 3
s_mov_b32 s46, {(-3*SL) & 0xffffffff:#x}
s_cselect_b32 s46, {SL}, s46
s_add_u32 s{s_cnt}, s{s_cnt}, 1
s_cmp_lt_u32 s{s_cnt}, {NST}
s_cbranch_scc1 {label}
""")
        for m, (ins, needs) in enumerate(mf_list(1, orient, ext)):
            k = max([i for i, tg in enumerate(pend) if tg in needs], default=-1)
            if k >= 0:
                a(f"s_waitcnt lgkmcnt({min(len(pend) - 1 - k, 15)})"); pend[:] = pend[k+1:]
            a(ins)
    def pack(dst, src, scale=None):
        if scale is not None:
            a(f"v_pk_mul_f32 {vr(src,2)}, {vr(src,2)}, s[{scale}:{scale+1}]")
            a(f"v_pk_mul_f32 {vr(src+2,2)}, {vr(src+2,2)}, s[{scale}:{scale+1}]")
        a(f"v_cvt_pk_bf16_f32 v{dst}, v{src}, v{src+1}")
        a(f"v_cvt_pk_bf16_f32 v{dst+1}, v{src+2}, v{src+3}")
    def extra():
        a(f"""
s_lshl_b32 s3, s{s_w}, 9
s_add_u32 s3, s3, {STGE}
v_lshlrev_b32 v{t0}, 3, v{lane}
v_add_u32 v{t0}, s3, v{t0}
s_nop 7
""")
        pack(ep + 8, acce)
        a(f"ds_write_b64 v{t0}, {vr(ep+8,2)}")
    gemm("L_g_ET", 'T', 'T')
    extra()
    a("s_branch L_epi")
    gemm("L_g_EN", 'T', 'N')
    extra()
    a("s_branch L_epi")
    def epi(orient):
        n = 0
        for j in range(5):
            for i in range(2):
                d = ep + 2 * (n % 4); n += 1
                pack(d, acc(i, j), 6 if orient == 'T' else None)
                if orient == 'T': a(f"ds_write_b64 v{sa+2*j+i}, {vr(d,2)}")
                else: a(f"ds_write_b64 v{sn+j}, {vr(d,2)} offset:{640*i}")
                for r in range(4): a(f"v_mov_b32 v{acc(i,j)+r}, 0")
    gemm("L_g_N", 'N', None)
    a("s_nop 3")
    epi('N')
    a("s_branch L_epid")
    gemm("L_g_T", 'T', None)
    a.label("L_epi")
    a(f"""
s_mov_b32 s6, {f32bits(QSCALE):#x}
s_cmp_eq_u32 s{s_type}, 1
s_cselect_b32 s6, 1.0, s6
s_mov_b32 s7, s6
s_nop 3
""")
    epi('T')
    a.label("L_epid")
    a(f"""
s_cmp_eq_u32 s{s_rnd}, 1
s_mov_b32 s{s_rnd}, 1
s_cbranch_scc0 L_round
s_mov_b32 s18, 0
s_waitcnt lgkmcnt(0)
s_barrier
""")
    a.label("L_join")
    stamp(a, 1)
    a(f"s_cmp_eq_u32 s{s_br}, 1\ns_cbranch_scc1 L_haveq")
    read_q()
    a.label("L_haveq")
    V = Regs(VB, 148, "v")
    vdma = V.alloc("vdma"); vA = V.alloc("vA", 2); vK = V.alloc("vK", 2); vt8 = V.alloc("vt8"); mx = V.alloc("mx", 2)
    K2 = [V.alloc("K2e", 2, 2), V.alloc("K2o", 2, 2)]
    K1 = [V.alloc("K1e", 4, 4), V.alloc("K1o", 4, 4)]
    V0 = [V.alloc("V0e", 4, 4), V.alloc("V0o", 4, 4)]
    V1 = [V.alloc("V1e", 4, 4), V.alloc("V1o", 4, 4)]
    P = V.alloc("P", 8, 4)
    S = [V.alloc("SA", 16, 4), V.alloc("SB", 16, 4)]
    O = [V.alloc("OA", 16, 4), V.alloc("OB", 16, 4)]
    assert vdma == VB
    s_ob = 19
    img_base()
    a(f"""
s_lshr_b32 s3, s{s_w}, 1
s_cmp_eq_u32 s{s_br}, 0
s_cselect_b32 s4, s3, 0
s_mul_i32 s5, s4, {HEAD_B}
s_add_u32 s{s_img}, s{s_img}, s5
s_mul_i32 s4, s4, {SLOT_B}
v_add_u32 v{vA}, s4, v{vdma}
v_add_u32 v{vA+1}, {4*TS_B}, v{vA}
v_and_b32 v{t1}, 31, v{lane}
v_lshlrev_b32 v{vt8}, 3, v{t1}
v_add_u32 v{t0}, 3072, v{vt8}
v_mov_b32 v{t1}, {TILE_B}
v_cndmask_b32 v{t0}, v{t0}, v{t1}, {MHI}
v_add_u32 v{vK}, s4, v{t0}
v_add_u32 v{vK+1}, {4*TS_B}, v{vK}
s_lshl_b32 s4, s{s_br}, 5
s_lshl_b32 s5, s{s_hg}, 2
s_add_u32 s4, s4, s5
s_add_u32 s4, s4, s3
s_lshl_b32 s4, s4, 6
s_lshl_b32 s5, s{s_mt}, 2
s_add_u32 s4, s4, s5
s_and_b32 s5, s{s_w}, 1
s_lshl_b32 s5, s5, 1
s_add_u32 s4, s4, s5
s_mul_i32 s{s_ob}, s4, {RI_B}
s_add_u32 s{s_ob}, s{s_ob}, {WS_O}
s_mov_b32 s{s_cnt}, 0
""")
    for r in range(16):
        a(f"v_mov_b32 v{O[0]+r}, 0\nv_mov_b32 v{O[1]+r}, 0")
    for r in range(4):
        a(f"v_mov_b32 v{P+4+r}, 0\nv_mov_b32 v{V1[1]+r}, 0")
    def zero_off():
        for x in range(2):
            a(f"v_cndmask_b32 v{Q2[x]}, v{Q2[x]}, 0, {MHI}")
            a(f"v_cndmask_b32 v{Q2[x]+1}, v{Q2[x]+1}, 0, {MHI}")
    zero_off()
    a(f"""
s_waitcnt vmcnt(8) lgkmcnt(0)
s_barrier
ds_read_b128 {vr(K1[0],4)}, v{vA}
ds_read_b64 {vr(K2[0],2)}, v{vK}
ds_read_b128 {vr(V0[0],4)}, v{vA} offset:1024
ds_read_b128 {vr(V1[0],4)}, v{vA} offset:2048
ds_read_b128 {vr(K1[1],4)}, v{vA} offset:{TS_B}
ds_read_b64 {vr(K2[1],2)}, v{vK} offset:{TS_B}
""")
    a("s_cmp_eq_u32 s18, 0\ns_cbranch_scc1 L_no56")
    first_tile(5); first_tile(6)
    a.label("L_no56")
    stamp(a, 3)
    def qk(x, kb):
        return [f"v_mfma_f32_32x32x16_bf16 {vr(S[x],16)}, {vr(K1[kb],4)}, {vr(Q1[x],4)}, 0",
                f"v_mfma_f32_32x32x8_bf16 {vr(S[x],16)}, {vr(K2[kb],2)}, {vr(Q2[x],2)}, {vr(S[x],16)}"]
    def rowmax(x, dst, first):
        s = S[x]
        if first:
            a(f"v_max3_f32 v{dst}, v{s}, v{s+1}, v{s+2}")
            a(f"v_max_f32 v{dst}, v{dst}, v{s+3}")
            rs = range(4, 16, 2)
        else:
            rs = range(0, 16, 2)
        for r in rs:
            a(f"v_max3_f32 v{dst}, v{dst}, v{s+r}, v{s+r+1}")
    def set_off(x, m):
        a(f"""
v_mov_b32 v{t0}, v{m}
s_nop 1
v_permlane32_swap_b32 v{m}, v{t0}
s_nop 1
v_max_f32 v{t0}, v{m}, v{t0}
v_sub_f32 v{t0}, 0, v{t0}
v_and_b32 v{t1}, 0xffff0000, v{t0}
v_sub_f32 v{t0}, v{t0}, v{t1}
v_and_b32 v{t2}, 0xffff0000, v{t0}
v_sub_f32 v{t0}, v{t0}, v{t2}
s_mov_b32 s3, 0x07060302
v_perm_b32 v{t1}, v{t2}, v{t1}, s3
v_lshrrev_b32 v{t0}, 16, v{t0}
v_cndmask_b32 v{Q2[x]}, v{Q2[x]}, v{t1}, {MHI}
v_cndmask_b32 v{Q2[x]+1}, v{Q2[x]+1}, v{t0}, {MHI}
""")
    a("s_waitcnt lgkmcnt(4)")
    for x in range(2):
        for l in qk(x, 0): a(l)
    a("s_nop 7\ns_nop 3")
    rowmax(0, mx, True)
    set_off(0, mx)
    a("s_nop 1")
    for l in qk(0, 0): a(l)
    rowmax(1, mx + 1, True)
    set_off(1, mx + 1)
    a("s_waitcnt vmcnt(8) lgkmcnt(0)")

    def unit(x, t):
        y = 1 - x
        s = S[x]
        e = t & 1; o = 1 - e
        E = [f"v_exp_f32 v{s+i}, v{s+i}" for i in range(16)]
        C = [f"v_cvt_pk_bf16_f32 v{P+i}, v{s+2*i}, v{s+2*i+1}" for i in range(8)]
        M1, M3 = qk(y, e if x == 0 else o)
        M2 = f"v_mfma_f32_32x32x16_bf16 {vr(O[y],16)}, {vr(V1[o if x == 0 else e],4)}, {vr(P+4,4)}, {vr(O[y],16)}"
        M4 = f"v_mfma_f32_32x32x16_bf16 {vr(O[x],16)}, {vr(V0[e],4)}, {vr(P,4)}, {vr(O[x],16)}"
        def addr(tt):
            tt %= 8
            return (vA + tt // 4, vK + tt // 4, (tt % 4) * TS_B)
        A1, _, o1 = addr(t + 1)
        A2, B2, o2 = addr(t + 2)
        if x == 0:
            f1 = [f"ds_read_b128 {vr(V0[o],4)}, v{A1} offset:{o1+1024}"]
            f2 = [f"ds_read_b128 {vr(V1[o],4)}, v{A1} offset:{o1+2048}"]
            f4 = [f"ds_read_b128 {vr(K1[e],4)}, v{A2} offset:{o2}"]
        else:
            f1 = [f"ds_read_b64 {vr(K2[e],2)}, v{B2} offset:{o2}"]
            f2 = ["s_barrier"] if t % 2 == 0 else (["s_waitcnt vmcnt(0)"] if t == 1 else [])
            f4 = ["s_waitcnt lgkmcnt(0)"]
        if "halfread" in XP and (t // 2) % 2 == 1:
            f1 = [l for l in f1 if not l.startswith("ds_read")]; f2 = [l for l in f2 if not l.startswith("ds_read")]; f4 = [l for l in f4 if not l.startswith("ds_read")]
        if "nox8" in XP: M3 = "s_nop 0"
        if "pvz" in XP:
            M2 = M2.replace(vr(V1[o if x == 0 else e],4), "v[140:143]"); M4 = M4.replace(vr(V0[e],4), "v[140:143]")
        out = []
        PR = os.environ.get("PRIO", "")
        p0 = p1 = []
        if (PR == "1" and x == 1) or PR == "2":
            p0, p1 = ["s_setprio 0"], ["s_setprio 1"]
        out += [M1] + f1 + E[0:4]
        out += [M2] + f2 + [E[4], C[0], E[5], C[1], E[6], E[7]]
        out += [M3] + p0 + [E[8]] + p1 + [C[2], E[9], C[3], E[10], E[11]]
        out += [M4] + f4 + [E[12], C[4], E[13], C[5], E[14], E[15], C[6], C[7]]
        return out
    if os.environ.get("PRIO") == "3":
        a(f"s_cmp_lt_u32 s{s_w}, 4\ns_cbranch_scc1 L_noprio\ns_setprio 1\nL_noprio:")
    if "pvz" in XP:
        for r in range(4): a(f"v_mov_b32 v{140+r}, 0")
    stamp(a, 4)
    a(".p2align 6")
    a.label("L_attn_loop")
    for t in range(8):
        for x in range(2):
            for l in unit(x, t): a(l)
    a(f"""
s_add_u32 s{s_cnt}, s{s_cnt}, 1
s_cmp_lt_u32 s{s_cnt}, 8
s_cbranch_scc1 L_attn_loop
v_mfma_f32_32x32x16_bf16 {vr(O[1],16)}, {vr(V1[1],4)}, {vr(P+4,4)}, {vr(O[1],16)}
s_nop 7
s_nop 7
""")
    stamp(a, 5)
    def getl(x, dst):
        a(f"""
v_mov_b32 v{dst}, v{O[x]+8}
v_mov_b32 v{t0}, v{O[x]+8}
s_nop 1
v_permlane32_swap_b32 v{t0}, v{dst}
s_nop 1
""")
    a(f"s_mov_b32 s4, {f32bits(2.0**-20):#x}\ns_mov_b32 s5, {f32bits(2.0**60):#x}\ns_mov_b32 s3, 0x7f800000\ns_mov_b64 s[46:47], -1")
    for x in range(2):
        getl(x, mx + x)
        o = O[x]
        a(f"v_add_f32 v{t3}, abs(v{o}), abs(v{o+1})")
        for r in range(2, 8):
            a(f"v_add_f32 v{t3}, v{t3}, abs(v{o+r})")
        a(f"v_add_f32 v{t0}, abs(v{o+8}), abs(v{o+9})")
        a(f"v_add_f32 v{t0}, v{t0}, abs(v{o+10})")
        a(f"v_add_f32 v{t0}, v{t0}, abs(v{o+11})")
        a(f"v_cndmask_b32 v{t0}, v{t0}, 0, {MHI}")
        a(f"v_add_f32 v{t3}, v{t3}, v{t0}")
        a(f"""
v_cmp_gt_f32 vcc, s3, v{t3}
s_and_b64 s[46:47], s[46:47], vcc
v_cmp_le_f32 vcc, s4, v{mx+x}
s_and_b64 s[46:47], s[46:47], vcc
v_cmp_ge_f32 vcc, s5, v{mx+x}
s_and_b64 s[46:47], s[46:47], vcc
""")
    a(f"""
s_cmp_eq_u64 s[46:47], -1
s_cbranch_scc0 L_attn_slow
L_attn_fin:
v_lshlrev_b32 v{t1}, 3, v{lane}
v_lshrrev_b32 v{t2}, 5, v{lane}
v_mul_u32_u24 v{t2}, {RI_B - 256}, v{t2}
v_add_u32 v{t1}, v{t1}, v{t2}
""")
    for x in range(2):
        o = O[x]; d = S[x]
        a(f"v_rcp_f32 v{t0}, v{mx+x}\ns_nop 0")
        for r in range(12):
            a(f"v_mul_f32 v{o+r}, v{o+r}, v{t0}")
        a(f"""
v_cvt_pk_bf16_f32 v{d}, v{o}, v{o+1}
v_cvt_pk_bf16_f32 v{d+1}, v{o+2}, v{o+3}
v_cvt_pk_bf16_f32 v{d+2}, v{o+4}, v{o+5}
v_cvt_pk_bf16_f32 v{d+3}, v{o+6}, v{o+7}
v_cvt_pk_bf16_f32 v{P+2*x}, v{o+8}, v{o+9}
v_cvt_pk_bf16_f32 v{P+2*x+1}, v{o+10}, v{o+11}
v_permlane32_swap_b32 v{d}, v{d+2}
v_permlane32_swap_b32 v{d+1}, v{d+3}
s_nop 1
buffer_store_dwordx4 {vr(d,4)}, v{vdma}, {WS}, s{s_ob} offen offset:{RI_B*x} {SC1}
""")
    a(f"""
v_permlane32_swap_b32 v{P}, v{P+2}
v_permlane32_swap_b32 v{P+1}, v{P+3}
s_nop 1
buffer_store_dwordx2 {vr(P,2)}, v{t1}, {WS}, s{s_ob} offen offset:1024 {SC1}
""")
    V = Regs(VB + 1, 160, "v")
    om = V.alloc("om"); ot = V.alloc("ot"); wr = V.alloc("wr", 2); oa = V.alloc("oa")
    OF = V.alloc("OF", 80, 4); CA = V.alloc("CA", 20, 4); WF = V.alloc("WF", 40, 4)
    SO = SX
    pi16(t2)
    a(f"""
s_lshl_b32 s3, s{s_br}, 11
s_lshl_b32 s4, s{s_mt}, 2
s_add_u32 s3, s3, s4
s_lshr_b32 s4, s{s_w}, 1
s_add_u32 s3, s3, s4
s_mul_i32 s3, s3, {RI_B}
s_add_u32 s33, s3, {WS_O}
s_and_b32 s4, s{s_w}, 1
s_lshl_b32 s4, s4, 4
v_add_u32 v{t2}, s4, v{t2}
v_lshrrev_b32 v{t0}, 1, v{g}
s_mov_b32 s5, {RIH_B}
v_mul_lo_u32 v{t0}, v{t0}, s5
v_and_b32 v{t3}, 1, v{g}
v_lshlrev_b32 v{t3}, 9, v{t3}
v_lshl_add_u32 v{t3}, v{t2}, 4, v{t3}
v_add_u32 v{om}, v{t0}, v{t3}
s_mov_b32 s5, {2*RIH_B}
v_mul_lo_u32 v{t0}, v{g}, s5
v_lshl_add_u32 v{ot}, v{t2}, 3, v{t0}
v_lshrrev_b32 v{t0}, 1, v{g}
v_mul_u32_u24 v{t0}, 2560, v{t0}
v_and_b32 v{t3}, 1, v{g}
v_lshl_add_u32 v{t0}, v{t3}, 7, v{t0}
v_lshl_add_u32 v{wr+1}, v{l16}, 3, v{t0}
v_add_u32 v{wr}, {WO1}, v{wr+1}
s_lshl_b32 s3, s{s_mt}, 7
s_lshl_b32 s4, s{s_w}, 4
s_add_u32 s3, s3, s4
s_mul_i32 s3, s3, 2560
s_mul_i32 s4, s{s_br}, 1280
s_add_u32 s3, s3, s4
s_mul_i32 s4, s{s_hg}, 160
s_add_u32 s32, s3, s4
v_mul_u32_u24 v{oa}, 2560, v{l16}
v_lshl_add_u32 v{oa}, v{g}, 3, v{oa}
s_mul_i32 s6, s{s_hg}, {4*RIH_B*CROT}
s_add_u32 s6, s6, s33
s_add_u32 s7, s33, {32*RIH_B}
s_mov_b32 s{SO}, s64
s_mov_b32 s{SO+1}, s65
s_mov_b32 s{SO+2}, {2048*2560}
s_mov_b32 s{SO+3}, 0x20000
s_waitcnt vmcnt(0)
s_barrier
""")
    stamp(a, 6)
    def rwo(st):
        b = WF + (st % 2) * 20
        reg, base = (wr, st * 5120) if st < NWO1 else (wr + 1, (st - NWO1) * 5120)
        return [[f"ds_read_b64_tr_b16 {vr(b+4*j,2)}, v{reg} offset:{base + j*256}",
                 f"ds_read_b64_tr_b16 {vr(b+4*j+2,2)}, v{reg} offset:{base + 1280 + j*256}"] for j in range(5)]
    for r in range(20): a(f"v_mov_b32 v{CA+r}, 0")
    for gl in rwo(0) + rwo(1):
        for l in gl: a(l)
    a("s_barrier")
    stamp2(a, 10)
    CD = int(os.environ.get("CD", "20"))
    oq = []
    def oload(st):
        if st < 16:
            a(f"buffer_load_dwordx4 {vr(OF+4*st,4)}, v{om}, {WS}, s6 offen {SC1}"); oq.append(st)
            if st < 15: a(f"s_add_u32 s6, s6, {2*RIH_B}\ns_cmp_eq_u32 s6, s7\ns_cselect_b32 s6, s33, s6")
            else: a(f"s_add_u32 s33, s33, 1024\ns_add_u32 s4, s33, {RIH_B}")
        elif st < 20:
            u = st - 16
            a(f"buffer_load_dwordx2 {vr(OF+64+4*u,2)}, v{ot}, {WS}, s33 offen {SC1}")
            a(f"buffer_load_dwordx2 {vr(OF+66+4*u,2)}, v{ot}, {WS}, s4 offen {SC1}"); oq.extend([st, st])
            if u < 3: a(f"s_add_u32 s33, s33, {8*RIH_B}\ns_add_u32 s4, s4, {8*RIH_B}")
    for st in range(CD): oload(st)
    pend = []
    for st in range(20):
        b = WF + (st % 2) * 20
        nl = len([x for x in oq if x > st])
        a(f"s_waitcnt vmcnt({nl})" + (" lgkmcnt(0)" if st == 0 else ""))
        if STAMPS and os.environ.get("CST") and st in (0, 8, 16):
            a(f"s_memrealtime s[{40+st//4}:{41+st//4}]")
        nxt_ = rwo(st + 2) if st + 2 < 20 else None
        for j in range(5):
            if (st, j) in pend:
                k = pend.index((st, j))
                n = 2 * (len(pend) - 1 - k)
                if n < 14 or j == 0 or True:
                    a(f"s_waitcnt lgkmcnt({min(n, 14)})")
                pend = pend[k+1:] if n <= 14 else pend[len(pend)-7:]
            a(f"v_mfma_f32_16x16x32_bf16 {vr(CA+4*j,4)}, {vr(b+4*j,4)}, {vr(OF+4*st,4)}, {vr(CA+4*j,4)}")
            if nxt_:
                for l in nxt_[j]: a(l)
                pend.append((st + 2, j))
            if j == 0: oload(st + CD)
    a("s_nop 7\ns_nop 3")
    stamp2(a, 11)
    if STAMPS and os.environ.get("CST"):
        b = SV[0]
        for n, r in enumerate((40, 42, 44)):
            a(f"v_mov_b32 v{b}, s{r}\nv_mov_b32 v{b+1}, s{r+1}\nbuffer_store_dwordx2 v[{b}:{b+1}], v{b+4}, s[72:75], s71 offen offset:{(13+n)*8}\ns_nop 4")
    for j in range(5):
        d = WF + 2 * j
        a(f"v_cvt_pk_bf16_f32 v{d}, v{CA+4*j}, v{CA+4*j+1}")
        a(f"v_cvt_pk_bf16_f32 v{d+1}, v{CA+4*j+2}, v{CA+4*j+3}")
        a(f"buffer_store_dwordx2 {vr(d,2)}, v{oa}, {srd(SO)}, s32 offen offset:{j*32}")
    if STAMPS:
        a("s_waitcnt vmcnt(0)")
        stamp(a, 7)
    a("s_endpgm")

    a.label("L_aux")
    aux_start = len(a.lines)
    SA_, SB_ = 80, 84
    wm_, wt_ = VB + 6, VB + 11
    def wo_addr():
        a(f"s_mul_i32 s7, s{s_hg}, 160")
        for i in range(5):
            a(f"""
v_add_u32 v{t0}, {4*i}, v{g}
v_mul_u32_u24 v{t1}, 205, v{t0}
v_lshrrev_b32 v{t1}, 10, v{t1}
v_mul_u32_u24 v{t2}, 5, v{t1}
v_sub_u32 v{t0}, v{t0}, v{t2}
v_lshlrev_b32 v{t0}, 5, v{t0}
v_and_b32 v{t2}, 1, v{lane}
v_lshl_add_u32 v{t0}, v{t2}, 4, v{t0}
v_add_u32 v{t0}, s7, v{t0}
v_bfe_u32 v{t2}, v{lane}, 1, 2
v_bfe_u32 v{t3}, v{lane}, 3, 1
v_lshrrev_b32 v{wm_+i}, 1, v{t1}
v_mul_u32_u24 v{wm_+i}, 20, v{wm_+i}
v_lshl_add_u32 v{wm_+i}, v{t3}, 3, v{wm_+i}
v_and_b32 v{wt_+i}, 1, v{t1}
v_lshl_add_u32 v{wm_+i}, v{wt_+i}, 2, v{wm_+i}
v_add_u32 v{wm_+i}, v{wm_+i}, v{t2}
v_mul_u32_u24 v{wm_+i}, 1280, v{wm_+i}
v_add_u32 v{wm_+i}, v{wm_+i}, v{t0}
v_lshrrev_b32 v{t1}, 1, v{t1}
v_lshl_add_u32 v{t1}, v{t1}, 1, v{t3}
v_lshl_add_u32 v{wt_+i}, v{t1}, 1, v{wt_+i}
v_mul_u32_u24 v{wt_+i}, 20, v{wt_+i}
v_add3_u32 v{wt_+i}, v{wt_+i}, v{t2}, 16
v_mul_u32_u24 v{wt_+i}, 1280, v{wt_+i}
v_add_u32 v{wt_+i}, v{wt_+i}, v{t0}
""")
    def signal(cnt_sgpr):
        a(f"""
s_lshl_b32 s3, s{cnt_sgpr}, 8
s_add_u32 s3, s3, {WS_CNT}
v_mov_b32 v{t0}, 0
v_mov_b32 v{t1}, 1
s_mov_b64 exec, 1
buffer_atomic_add v{t1}, v{t0}, {WS}, s3 offen sc1
s_mov_b64 exec, -1
""")
    if "cw" in XP:
        a(f"""
s_getpc_b64 s[4:5]
L_pc:
s_sub_u32 s4, s4, L_pc-{NAME}
s_subb_u32 s5, s5, 0
s_lshr_b32 s3, s2, 3
s_lshl_b32 s3, s3, 10
v_lshlrev_b32 v{t2}, 6, v{l16}
v_add_u32 v{t2}, s3, v{t2}
v_min_u32 v{t2}, L_end-{NAME}, v{t2}
s_mov_b64 exec, 0xffff
global_load_dword v{VB+2}, v{t2}, s[4:5]
s_mov_b64 exec, -1
""")
    a(f"""
s_setprio 3
v_mov_b32 v{t0}, 0
v_mov_b32 v{t1}, 1
s_cmp_ge_u32 s2, {NCNT}
s_cbranch_scc1 L_aux_noinit
s_lshl_b32 s3, s2, 8
s_add_u32 s3, s3, {WS_CNT}
s_mov_b64 exec, 1
buffer_store_dword v{t0}, v{t0}, {WS}, s3 offen sc1
s_waitcnt vmcnt(0)
buffer_atomic_add v{t1}, v{t0}, {srd(SDBG)}, 0 offen sc1
s_mov_b64 exec, -1
L_aux_noinit:
""")
    ca = VB + 24; cd = VB + 48
    for i in range(5):
        a(f"""
v_add_u32 v{t0}, {64*i}, v{lane}
v_mul_u32_u24 v{t1}, 3277, v{t0}
v_lshrrev_b32 v{t1}, 18, v{t1}
v_mul_u32_u24 v{t2}, 80, v{t1}
v_sub_u32 v{t2}, v{t0}, v{t2}
v_mul_u32_u24 v{t1}, {TILE_B}, v{t1}
v_lshl_add_u32 v{ca+i}, v{t2}, 4, v{t1}
v_cmp_le_u32 vcc, 64, v{t2}
v_mov_b32 v{t3}, 2048
v_mul_u32_u24 v{t1}, 205, v{t2}
v_cndmask_b32 v{t3}, 0, v{t3}, vcc
v_lshrrev_b32 v{t1}, 12, v{t1}
v_mul_u32_u24 v{t1}, 192, v{t1}
v_add_u32 v{t1}, 1024, v{t1}
s_cmp_ge_u32 s{s_c16}, 8
s_cselect_b64 vcc, -1, 0
v_cndmask_b32 v{t3}, v{t3}, v{t1}, vcc
v_add_u32 v{ca+i}, v{ca+i}, v{t3}
""")
    wo_addr()
    a(f"""
s_and_b32 s3, s{s_c16}, 7
s_lshl_b32 s3, s3, 8
s_lshl_b32 s4, s{s_mu}, 2
s_add_u32 s3, s3, s4
s_mul_i32 s26, s3, {TILE_B}
s_add_u32 s26, s26, {WS_KV}
v_lshlrev_b32 v{vdma}, 4, v{lane}
v_add_u32 v{VB+3}, {STG}, v{vdma}
v_mov_b32 v{VB+31}, 0
""")
    pfx, pfw = VB + 33, VB + 34
    PX, PW = [36, 16], [96, 20]
    s_px, s_pw, s_pws = [24, 25], [88, 89], [90, 91]
    if PFM == "aux":
        for rnd in range(2):
            a(f"""
s_add_u32 s3, s{s_br}, {rnd}
s_mul_i32 s4, s{s_hg}, 160
s_mul_i32 s5, s{s_c16}, 160
s_add_u32 s5, s5, 1280
s_cmp_eq_u32 s3, 1
s_cselect_b32 s7, s4, s5
s_cselect_b32 s4, s{s_mt}, s{s_mu}
s_lshl_b32 s4, s4, 7
s_lshl_b32 s5, s{s_hg}, 4
s_add_u32 s4, s4, s5
s_mul_i32 s{s_px[rnd]}, s4, 1280
s_movk_i32 s4, 3840
s_mov_b32 s5, {640*3840}
s_cmp_gt_u32 s{s_br}, {rnd}
s_cselect_b32 s6, 1280, s4
s_cselect_b32 s{PW[rnd]+2}, {640*1280}, s5
s_cselect_b32 s{PW[rnd]}, s56, s50
s_cselect_b32 s{PW[rnd]+1}, s57, s51
s_cselect_b32 s{PX[rnd]}, s54, s48
s_cselect_b32 s{PX[rnd]+1}, s55, s49
s_mov_b32 s{PX[rnd]+2}, {2048*1280}
s_mov_b32 s{PX[rnd]+3}, 0x20000
s_mov_b32 s{PW[rnd]+3}, 0x20000
s_bfe_u32 s5, s2, 0x20003
s_lshl_b32 s5, s5, 4
s_add_u32 s5, s5, {256 if rnd == 0 else 0}
s_mul_i32 s5, s5, s6
s_add_u32 s{s_pw[rnd]}, s5, s7
s_lshl_b32 s{s_pws[rnd]}, s6, 6
v_lshrrev_b32 v{pfw+rnd}, 2, v{lane}
v_mul_lo_u32 v{pfw+rnd}, v{pfw+rnd}, s6
v_and_b32 v{t3}, 3, v{lane}
v_lshlrev_b32 v{t3}, 6, v{t3}
v_min_u32 v{t2}, 156, v{t3}
v_add_u32 v{pfw+rnd}, v{pfw+rnd}, v{t2}
""")
        a(f"""
v_lshrrev_b32 v{pfx}, 2, v{lane}
v_mul_u32_u24 v{pfx}, 1280, v{pfx}
v_add_u32 v{pfx}, v{pfx}, v{t3}
""")
    auxq = []
    if PFM == "aux" and "l128" in XP:
        for rnd in range(2):
            a(f"""
s_lshr_b32 s6, s{s_pws[rnd]}, 6
v_lshrrev_b32 v{t0}, 5, v{lane}
v_lshlrev_b32 v{t0}, 6, v{t0}
v_bfe_u32 v{t1}, v{lane}, 1, 4
v_add_u32 v{t0}, v{t0}, v{t1}
v_mul_lo_u32 v{pfw+rnd}, v{t0}, s6
v_and_b32 v{t1}, 1, v{lane}
v_mul_u32_u24 v{t1}, 156, v{t1}
v_add_u32 v{pfw+rnd}, v{pfw+rnd}, v{t1}
s_lshl_b32 s{s_pws[rnd]}, s{s_pws[rnd]}, 1
""")
        a(f"v_add_u32 v{pfx}, v{pfx}, v{t3}")
    def pf(stage):
        if PFM != "aux" or stage >= 20: return
        r, st = divmod(stage, 10)
        if "l128" in XP:
            if st % 4 == 0:
                a(f"buffer_load_dword v{VB+4}, v{pfx}, {srd(PX[r])}, s{s_px[r]} offen offset:{min(128*st, 768)}"); auxq.append("p")
            if st % 2 == 0:
                a(f"buffer_load_dword v{VB+5}, v{pfw+r}, {srd(PW[r])}, s{s_pw[r]} offen {PPOL}"); auxq.append("p")
                a(f"s_add_u32 s{s_pw[r]}, s{s_pw[r]}, s{s_pws[r]}")
            return
        if st % 2 == 0:
            a(f"buffer_load_dword v{VB+4}, v{pfx}, {srd(PX[r])}, s{s_px[r]} offen offset:{128*st} {PPOL}"); auxq.append("p")
        a(f"buffer_load_dword v{VB+5}, v{pfw+r}, {srd(PW[r])}, s{s_pw[r]} offen {PPOL}"); auxq.append("p")
        a(f"s_add_u32 s{s_pw[r]}, s{s_pw[r]}, s{s_pws[r]}")
    a(f"""
s_mov_b32 s80, s58
s_mov_b32 s81, s59
s_mov_b32 s82, {640*40}
s_mov_b32 s83, 0x20000
s_mov_b32 s84, s60
s_mov_b32 s85, s61
s_mov_b32 s86, {640*40}
s_mov_b32 s87, 0x20000
""")
    def edma(st):
        a(f"s_cmp_eq_u32 s{s_br}, 0\ns_cbranch_scc1 L_e{st}\ns_add_u32 s5, s94, {st}\ns_cmp_ge_u32 s5, 10\ns_cselect_b32 s4, 10, 0\ns_sub_u32 s5, s5, s4\ns_mul_i32 s5, s5, 2560")
        for m, sr_ in enumerate((80, 84)):
            a(f"s_mov_b32 m0, {(st%4)*SL + 26624 + m*3072}\ns_nop 0")
            for n in range(3):
                a(f"buffer_load_dwordx4 v{vdma}, {srd(sr_)}, s5 offen offset:{n*1024} lds")
        a(f"L_e{st}:")
        auxq.extend([("e", st)] * 6)
    for st in range(4): edma(st)
    a(f"""
s_lshr_b32 s5, s2, 3
s_lshl_b32 s5, s5, 10
v_lshlrev_b32 v{t0}, 6, v{l16}
s_mov_b64 exec, 0xffff
buffer_load_dword v{VB+4}, v{t0}, s[80:83], s5 offen
buffer_load_dword v{VB+5}, v{t0}, s[84:87], s5 offen
s_mov_b64 exec, -1
""")
    auxq.extend(["p"] * 2)
    PRE = int(os.environ.get("PRE", "4"))
    for st in range(4, PRE): pf(st)
    nxt = [max(PRE, 4)]
    if os.environ.get("SKIP0"): nxt = [10]
    for k in range(0, 11):
        if k < 10:
            last = max(i for i, tg in enumerate(auxq) if tg == ("e", k))
            a(f"s_waitcnt vmcnt({min(len(auxq) - 1 - last, 63)})")
        a("s_barrier")
        if 1 <= k <= 6: edma(k + 3)
        if k == 5:
            a(f"buffer_load_dword v{VB+32}, v{VB+31}, {srd(SDBG)}, 0 offen sc1"); auxq.append("d")
        n = 0
        lim = k + LEAD
        if os.environ.get("SCHED"): lim = [int(x) for x in os.environ["SCHED"].split(",")][k]
        while nxt[0] <= lim and nxt[0] < 20 and n < PFN:
            pf(nxt[0]); nxt[0] += 1; n += 1
        if k == 9:
            a(f"""
s_mov_b32 s4, 0
s_waitcnt vmcnt({auxq[auxq.index("d"):].count("p")})
L_aux_chk:
v_cmp_ne_u32 vcc, {NCNT}, v{VB+32}
s_add_u32 s4, s4, 1
s_cmp_gt_u32 s4, {SPIN_MAX}
s_cbranch_scc1 L_aux_chkt
s_cbranch_vccz L_aux_chkd
s_sleep 4
buffer_load_dword v{VB+32}, v{VB+31}, {srd(SDBG)}, 0 offen sc1
s_waitcnt vmcnt(0)
s_branch L_aux_chk
L_aux_chkt:
""")
            diag(a, 0, VB + 32)
            a.label("L_aux_chkd")
    def copy_unit(lo, hi):
        for i in range(lo, hi):
            a(f"ds_read_b128 {vr(cd+4*i,4)}, v{VB+3} offset:{1024*i}")
        for i in range(lo, hi):
            a(f"s_waitcnt lgkmcnt({hi-1-i})")
            if i % 5 == 0: a(f"s_add_u32 s6, s26, {(i//5)*HEAD_B}")
            a(f"buffer_store_dwordx4 {vr(cd+4*i,4)}, v{ca+i%5}, {WS}, s6 offen {SC1}")
    a(f"s_cmp_eq_u32 s{s_br}, 0\ns_cbranch_scc0 L_aux_ex")
    copy_unit(0, 10)
    a("s_barrier")
    copy_unit(10, 20)
    a(f"s_barrier\ns_mov_b32 s4, s{s_c16}\ns_branch L_aux_sig0")
    a.label("L_aux_ex")
    pi16(t2)
    a(f"""
v_lshlrev_b32 v{t0}, 3, v{lane}
v_add_u32 v{t0}, {STGE}, v{t0}
ds_read_b64 {vr(cd,2)}, v{t0}
ds_read_b64 {vr(cd+2,2)}, v{t0} offset:512
ds_read_b64 {vr(cd+4,2)}, v{t0} offset:1024
ds_read_b64 {vr(cd+6,2)}, v{t0} offset:1536
s_lshl_b32 s3, s{s_mt}, 2
s_lshr_b32 s4, s{s_hg}, 1
s_add_u32 s3, s3, s4
s_mul_i32 s6, s3, {TILE_B}
s_add_u32 s6, s6, {WS_KV + 32*HEAD_B}
s_and_b32 s4, s{s_hg}, 1
s_lshl_b32 s5, s4, 4
v_add_u32 v{t2}, s5, v{t2}
v_lshrrev_b32 v{t3}, 1, v{g}
v_lshl_add_u32 v{t3}, v{t3}, 5, v{t2}
v_lshlrev_b32 v{t3}, 4, v{t3}
v_and_b32 v{t0}, 1, v{g}
v_lshl_add_u32 v{cd+8}, v{t0}, 3, v{t3}
v_lshlrev_b32 v{cd+9}, 3, v{t2}
v_lshrrev_b32 v{t3}, 1, v{g}
v_lshlrev_b32 v{t3}, 9, v{t3}
v_lshl_add_u32 v{t3}, v{t0}, 3, v{t3}
s_lshl_b32 s4, s4, 10
v_add_u32 v{t3}, s4, v{t3}
v_lshl_add_u32 v{cd+10}, v{l16}, 4, v{t3}
s_waitcnt lgkmcnt(0)
buffer_store_dwordx2 {vr(cd,2)}, v{cd+8}, {WS}, s6 offen {SC1}
buffer_store_dwordx2 {vr(cd+4,2)}, v{cd+10}, {WS}, s6 offen offset:1024 {SC1}
s_mov_b64 exec, 0xffff
buffer_store_dwordx2 {vr(cd+2,2)}, v{cd+9}, {WS}, s6 offen offset:3072 {SC1}
s_mov_b32 exec_lo, 0x000f000f
s_mov_b32 exec_hi, 0x000f000f
buffer_store_dwordx2 {vr(cd+6,2)}, v{cd+10}, {WS}, s6 offen offset:{1024+256} {SC1}
s_mov_b64 exec, -1
s_barrier
s_barrier
s_lshr_b32 s4, s{s_mt}, 1
s_add_u32 s4, s4, {C_EX}
L_aux_sig0:
s_mov_b32 s27, s4
s_barrier
""")
    a(f"""
s_cmp_eq_u32 s{s_br}, 0
s_cselect_b32 s{SB_}, s52, s62
s_cselect_b32 s{SB_+1}, s53, s63
s_mov_b32 s{SB_+2}, {640*1280}
s_mov_b32 s{SB_+3}, 0x20000
s_barrier
s_waitcnt vmcnt(0)
""")
    signal(27)
    img_base()
    a(f"""
s_add_u32 s{s_gd}, s{s_img}, {7*TILE_B}
""")
    a("""
s_barrier
s_barrier
s_barrier
s_barrier
s_barrier
s_barrier
""")
    s_wl, s_wg, s_sl = 25, 24, 27
    a(f"""
s_mov_b32 s{s_wl}, {WO1}
s_mul_i32 s{s_wg}, s{s_hg}, {80*1280*CROT}
s_mov_b32 s{s_sl}, {7*TS_B}
s_mov_b32 s{s_cnt}, 0
s_barrier
s_cmp_eq_u32 s{s_br}, 0
s_cbranch_scc0 L_pB
""")
    def wo_step(regs, rows):
        for i in range(5):
            a(f"s_add_u32 m0, s{s_wl}, {i*1024}\ns_nop 0")
            a(f"buffer_load_dwordx4 v{regs+i}, {srd(SB_)}, s{s_wg} offen lds")
        a(f"s_add_u32 s{s_wl}, s{s_wl}, 5120\ns_add_u32 s{s_wg}, s{s_wg}, {rows*1280}")
        if rows == 40: a(f"s_cmp_eq_u32 s{s_wg}, {640*1280}\ns_cselect_b32 s{s_wg}, 0, s{s_wg}")
    def one_tile(nh):
        for h in range(nh):
            if h: a(f"s_add_u32 s4, s{s_gd}, {h*HEAD_B}")
            for l in dma_tile(f"s_add_u32 m0, s{s_sl}, {h*SLOT_B}", 4 if h else s_gd): a(l)
        a(f"""
s_add_u32 s{s_gd}, s{s_gd}, {TILE_B}
s_add_u32 s{s_sl}, s{s_sl}, {TS_B}
s_cmp_eq_u32 s{s_sl}, {8*TS_B}
s_cselect_b32 s{s_sl}, 0, s{s_sl}
""")
    def producer(lab, nh):
        B_ = 8 * nh
        a(f"""
s_barrier
""")
        one_tile(nh); one_tile(nh)
        if nh == 1:
            copy_unit(0, 10); copy_unit(10, 20)
        else:
            a(f"""
v_and_b32 v{t2}, 1, v{lane}
v_lshlrev_b32 v{t2}, 3, v{t2}
v_add_u32 v{t2}, s{s_hg}, v{t2}
v_add_u32 v{t2}, 16, v{t2}
v_lshlrev_b32 v{t2}, 8, v{t2}
v_add_u32 v{t2}, {WS_CNT}, v{t2}
""")
        a(f"s_mov_b32 s{s_cnt}, 1")
        a.label(lab + "_w")
        a(f"s_waitcnt vmcnt({B_})\ns_barrier")
        a(f"s_cmp_lg_u32 s{s_cnt}, {2 if nh == 1 else 11}\ns_cbranch_scc1 {lab}_h")
        if nh == 1:
            a(f"s_add_u32 s4, s{s_c16}, 16")
            signal(4)
        else:
            poll(lab + "_late", 3, 8)
        a.label(lab + "_h")
        wo_step(wm_, 40)
        one_tile(nh); one_tile(nh)
        a(f"""
s_add_u32 s{s_cnt}, s{s_cnt}, 1
s_cmp_lt_u32 s{s_cnt}, {NWO1+1}
s_cbranch_scc1 {lab}_w
""")
        a.label(lab + "_n")
        a(f"s_waitcnt vmcnt({B_})\ns_barrier")
        one_tile(nh); one_tile(nh)
        a(f"""
s_add_u32 s{s_cnt}, s{s_cnt}, 1
s_cmp_lt_u32 s{s_cnt}, 28
s_cbranch_scc1 {lab}_n
s_waitcnt vmcnt({B_})
s_barrier
""")
        one_tile(nh)
        a(f"""
s_waitcnt vmcnt({B_//2})
s_barrier
s_waitcnt vmcnt(0)
s_barrier
""")
    producer("L_pA", 4)
    a("s_branch L_pend")
    a.label("L_pB")
    producer("L_pBq", 1)
    a.label("L_pend")
    a(f"s_mov_b32 s{s_wl}, 0")
    for _ in range(16 - NWO1): wo_step(wm_, 40)
    a(f"s_barrier\ns_mov_b32 s{s_wg}, 0")
    for _ in range(4): wo_step(wt_, 160)
    a(f"""
s_lshl_b32 s4, s{s_br}, 4
s_add_u32 s4, s4, s{s_mt}
s_add_u32 s4, s4, {C_O}
s_lshl_b32 s5, s4, 8
s_add_u32 s5, s5, {WS_CNT}
v_mov_b32 v{t2}, s5
s_barrier
""")
    signal(4)
    poll("L_poll2", 1, 8)
    a("s_barrier")
    if STAMPS:
        new = []
        stop = False
        for l in a.lines[aux_start:]:
            new.append(l)
            if l.strip().startswith("L_pA_w") or "L_pB" in l: stop = True
            if l.strip() == "s_barrier" and not stop:
                new += ["    s_memrealtime s[76:77]", "    s_waitcnt lgkmcnt(0)", "    s_mov_b32 m0, s100", "    s_nop 1", "    v_writelane_b32 v166, s76, m0", "    s_add_u32 s100, s100, 1"]
        a.lines[aux_start:] = ["    s_mov_b32 s100, 0", "    v_mov_b32 v166, 0"] + new
        a(f"""
s_getreg_b32 s76, hwreg(HW_REG_XCC_ID)
v_writelane_b32 v166, s76, 40
s_getreg_b32 s76, hwreg(HW_REG_HW_ID)
v_writelane_b32 v166, s76, 41
v_lshlrev_b32 v167, 2, v{lane}
s_lshl_b32 s71, s70, 1
buffer_store_dword v166, v167, s[72:75], s71 offen
""")
    a("s_endpgm")

    a.label("L_attn_slow")
    zero_off()
    a(f"""
v_and_b32 v{t3}, 31, v{lane}
v_cmp_eq_u32 s[46:47], 20, v{t3}
v_mov_b32 v{vA}, 0x3f803f80
v_mov_b32 v{vK}, 0x3f80
v_mov_b32 v{mx}, 0xff800000
v_mov_b32 v{mx+1}, 0xff800000
s_mov_b32 s{s_gd}, s{s_img}
s_mov_b32 s{s_cnt}, 0
L_attn_slow1:
buffer_load_dwordx4 {vr(K1[0],4)}, v{vdma}, {WS}, s{s_gd} offen {SC1}
buffer_load_dwordx2 {vr(K2[0],2)}, v{vt8}, {WS}, s{s_gd} offen offset:3072 {SC1}
s_waitcnt vmcnt(0)
v_cndmask_b32 v{K2[0]}, v{K2[0]}, v{vA}, {MHI}
v_cndmask_b32 v{K2[0]+1}, v{K2[0]+1}, v{vK}, {MHI}
s_nop 1
""")
    for x in range(2):
        for l in qk(x, 0): a(l)
    a("s_nop 7\ns_nop 7")
    for x in range(2):
        rowmax(x, mx + x, False)
    a(f"""
s_add_u32 s{s_gd}, s{s_gd}, {TILE_B}
s_add_u32 s{s_cnt}, s{s_cnt}, 1
s_cmp_lt_u32 s{s_cnt}, 64
s_cbranch_scc1 L_attn_slow1
""")
    for x in range(2):
        set_off(x, mx + x)
    for r in range(16):
        a(f"v_mov_b32 v{O[0]+r}, 0\nv_mov_b32 v{O[1]+r}, 0")
    a(f"""
s_mov_b32 s{s_gd}, s{s_img}
s_mov_b32 s{s_cnt}, 0
L_attn_slow2:
buffer_load_dwordx4 {vr(K1[0],4)}, v{vdma}, {WS}, s{s_gd} offen {SC1}
buffer_load_dwordx2 {vr(K2[0],2)}, v{vt8}, {WS}, s{s_gd} offen offset:3072 {SC1}
buffer_load_dwordx4 {vr(V0[0],4)}, v{vdma}, {WS}, s{s_gd} offen offset:1024 {SC1}
buffer_load_dwordx4 {vr(V1[0],4)}, v{vdma}, {WS}, s{s_gd} offen offset:2048 {SC1}
s_waitcnt vmcnt(0)
v_cndmask_b32 v{K2[0]}, v{K2[0]}, v{vA}, {MHI}
v_cndmask_b32 v{K2[0]+1}, v{K2[0]+1}, v{vK}, {MHI}
""")
    for r in range(4):
        a(f"v_cndmask_b32 v{V0[0]+r}, v{V0[0]+r}, v{vA}, s[46:47]")
        a(f"v_cndmask_b32 v{V1[0]+r}, v{V1[0]+r}, v{vA}, s[46:47]")
    a("s_nop 1")
    for x in range(2):
        for l in qk(x, 0): a(l)
    a("s_nop 7\ns_nop 7")
    for x in range(2):
        s_ = S[x]
        for i in range(16): a(f"v_exp_f32 v{s_+i}, v{s_+i}")
        a("s_nop 0")
        for i in range(8): a(f"v_cvt_pk_bf16_f32 v{P+i}, v{s_+2*i}, v{s_+2*i+1}")
        a("s_nop 1")
        a(f"v_mfma_f32_32x32x16_bf16 {vr(O[x],16)}, {vr(V0[0],4)}, {vr(P,4)}, {vr(O[x],16)}")
        a(f"v_mfma_f32_32x32x16_bf16 {vr(O[x],16)}, {vr(V1[0],4)}, {vr(P+4,4)}, {vr(O[x],16)}")
    a(f"""
s_add_u32 s{s_gd}, s{s_gd}, {TILE_B}
s_add_u32 s{s_cnt}, s{s_cnt}, 1
s_cmp_lt_u32 s{s_cnt}, 64
s_cbranch_scc1 L_attn_slow2
s_nop 7
s_nop 7
""")
    for x in range(2):
        getl(x, mx + x)
    a("s_branch L_attn_fin")
    a.label("L_end")
    a("s_endpgm")
    nv = 168 if STAMPS else 160
    a(f""".section .rodata,"a"
.p2align 6
.amdhsa_kernel {NAME}
  .amdhsa_next_free_vgpr {nv}
  .amdhsa_next_free_sgpr 102
  .amdhsa_accum_offset {nv}
  .amdhsa_group_segment_fixed_size 0
  .amdhsa_kernarg_size 88
  .amdhsa_user_sgpr_count 2
  .amdhsa_user_sgpr_kernarg_segment_ptr 1
  .amdhsa_system_sgpr_workgroup_id_x 1
.end_amdhsa_kernel
""")

if __name__ == "__main__":
    import sys
    REF = open('concat_heads__softmax_full_mha__grouped_kv_mqa__prompt.s.ref').read()
    hdr = [l for l in REF.split("\n") if l.startswith(";") and "@launch" not in l]
    a = Asm()
    a('.amdgcn_target "amdgcn-amd-amdhsa--gfx950"\n.text')
    gen(a)
    out = "\n".join(hdr) + f"\n; @launch grid=(256,1,1) block=(576,1,1) lds={LDS_BYTES}\n" + a.text()
    path = sys.argv[1] if len(sys.argv) > 1 else 'concat_heads__softmax_full_mha__grouped_kv_mqa__prompt.s'
    open(path, 'w').write(out)
    open('launches_f.txt', 'w').write(f"{NAME} 256 1 1 576 1 1 {LDS_BYTES}\n")
```

```python
from asmlib import *
import struct, math, os

NAME = "concat_heads__softmax_full_mha__grouped_kv_mqa__prompt_kernel"
RI_B = 1280
RIH_B = 64 * RI_B
WS_O = 0x500000
WS_KV = 0xA00000
TILE_B = 3328
HEAD_B = 64 * TILE_B
WS_CNT = 0x10C0000
WS_SIZE = 268435456
C_KV, C_EX, C_O, NCNT = 0, 32, 40, 72
QSCALE = math.log2(math.e) / math.sqrt(20.0)
def f32bits(x): return struct.unpack("<I", struct.pack("<f", x))[0]
NST = 10
SL = 32768
STG = 4 * SL
SLOT_B = TILE_B + 16
TS_B = 4 * SLOT_B
WO1 = 8 * TS_B
STGE = STG + 16 * RI_B
NWO1 = 11
LDS_BYTES = 163840
assert WO1 + NWO1 * 5120 <= LDS_BYTES
SPIN_MAX = 60000
SC1 = "sc1"
XP = os.environ.get("EXPT", "")
APOL = os.environ.get("APOL", "")
PPOL = os.environ.get("PPOL", "")
ROT = int(os.environ.get("ROT", "4"))
CROT = int(os.environ.get("CROT", "1"))
PFM = os.environ.get("PFM", "none")
LEAD = int(os.environ.get("LEAD", "20"))
PFN = int(os.environ.get("PFN", "4"))

def stamp2(a, idx):
    if not STAMPS: return
    b = SV[0]
    a(f"""
s_memrealtime s[76:77]
s_add_u32 s71, s70, 0x80000
s_waitcnt lgkmcnt(0)
v_mov_b32 v{b}, s76
v_mov_b32 v{b+1}, s77
buffer_store_dwordx2 v[{b}:{b+1}], v{b+4}, s[72:75], s71 offen offset:{idx*8}
""")

DIAG = os.environ.get("DIAG") == "1"
def diag(a, idx, vreg):
    if not DIAG: return
    a(f"""
s_or_b32 s101, s2, 0xdead0000
v_mov_b32 v158, s101
v_mov_b32 v159, {WS_CNT + 0x8000 + idx*1024}
v_mbcnt_lo_u32_b32 v157, -1, 0
v_mbcnt_hi_u32_b32 v157, -1, v157
v_lshl_add_u32 v159, v157, 3, v159
buffer_store_dword v158, v159, s[8:11], 0 offen
buffer_store_dword v{vreg}, v159, s[8:11], 0 offen offset:4
""")

def gen(a):
    a(f".globl {NAME}\n.p2align 8\n.type {NAME},@function")
    a.label(NAME)
    srd = lambda r: f"s[{r}:{r+3}]"
    WS = "s[8:11]"
    s_w, s_br, s_hg, s_mt, s_c16, s_mu = 12, 13, 14, 15, 32, 33
    s_cnt, s_slot, s_rnd, s_type = 34, 35, 36, 37
    MV, MK, MHI = "s[40:41]", "s[42:43]", "s[44:45]"
    SX, SDBG = 16, 28
    lane, l16, g, t0, t1, t2, t3 = 1, 2, 3, 4, 5, 6, 7
    VB = 8
    Q1 = [148, 152]; Q2 = [156, 158]

    ROTC = {
        0: "s_mov_b32 s94, 0",
        1: f"s_mul_i32 s94, s6, 3\ns_add_u32 s94, s94, s{s_hg}\ns_cmp_ge_u32 s94, 10\ns_cselect_b32 s5, 10, 0\ns_sub_u32 s94, s94, s5",
        2: f"s_add_u32 s94, s6, s{s_hg}\ns_and_b32 s94, s94, 3\ns_mul_i32 s94, s94, 3",
        3: f"s_add_u32 s94, s6, s{s_hg}\ns_and_b32 s94, s94, 1\ns_mul_i32 s94, s94, 5",
        4: f"s_add_u32 s94, s6, s{s_hg}\ns_and_b32 s94, s94, 3\ns_mul_i32 s94, s94, 5\ns_lshr_b32 s94, s94, 1",
        5: f"s_lshl_b32 s94, s6, 1\ns_add_u32 s94, s94, s{s_hg}\ns_mul_i32 s5, s94, 52\ns_lshr_b32 s5, s5, 8\ns_mul_i32 s5, s5, 5\ns_sub_u32 s94, s94, s5\ns_lshl_b32 s94, s94, 1",
        6: f"s_add_u32 s94, s6, s{s_hg}\ns_mul_i32 s5, s94, 86\ns_lshr_b32 s5, s5, 8\ns_mul_i32 s5, s5, 3\ns_sub_u32 s94, s94, s5\ns_mul_i32 s94, s94, 7\ns_lshr_b32 s94, s94, 1",
        7: f"s_lshr_b32 s94, s{s_hg}, 1\ns_add_u32 s94, s6, s94\ns_and_b32 s94, s94, 3\ns_mul_i32 s94, s94, 5\ns_lshr_b32 s94, s94, 1",
    }[ROT]
    SCR = "s_and_b32 s3, s2, 31\ns_lshl_b32 s3, s3, 3\ns_lshr_b32 s2, s2, 5\ns_or_b32 s2, s2, s3" if "scr" in XP else "s_nop 0"
    a(f"""
s_cmp_ge_u32 s2, 256
s_cbranch_scc1 L_end
{SCR}
s_load_dwordx16 s[48:63], s[0:1], 0
s_load_dwordx4 s[64:67], s[0:1], 64
s_load_dwordx2 s[68:69], s[0:1], 80
v_lshrrev_b32 v{t0}, 6, v0
v_and_b32 v{lane}, 63, v0
v_readfirstlane_b32 s{s_w}, v{t0}
v_and_b32 v{l16}, 15, v0
v_bfe_u32 v{g}, v0, 4, 2
s_bfe_u32 s{s_br}, s2, 0x10002
s_and_b32 s3, s2, 3
s_bfe_u32 s6, s2, 0x20003
s_lshr_b32 s{s_hg}, s2, 5
s_lshl_b32 s5, s3, 2
s_add_u32 s{s_mt}, s5, s6
s_lshr_b32 s5, s3, 1
s_lshl_b32 s5, s5, 3
s_add_u32 s{s_c16}, s5, s{s_hg}
s_and_b32 s5, s3, 1
s_lshl_b32 s5, s5, 2
s_add_u32 s5, s5, s6
s_lshl_b32 s7, s{s_br}, 3
s_add_u32 s{s_mu}, s5, s7
{ROTC}
s_mov_b32 s10, {WS_SIZE}
s_mov_b32 s11, 0x20000
s_mov_b32 s{SDBG+2}, 256
s_mov_b32 s{SDBG+3}, 0x20000
s_mov_b32 s40, 0x000fffff
s_mov_b32 s41, 0x000fffff
s_mov_b32 s42, 0xffff
s_mov_b32 s43, 0
s_mov_b32 s44, 0
s_mov_b32 s45, -1
s_mov_b32 s{s_rnd}, 0
s_waitcnt lgkmcnt(0)
s_mov_b32 s8, s68
s_mov_b32 s9, s69
s_mov_b32 s{SDBG}, s66
s_mov_b32 s{SDBG+1}, s67
""")
    stamp_setup(a, 0, s_w, 68, 160)
    stamp(a, 0)
    a(f"""
s_cmp_lt_u32 s{s_w}, 4
s_cbranch_scc1 L_comp
s_cmp_eq_u32 s{s_w}, 8
s_cbranch_scc1 L_aux
""")
    xd = VB; gd = VB + 4; grow = VB + 8; gcol = VB + 12
    SW = 20
    s_xs, s_gs, s_gst, s_lx, s_lg, s_ldw = 88, 89, 90, 38, 39, 46
    s_lw = 47
    a(f"""
s_sub_u32 s{s_lw}, s{s_w}, 4
v_lshrrev_b32 v{t0}, 3, v{lane}
v_and_b32 v{t1}, 7, v{lane}
v_xor_b32 v{t2}, v{t1}, v{t0}
v_lshlrev_b32 v{t2}, 4, v{t2}
s_lshl_b32 s3, s{s_lw}, 5
v_add_u32 v{t3}, s3, v{t0}
v_mul_u32_u24 v{t3}, 1280, v{t3}
v_add_u32 v{xd}, v{t3}, v{t2}
v_add_u32 v{xd+1}, 10240, v{xd}
v_add_u32 v{xd+2}, 20480, v{xd}
v_add_u32 v{xd+3}, 30720, v{xd}
s_lshl_b32 s{s_lx}, s{s_lw}, 12
s_mul_i32 s4, s{s_lw}, 3
s_lshl_b32 s5, s{s_lw}, 1
s_add_u32 s5, s5, 2
s_min_u32 s91, s4, s5
s_lshl_b32 s{s_lg}, s91, 10
s_add_u32 s{s_lg}, s{s_lg}, 16384
s_mov_b32 s{SW+3}, 0x20000
s_mov_b32 s{SX+2}, {2048*1280}
s_mov_b32 s{SX+3}, 0x20000
s_mov_b32 s{s_slot}, 0
""")
    def ld_x_round():
        a(f"""
s_add_u32 s3, s{s_br}, s{s_rnd}
s_cmp_eq_u32 s3, 1
s_cselect_b32 s4, s{s_mt}, s{s_mu}
s_mul_i32 s{s_xs}, s4, {128*1280}
s_lshl_b32 s4, s94, 7
s_add_u32 s{s_xs}, s{s_xs}, s4
s_mov_b32 s95, s94
s_cmp_gt_u32 s{s_br}, s{s_rnd}
s_cselect_b32 s{SX}, s54, s48
s_cselect_b32 s{SX+1}, s55, s49
""")
    def xdma():
        o = []
        for i in range(4):
            o += [f"s_add_u32 m0, s{s_lx}, {i*1024}", "s_nop 0", f"buffer_load_dwordx4 v{xd+i}, {srd(SX)}, s{s_xs} offen {APOL} lds"]
        return o
    ld_x_round()
    for l in xdma(): a(l)
    for j in range(3):
        a(f"""
s_add_u32 s3, s91, {j}
s_cmp_ge_u32 s3, 5
s_cselect_b32 s4, 5, 0
s_cselect_b32 s5, 32, 0
s_sub_u32 s4, s3, s4
s_lshl_b32 s4, s4, 2
v_add_u32 v{t0}, s4, v{g}
v_mul_u32_u24 v{t1}, 205, v{t0}
v_lshrrev_b32 v{t1}, 10, v{t1}
v_mul_u32_u24 v{t2}, 5, v{t1}
v_sub_u32 v{t0}, v{t0}, v{t2}
v_lshlrev_b32 v{t0}, 5, v{t0}
v_and_b32 v{t2}, 1, v{lane}
v_lshl_add_u32 v{gcol+j}, v{t2}, 4, v{t0}
v_lshrrev_b32 v{t0}, 1, v{t1}
v_lshlrev_b32 v{t0}, 4, v{t0}
v_and_b32 v{t1}, 1, v{t1}
v_lshl_add_u32 v{t0}, v{t1}, 2, v{t0}
v_bfe_u32 v{t1}, v{lane}, 3, 1
v_lshl_add_u32 v{t0}, v{t1}, 3, v{t0}
v_bfe_u32 v{t1}, v{lane}, 1, 2
v_add3_u32 v{grow+j}, v{t0}, v{t1}, s5
""")
    def ld_g_round(tag):
        a(f"""
s_add_u32 s3, s{s_br}, s{s_rnd}
s_mul_i32 s4, s{s_hg}, 160
s_mul_i32 s5, s{s_c16}, 160
s_add_u32 s5, s5, 1280
s_cmp_eq_u32 s3, 1
s_cselect_b32 s{s_gs}, s4, s5
s_movk_i32 s4, 3840
s_mov_b32 s5, {640*3840}
s_cmp_gt_u32 s{s_br}, s{s_rnd}
s_cselect_b32 s{s_ldw}, 1280, s4
s_cselect_b32 s{SW+2}, {640*1280}, s5
s_cselect_b32 s{SW}, s56, s50
s_cselect_b32 s{SW+1}, s57, s51
s_lshl_b32 s{s_gst}, s{s_ldw}, 6
s_mul_i32 s4, s{s_gst}, s94
s_add_u32 s{s_gs}, s{s_gs}, s4
s_mul_i32 s96, s{s_gst}, 10
""")
        for j in range(3):
            a(f"v_mad_u32_u24 v{gd+j}, v{grow+j}, s{s_ldw}, v{gcol+j}")
    gd_n = [0]
    def gdma():
        o = []
        for j in range(3):
            if j == 2:
                gd_n[0] += 1
                o += [f"s_cmp_ge_u32 s{s_lw}, 2", f"s_cbranch_scc1 L_g2_{gd_n[0]}"]
            o += [f"s_add_u32 m0, s{s_lg}, {j*1024}", "s_nop 0", f"buffer_load_dwordx4 v{gd+j}, {srd(SW)}, s{s_gs} offen {APOL} lds"]
        o.append(f"L_g2_{gd_n[0]}:")
        return o
    def ladv(lab):
        a(f"s_add_u32 s{s_xs}, s{s_xs}, 128")
        a(f"""
s_add_u32 s{s_gs}, s{s_gs}, s{s_gst}
s_add_u32 s95, s95, 1
s_cmp_eq_u32 s95, 10
s_cselect_b32 s4, 1280, 0
s_cselect_b32 s5, s96, 0
s_cselect_b32 s95, 0, s95
s_sub_u32 s{s_xs}, s{s_xs}, s4
s_sub_u32 s{s_gs}, s{s_gs}, s5
""")
        a(f"""
s_add_u32 s{s_lx}, s{s_lx}, {SL}
s_add_u32 s{s_lg}, s{s_lg}, {SL}
s_and_b32 s{s_lx}, s{s_lx}, {4*SL-1}
s_and_b32 s{s_lg}, s{s_lg}, {4*SL-1}
s_add_u32 s{s_cnt}, s{s_cnt}, 1
""")
    D = 6
    pv = VB + 16
    a(f"""
v_and_b32 v{t2}, 1, v{lane}
v_lshlrev_b32 v{t2}, 3, v{t2}
v_add_u32 v{t2}, s{s_hg}, v{t2}
v_and_b32 v{t3}, 7, v{lane}
v_add_u32 v{t3}, {C_EX}, v{t3}
s_cmp_eq_u32 s{s_br}, 0
s_cselect_b64 vcc, -1, 0
s_cselect_b32 s92, 8, 16
v_cndmask_b32 v{t2}, v{t3}, v{t2}, vcc
v_lshlrev_b32 v{t2}, 8, v{t2}
v_add_u32 v{pv}, {WS_CNT}, v{t2}
v_mov_b32 v{pv+1}, 0
s_mul_i32 s3, s{s_br}, s{s_lw}
s_cmp_eq_u32 s3, 0
s_cselect_b32 s93, {2*NST-1}, 99
""")
    ld_g_round("a")
    for l in gdma(): a(l)
    a(f"s_mov_b32 s{s_cnt}, 0")
    ladv("")
    a.label("L_ld_pro")
    for l in xdma() + gdma(): a(l)
    ladv("")
    a(f"""
s_cmp_lt_u32 s{s_cnt}, 4
s_cbranch_scc1 L_ld_pro
s_waitcnt vmcnt({3*D})
s_barrier
L_ld_loop:
s_cmp_lg_u32 s{s_cnt}, {NST}
s_cbranch_scc1 L_ld_same
s_mov_b32 s{s_rnd}, 1
""")
    ld_x_round()
    ld_g_round("b")
    a(f"""
L_ld_same:
s_waitcnt vmcnt({2*D})
s_barrier
""")
    a(f"""
s_cmp_lg_u32 s{s_cnt}, 13
s_cbranch_scc1 L_ld_noq
s_cmp_eq_u32 s{s_br}, 0
s_cbranch_scc1 L_ld_noq
""")
    def read_q():
        a(f"""
s_mul_i32 s3, s{s_w}, {2*RI_B}
s_add_u32 s3, s3, {STG}
v_lshlrev_b32 v{t0}, 4, v{lane}
v_add_u32 v{t0}, s3, v{t0}
v_and_b32 v{t1}, 31, v{lane}
v_lshlrev_b32 v{t1}, 3, v{t1}
v_add_u32 v{t1}, s3, v{t1}
ds_read_b128 {vr(Q1[0],4)}, v{t0}
ds_read_b64 {vr(Q2[0],2)}, v{t1} offset:1024
ds_read_b128 {vr(Q1[1],4)}, v{t0} offset:{RI_B}
ds_read_b64 {vr(Q2[1],2)}, v{t1} offset:{RI_B+1024}
s_waitcnt lgkmcnt(0)
""")
    read_q()
    a.label("L_ld_noq")
    a(f"""
s_cmp_lg_u32 s{s_cnt}, s93
s_cbranch_scc1 L_ld_nop
buffer_load_dword v{pv+1}, v{pv}, {WS}, 0 offen sc1
L_ld_nop:
""")
    if "nodma" not in XP:
        for l in xdma() + gdma(): a(l)
    ladv("")
    a(f"""
s_cmp_lt_u32 s{s_cnt}, {2*NST}
s_cbranch_scc1 L_ld_loop
""")
    vdma = VB; cst = VB + 4
    s_img, s_gd, s_nh = 20, 21, 22
    def poll(lab, execmask, want):
        a(f"""
s_mov_b64 exec, {execmask}
s_mov_b32 s3, 0
{lab}:
buffer_load_dword v{t3}, v{t2}, {WS}, 0 offen sc1
s_waitcnt vmcnt(0)
v_cmp_ne_u32 vcc, {want}, v{t3}
s_add_u32 s3, s3, 1
s_cmp_gt_u32 s3, {SPIN_MAX}
s_cbranch_scc1 {lab}_t
s_cbranch_vccz {lab}_d
s_sleep 2
s_branch {lab}
{lab}_t:
""")
        diag(a, 2 if "late" in lab else 3, t3)
        a(f"""
{lab}_d:
s_mov_b64 exec, -1
""")
    def dma_tile(m0expr, s_g):
        return [m0expr,
                f"s_mov_b64 exec, {MV}",
                f"buffer_load_dwordx4 v{vdma}, {WS}, s{s_g} offen offset:1024 {SC1} lds",
                f"buffer_load_dwordx4 v{vdma}, {WS}, s{s_g} offen offset:2048 {SC1} lds",
                f"s_mov_b64 exec, {MK}",
                f"buffer_load_dwordx4 v{vdma}, {WS}, s{s_g} offen offset:3072 {SC1} lds",
                f"s_mov_b64 exec, -1",
                f"buffer_load_dwordx4 v{vdma}, {WS}, s{s_g} offen {SC1} lds"]
    def img_base():
        a(f"""
s_lshl_b32 s3, s{s_hg}, 2
s_cmp_eq_u32 s{s_br}, 0
s_cselect_b32 s3, s3, 32
s_cselect_b32 s{s_nh}, 4, 1
s_mul_i32 s{s_img}, s3, {HEAD_B}
s_add_u32 s{s_img}, s{s_img}, {WS_KV}
v_lshlrev_b32 v{vdma}, 4, v{lane}
""")
    def consts(*ts):
        a("s_mov_b32 exec_hi, 0x1ffff")
        for t in ts:
            a(f"ds_write_b128 v{VB + 1 if t < 4 else VB + 2}, {vr(cst,4)} offset:{(t % 4) * TS_B}")
        a("s_mov_b32 exec_hi, -1")
    def first_tile(t):
        for l in dma_tile(f"s_add_u32 m0, s23, {t*TS_B}", s_gd): a(l)
        a(f"s_add_u32 s{s_gd}, s{s_gd}, {TILE_B}")
    img_base()
    a(f"""
s_cmp_ge_u32 s{s_lw}, s{s_nh}
s_cbranch_scc1 L_ld_idle0
s_mul_i32 s3, s{s_lw}, {HEAD_B}
s_add_u32 s{s_gd}, s{s_img}, s3
s_mul_i32 s23, s{s_lw}, {SLOT_B}
v_mul_u32_u24 v{t0}, 43, v{lane}
v_lshrrev_b32 v{t0}, 9, v{t0}
v_mul_u32_u24 v{t1}, 12, v{t0}
v_sub_u32 v{t1}, v{lane}, v{t1}
v_lshlrev_b32 v{t0}, 9, v{t0}
v_lshl_add_u32 v{t0}, v{t1}, 4, v{t0}
v_add_u32 v{t0}, {1024+320}, v{t0}
v_min_u32 v{t0}, {TILE_B}, v{t0}
v_add_u32 v{VB+1}, s23, v{t0}
v_cmp_eq_u32 vcc, 0, v{t1}
v_mov_b32 v{t2}, 0x3f803f80
v_mov_b32 v{t3}, 0x3f80
v_cndmask_b32 v{cst}, 0, v{t2}, vcc
v_cndmask_b32 v{cst+2}, 0, v{t2}, vcc
v_cndmask_b32 v{cst+3}, 0, v{t2}, vcc
v_cmp_eq_u32 vcc, 48, v{lane}
s_nop 1
v_cndmask_b32 v{cst+1}, v{cst}, v{t3}, vcc
v_add_u32 v{VB+2}, {4*TS_B}, v{VB+1}
s_waitcnt vmcnt({2*D})
s_barrier
s_waitcnt vmcnt({D})
v_cmp_ne_u32 vcc, s92, v{pv+1}
s_and_b32 s3, vcc_lo, 0xff
s_cbranch_scc1 L_ld_slow
""")
    first_tile(0); first_tile(1); consts(0, 1)
    a("s_barrier")
    first_tile(2); first_tile(3); consts(2, 3)
    a("s_waitcnt vmcnt(16)\ns_barrier")
    first_tile(4)
    a("s_barrier\ns_branch L_ld_fin")
    a.label("L_ld_slow")
    consts(0, 1)
    a(f"""
s_barrier
buffer_load_dword v{pv+1}, v{pv}, {WS}, 0 offen sc1
""")
    consts(2, 3)
    a(f"""
s_waitcnt vmcnt(1)
s_barrier
s_mov_b32 s4, 0
L_pollL:
s_waitcnt vmcnt(0)
v_cmp_ne_u32 vcc, s92, v{pv+1}
s_add_u32 s4, s4, 1
s_cmp_gt_u32 s4, {SPIN_MAX}
s_cbranch_scc1 L_pollL_t
s_and_b32 s3, vcc_lo, 0xff
s_cbranch_scc0 L_pollL_d
s_sleep 1
buffer_load_dword v{pv+1}, v{pv}, {WS}, 0 offen sc1
s_branch L_pollL
L_pollL_t:
""")
    diag(a, 1, pv + 1)
    a.label("L_pollL_d")
    for t in range(3): first_tile(t)
    a("s_barrier")
    for t in range(3, 5): first_tile(t)
    a.label("L_ld_fin")
    consts(4, 5, 6, 7)
    a("s_mov_b32 s18, 1")
    a(f"""
s_waitcnt lgkmcnt(0)
s_branch L_join
L_ld_idle0:
s_mov_b32 s18, 0
s_waitcnt vmcnt({2*D})
s_barrier
s_waitcnt vmcnt({D})
s_barrier
s_waitcnt vmcnt(0)
s_barrier
s_barrier
s_branch L_join
""")

    a.label("L_comp")
    V = Regs(VB, 147, "v")
    xa = V.alloc("xa", 2); xe = V.alloc("xe", 2); wr_ = V.alloc("wr"); er = V.alloc("er")
    sa = V.alloc("sa", 10)
    sn = V.alloc("sn", 5)
    acc0 = V.alloc("acc", 44, 4); xf0 = V.alloc("xf", 24, 4); wf0 = V.alloc("wf", 24, 4); ep = V.alloc("ep", 12, 4)
    acc = lambda i, j: acc0 + (i * 5 + j) * 4
    acce = acc0 + 40
    xf = lambda st, i: xf0 + (st * 3 + i) * 4
    wf = lambda j: wf0 + j * 4
    a(f"""
v_and_b32 v{t0}, 7, v{l16}
v_xor_b32 v{t0}, v{t0}, v{g}
v_lshlrev_b32 v{t0}, 4, v{t0}
v_lshl_add_u32 v{t0}, v{l16}, 7, v{t0}
s_lshl_b32 s3, s{s_w}, 12
v_add_u32 v{xa}, s3, v{t0}
v_xor_b32 v{xa+1}, 64, v{xa}
s_lshl_b32 s3, s{s_hg}, 11
v_add_u32 v{xe}, s3, v{t0}
v_xor_b32 v{xe+1}, 64, v{xe}
v_lshrrev_b32 v{t0}, 1, v{g}
v_mul_u32_u24 v{t0}, 2560, v{t0}
v_and_b32 v{t1}, 1, v{g}
v_lshl_add_u32 v{t0}, v{t1}, 7, v{t0}
v_lshl_add_u32 v{t0}, v{l16}, 3, v{t0}
v_add_u32 v{wr_}, 16384, v{t0}
v_lshrrev_b32 v{t0}, 2, v{l16}
v_lshl_add_u32 v{t0}, v{g}, 3, v{t0}
v_mul_u32_u24 v{t0}, 40, v{t0}
v_and_b32 v{t1}, 3, v{l16}
v_lshl_add_u32 v{t0}, v{t1}, 3, v{t0}
s_lshr_b32 s3, s{s_w}, 1
s_mul_i32 s3, s3, 3072
s_and_b32 s4, s{s_w}, 1
s_lshl_b32 s4, s4, 5
s_add_u32 s3, s3, s4
s_add_u32 s3, s3, {16384+10240}
v_add_u32 v{er}, s3, v{t0}
s_mov_b32 s{s_slot}, 0
s_mov_b32 s46, 0
""")
    def pi16(dst):
        a(f"""
v_and_b32 v{dst}, 3, v{l16}
v_bfe_u32 v{t3}, v{l16}, 2, 1
v_lshl_add_u32 v{dst}, v{t3}, 3, v{dst}
v_bfe_u32 v{t3}, v{l16}, 3, 1
v_lshl_add_u32 v{dst}, v{t3}, 2, v{dst}
""")
    a(f"s_mul_i32 s4, s{s_w}, {RI_B}\ns_add_u32 s4, s4, {STG}")
    pi16(t2)
    for j in range(5):
        a(f"""
v_add_u32 v{t0}, {4*j}, v{g}
v_mul_u32_u24 v{t1}, 205, v{t0}
v_lshrrev_b32 v{t1}, 10, v{t1}
v_mul_u32_u24 v{t3}, 5, v{t1}
v_sub_u32 v{t0}, v{t0}, v{t3}
v_mul_u32_u24 v{t1}, {4*RI_B}, v{t1}
v_lshrrev_b32 v{t3}, 1, v{t0}
v_lshl_add_u32 v{t3}, v{t3}, 5, v{t2}
v_lshlrev_b32 v{t3}, 4, v{t3}
v_and_b32 v{ep}, 1, v{t0}
v_lshl_add_u32 v{t3}, v{ep}, 3, v{t3}
v_lshlrev_b32 v{ep}, 3, v{t2}
v_add_u32 v{ep}, 1024, v{ep}
v_cmp_eq_u32 vcc, 4, v{t0}
v_mov_b32 v{ep+1}, 256
v_mov_b32 v{ep+2}, 128
v_cndmask_b32 v{t3}, v{t3}, v{ep}, vcc
v_cndmask_b32 v{ep+1}, v{ep+1}, v{ep+2}, vcc
v_add3_u32 v{sa+2*j}, v{t1}, v{t3}, s4
v_add_u32 v{sa+2*j+1}, v{sa+2*j}, v{ep+1}
""")
    a(f"""
v_lshrrev_b32 v{t2}, 1, v{g}
v_mul_u32_u24 v{t2}, 320, v{t2}
v_and_b32 v{t3}, 1, v{g}
v_lshl_add_u32 v{t2}, v{t3}, 3, v{t2}
""")
    for j in range(5):
        a(f"""
v_add_u32 v{t0}, {16*j}, v{l16}
v_mul_u32_u24 v{t1}, 205, v{t0}
v_lshrrev_b32 v{t1}, 12, v{t1}
v_mul_u32_u24 v{t3}, 20, v{t1}
v_sub_u32 v{t0}, v{t0}, v{t3}
v_mul_u32_u24 v{t1}, {4*RI_B}, v{t1}
v_lshl_add_u32 v{t0}, v{t0}, 4, v{t2}
v_add3_u32 v{sn+j}, v{t0}, v{t1}, s4
""")
    for r in range(44): a(f"v_mov_b32 v{acc0+r}, 0")
    JK = 147
    if PFM == "comp":
        a(f"""
v_lshrrev_b32 v{ep}, 2, v{lane}
v_and_b32 v{t3}, 3, v{lane}
v_lshlrev_b32 v{t3}, 6, v{t3}
v_mul_u32_u24 v{ep+1}, 1280, v{ep}
v_add_u32 v{ep+1}, v{ep+1}, v{t3}
v_min_u32 v{t3}, 156, v{t3}
s_mov_b32 s18, {2048*1280}
s_mov_b32 s19, 0x20000
s_mov_b32 s23, 0x20000
""")
        for rnd in range(2):
            nrow = 24 if rnd == 0 else 40
            a(f"""
s_add_u32 s3, s{s_br}, {rnd}
s_mul_i32 s4, s{s_hg}, 160
s_mul_i32 s5, s{s_c16}, 160
s_add_u32 s5, s5, 1280
s_cmp_eq_u32 s3, 1
s_cselect_b32 s7, s4, s5
s_cselect_b32 s4, s{s_mt}, s{s_mu}
s_lshl_b32 s4, s4, 7
s_lshl_b32 s5, s{s_hg}, 4
s_add_u32 s4, s4, s5
s_mul_i32 s24, s4, 1280
s_lshl_b32 s5, s{s_w}, 8
s_add_u32 s25, s24, s5
s_movk_i32 s4, 3840
s_mov_b32 s5, {640*3840}
s_cmp_gt_u32 s{s_br}, {rnd}
s_cselect_b32 s6, 1280, s4
s_cselect_b32 s22, {640*1280}, s5
s_cselect_b32 s20, s56, s50
s_cselect_b32 s21, s57, s51
s_cselect_b32 s16, s54, s48
s_cselect_b32 s17, s55, s49
s_lshl_b32 s5, s{s_w}, 2
s_bfe_u32 s4, s2, 0x20003
s_add_u32 s5, s5, s4
s_mul_i32 s5, s5, {nrow}
s_add_u32 s5, s5, {256 if rnd == 0 else 0}
s_mul_i32 s5, s5, s6
s_add_u32 s26, s5, s7
s_mul_i32 s5, s6, {nrow - 16}
s_add_u32 s27, s26, s5
v_mad_u32_u24 v{t0}, v{ep}, s6, v{t3}
""")
            if rnd == 0:
                a(f"""
buffer_load_dword v{JK}, v{ep+1}, s[16:19], s25 offen offset:256
buffer_load_dword v{JK}, v{t0}, s[20:23], s26 offen
buffer_load_dword v{JK}, v{t0}, s[20:23], s27 offen
""")
            else:
                a(f"""
buffer_load_dword v{JK}, v{ep+1}, s[16:19], s25 offen
buffer_load_dword v{JK}, v{t0}, s[20:23], s26 offen
s_lshl_b32 s5, s6, 4
s_add_u32 s26, s26, s5
buffer_load_dword v{JK}, v{t0}, s[20:23], s26 offen
buffer_load_dword v{JK}, v{t0}, s[20:23], s27 offen
buffer_load_dword v{JK}, v{ep+1}, s[16:19], s24 offen offset:1024
""")
    a.label("L_round")
    a(f"""
s_mov_b32 s{s_cnt}, 0
s_add_u32 s3, s{s_br}, s{s_rnd}
s_lshr_b32 s4, s{s_c16}, 3
s_add_u32 s4, s4, 1
s_mul_i32 s5, s{s_br}, 3
s_cmp_eq_u32 s3, 1
s_cselect_b32 s{s_type}, s5, s4
v_add_u32 v{xa}, s46, v{xa}
v_add_u32 v{xa+1}, s46, v{xa+1}
v_add_u32 v{wr_}, s46, v{wr_}
s_waitcnt lgkmcnt(0)
s_barrier
s_cmp_lg_u32 s3, 2
s_cbranch_scc1 L_rnd_noq
""")
    read_q()
    a.label("L_rnd_noq")
    ENTRY_HOOK = True
    def rx(st, i):
        if i < 2: return f"ds_read_b128 {vr(xf(st,i),4)}, v{xa+st} offset:{i*2048}"
        return f"ds_read_b128 {vr(xf(st,2),4)}, v{xe+st}"
    def rw(st, j, h):
        if j < 5: return f"ds_read_b64_tr_b16 {vr(wf(j)+2*h,2)}, v{wr_} offset:{st*5120 + h*1280 + j*256}"
        return f"ds_read_b64_tr_b16 {vr(wf(5)+2*h,2)}, v{er} offset:{(32*st+4*h)*40}"
    def mf_list(st, orient, ext):
        out = []
        for j in range(5):
            for i in range(2):
                A, B = (wf(j), xf(st, i)) if orient == 'T' else (xf(st, i), wf(j))
                out.append((f"v_mfma_f32_16x16x32_bf16 {vr(acc(i,j),4)}, {vr(A,4)}, {vr(B,4)}, {vr(acc(i,j),4)}", [("x", st, i), ("w", j)]))
        if ext:
            A, B = (wf(5), xf(st, 2)) if ext == 'T' else (xf(st, 2), wf(5))
            out.append((f"v_mfma_f32_16x16x32_bf16 {vr(acce,4)}, {vr(A,4)}, {vr(B,4)}, {vr(acce,4)}", [("x", st, 2), ("w", 5)]))
        return out
    def gaps(rs, ext, late):
        W = lambda j, h: (rw(rs, j, h), ("w", j))
        X = lambda i: (rx(rs, i), ("x", rs, i))
        if late:
            gp = {1: [W(0,0), W(0,1)], 2: [X(0)], 3: [W(1,0), X(1)], 4: [W(1,1)], 5: [W(2,0)], 6: [W(2,1)], 7: [W(3,0)], 8: [W(3,1)], 9: [W(4,0), W(4,1)]}
        else:
            gp = {0: [X(0)], 1: [W(0,0), W(0,1)], 2: [X(1)], 3: [W(1,0)], 4: [W(1,1)], 5: [W(2,0)], 6: [W(2,1)], 7: [W(3,0)], 8: [W(3,1)], 9: [W(4,0), W(4,1)]}
        if ext:
            gp[6] = gp[6] + [X(2)]
            gp[10] = [W(5,0), W(5,1)]
        return gp
    def body(orient, ext, pend):
        out = []
        for st, rs, late in ((1, 0, True), (0, 1, False)):
            gp = gaps(rs, ext, late)
            if not late: out.append("@MID@")
            for m, (ins, needs) in enumerate(mf_list(st, orient, ext)):
                k = max([i for i, tg in enumerate(pend) if tg in needs], default=-1)
                if k >= 0:
                    n = len(pend) - 1 - k
                    out.append(f"s_waitcnt lgkmcnt({min(n, 15)})")
                    pend[:] = pend[k+1:] if n <= 15 else pend[len(pend)-15:]
                out.append(ins)
                if late and m == 1:
                    out += ["@ADV@", "s_waitcnt lgkmcnt(0)", "s_barrier"]; pend[:] = []
                for (r, tg) in gp.get(m, []):
                    out.append(r); pend.append(tg)
        return out
    def entry_reads(ext):
        for i in range(3 if ext else 2): a(rx(0, i))
        for j in range(6 if ext else 5):
            a(rw(0, j, 0)); a(rw(0, j, 1))
    entry_reads(False)
    a(f"""
s_cmp_eq_u32 s{s_type}, 2
s_waitcnt lgkmcnt(0)
s_cbranch_scc1 L_g_N_mid
s_cmp_eq_u32 s{s_type}, 3
s_cbranch_scc0 L_g_T_mid
""")
    a(rx(0, 2)); a(rw(0, 5, 0)); a(rw(0, 5, 1))
    a(f"""
s_cmp_lt_u32 s{s_w}, 2
s_waitcnt lgkmcnt(0)
s_cbranch_scc1 L_g_ET_mid
s_branch L_g_EN_mid
""")
    def gemm(label, orient, ext):
        a.label(label)
        pend = []
        body(orient, ext, pend)
        p0 = list(pend)
        code = body(orient, ext, pend)
        assert pend == p0
        regs = [xa, xa + 1, wr_] + ([xe, xe + 1, er] if ext else [])
        if "nomfma" in XP: code = [l for l in code if not l.startswith("v_mfma")]
        if "noread" in XP: code = [l for l in code if not l.startswith("ds_read")]
        for l in code:
            if l == "@ADV@":
                for r in regs: a(f"v_add_u32 v{r}, s46, v{r}")
            elif l == "@MID@": a.label(label + "_mid")
            else: a(l)
        a(f"""
s_add_u32 s{s_slot}, s{s_slot}, 1
s_and_b32 s{s_slot}, s{s_slot}, 3
s_mov_b32 s46, {(-3*SL) & 0xffffffff:#x}
s_cselect_b32 s46, {SL}, s46
s_add_u32 s{s_cnt}, s{s_cnt}, 1
s_cmp_lt_u32 s{s_cnt}, {NST}
s_cbranch_scc1 {label}
""")
        for m, (ins, needs) in enumerate(mf_list(1, orient, ext)):
            k = max([i for i, tg in enumerate(pend) if tg in needs], default=-1)
            if k >= 0:
                a(f"s_waitcnt lgkmcnt({min(len(pend) - 1 - k, 15)})"); pend[:] = pend[k+1:]
            a(ins)
    def pack(dst, src, scale=None):
        if scale is not None:
            a(f"v_pk_mul_f32 {vr(src,2)}, {vr(src,2)}, s[{scale}:{scale+1}]")
            a(f"v_pk_mul_f32 {vr(src+2,2)}, {vr(src+2,2)}, s[{scale}:{scale+1}]")
        a(f"v_cvt_pk_bf16_f32 v{dst}, v{src}, v{src+1}")
        a(f"v_cvt_pk_bf16_f32 v{dst+1}, v{src+2}, v{src+3}")
    def extra():
        a(f"""
s_lshl_b32 s3, s{s_w}, 9
s_add_u32 s3, s3, {STGE}
v_lshlrev_b32 v{t0}, 3, v{lane}
v_add_u32 v{t0}, s3, v{t0}
s_nop 7
""")
        pack(ep + 8, acce)
        a(f"ds_write_b64 v{t0}, {vr(ep+8,2)}")
    gemm("L_g_ET", 'T', 'T')
    extra()
    a("s_branch L_epi")
    gemm("L_g_EN", 'T', 'N')
    extra()
    a("s_branch L_epi")
    def epi(orient):
        n = 0
        for j in range(5):
            for i in range(2):
                d = ep + 2 * (n % 4); n += 1
                pack(d, acc(i, j), 6 if orient == 'T' else None)
                if orient == 'T': a(f"ds_write_b64 v{sa+2*j+i}, {vr(d,2)}")
                else: a(f"ds_write_b64 v{sn+j}, {vr(d,2)} offset:{640*i}")
                for r in range(4): a(f"v_mov_b32 v{acc(i,j)+r}, 0")
    gemm("L_g_N", 'N', None)
    a("s_nop 3")
    epi('N')
    a("s_branch L_epid")
    gemm("L_g_T", 'T', None)
    a.label("L_epi")
    a(f"""
s_mov_b32 s6, {f32bits(QSCALE):#x}
s_cmp_eq_u32 s{s_type}, 1
s_cselect_b32 s6, 1.0, s6
s_mov_b32 s7, s6
s_nop 3
""")
    epi('T')
    a.label("L_epid")
    a(f"""
s_cmp_eq_u32 s{s_rnd}, 1
s_mov_b32 s{s_rnd}, 1
s_cbranch_scc0 L_round
s_mov_b32 s18, 0
s_waitcnt lgkmcnt(0)
s_barrier
""")
    a.label("L_join")
    stamp(a, 1)
    a(f"s_cmp_eq_u32 s{s_br}, 1\ns_cbranch_scc1 L_haveq")
    read_q()
    a.label("L_haveq")
    V = Regs(VB, 148, "v")
    vdma = V.alloc("vdma"); vA = V.alloc("vA", 2); vK = V.alloc("vK", 2); vt8 = V.alloc("vt8"); mx = V.alloc("mx", 2)
    K2 = [V.alloc("K2e", 2, 2), V.alloc("K2o", 2, 2)]
    K1 = [V.alloc("K1e", 4, 4), V.alloc("K1o", 4, 4)]
    V0 = [V.alloc("V0e", 4, 4), V.alloc("V0o", 4, 4)]
    V1 = [V.alloc("V1e", 4, 4), V.alloc("V1o", 4, 4)]
    P = V.alloc("P", 8, 4)
    S = [V.alloc("SA", 16, 4), V.alloc("SB", 16, 4)]
    O = [V.alloc("OA", 16, 4), V.alloc("OB", 16, 4)]
    assert vdma == VB
    s_ob = 19
    img_base()
    a(f"""
s_lshr_b32 s3, s{s_w}, 1
s_cmp_eq_u32 s{s_br}, 0
s_cselect_b32 s4, s3, 0
s_mul_i32 s5, s4, {HEAD_B}
s_add_u32 s{s_img}, s{s_img}, s5
s_mul_i32 s4, s4, {SLOT_B}
v_add_u32 v{vA}, s4, v{vdma}
v_add_u32 v{vA+1}, {4*TS_B}, v{vA}
v_and_b32 v{t1}, 31, v{lane}
v_lshlrev_b32 v{vt8}, 3, v{t1}
v_add_u32 v{t0}, 3072, v{vt8}
v_mov_b32 v{t1}, {TILE_B}
v_cndmask_b32 v{t0}, v{t0}, v{t1}, {MHI}
v_add_u32 v{vK}, s4, v{t0}
v_add_u32 v{vK+1}, {4*TS_B}, v{vK}
s_lshl_b32 s4, s{s_br}, 5
s_lshl_b32 s5, s{s_hg}, 2
s_add_u32 s4, s4, s5
s_add_u32 s4, s4, s3
s_lshl_b32 s4, s4, 6
s_lshl_b32 s5, s{s_mt}, 2
s_add_u32 s4, s4, s5
s_and_b32 s5, s{s_w}, 1
s_lshl_b32 s5, s5, 1
s_add_u32 s4, s4, s5
s_mul_i32 s{s_ob}, s4, {RI_B}
s_add_u32 s{s_ob}, s{s_ob}, {WS_O}
s_mov_b32 s{s_cnt}, 0
""")
    for r in range(16):
        a(f"v_mov_b32 v{O[0]+r}, 0\nv_mov_b32 v{O[1]+r}, 0")
    for r in range(4):
        a(f"v_mov_b32 v{P+4+r}, 0\nv_mov_b32 v{V1[1]+r}, 0")
    def zero_off():
        for x in range(2):
            a(f"v_cndmask_b32 v{Q2[x]}, v{Q2[x]}, 0, {MHI}")
            a(f"v_cndmask_b32 v{Q2[x]+1}, v{Q2[x]+1}, 0, {MHI}")
    zero_off()
    a(f"""
s_waitcnt vmcnt(8) lgkmcnt(0)
s_barrier
ds_read_b128 {vr(K1[0],4)}, v{vA}
ds_read_b64 {vr(K2[0],2)}, v{vK}
ds_read_b128 {vr(V0[0],4)}, v{vA} offset:1024
ds_read_b128 {vr(V1[0],4)}, v{vA} offset:2048
ds_read_b128 {vr(K1[1],4)}, v{vA} offset:{TS_B}
ds_read_b64 {vr(K2[1],2)}, v{vK} offset:{TS_B}
""")
    a("s_cmp_eq_u32 s18, 0\ns_cbranch_scc1 L_no56")
    first_tile(5); first_tile(6)
    a.label("L_no56")
    stamp(a, 3)
    def qk(x, kb):
        return [f"v_mfma_f32_32x32x16_bf16 {vr(S[x],16)}, {vr(K1[kb],4)}, {vr(Q1[x],4)}, 0",
                f"v_mfma_f32_32x32x8_bf16 {vr(S[x],16)}, {vr(K2[kb],2)}, {vr(Q2[x],2)}, {vr(S[x],16)}"]
    def rowmax(x, dst, first):
        s = S[x]
        if first:
            a(f"v_max3_f32 v{dst}, v{s}, v{s+1}, v{s+2}")
            a(f"v_max_f32 v{dst}, v{dst}, v{s+3}")
            rs = range(4, 16, 2)
        else:
            rs = range(0, 16, 2)
        for r in rs:
            a(f"v_max3_f32 v{dst}, v{dst}, v{s+r}, v{s+r+1}")
    def set_off(x, m):
        a(f"""
v_mov_b32 v{t0}, v{m}
s_nop 1
v_permlane32_swap_b32 v{m}, v{t0}
s_nop 1
v_max_f32 v{t0}, v{m}, v{t0}
v_sub_f32 v{t0}, 0, v{t0}
v_and_b32 v{t1}, 0xffff0000, v{t0}
v_sub_f32 v{t0}, v{t0}, v{t1}
v_and_b32 v{t2}, 0xffff0000, v{t0}
v_sub_f32 v{t0}, v{t0}, v{t2}
s_mov_b32 s3, 0x07060302
v_perm_b32 v{t1}, v{t2}, v{t1}, s3
v_lshrrev_b32 v{t0}, 16, v{t0}
v_cndmask_b32 v{Q2[x]}, v{Q2[x]}, v{t1}, {MHI}
v_cndmask_b32 v{Q2[x]+1}, v{Q2[x]+1}, v{t0}, {MHI}
""")
    a("s_waitcnt lgkmcnt(4)")
    for x in range(2):
        for l in qk(x, 0): a(l)
    a("s_nop 7\ns_nop 3")
    rowmax(0, mx, True)
    set_off(0, mx)
    a("s_nop 1")
    for l in qk(0, 0): a(l)
    rowmax(1, mx + 1, True)
    set_off(1, mx + 1)
    a("s_waitcnt vmcnt(8) lgkmcnt(0)")

    def unit(x, t):
        y = 1 - x
        s = S[x]
        e = t & 1; o = 1 - e
        E = [f"v_exp_f32 v{s+i}, v{s+i}" for i in range(16)]
        C = [f"v_cvt_pk_bf16_f32 v{P+i}, v{s+2*i}, v{s+2*i+1}" for i in range(8)]
        M1, M3 = qk(y, e if x == 0 else o)
        M2 = f"v_mfma_f32_32x32x16_bf16 {vr(O[y],16)}, {vr(V1[o if x == 0 else e],4)}, {vr(P+4,4)}, {vr(O[y],16)}"
        M4 = f"v_mfma_f32_32x32x16_bf16 {vr(O[x],16)}, {vr(V0[e],4)}, {vr(P,4)}, {vr(O[x],16)}"
        def addr(tt):
            tt %= 8
            return (vA + tt // 4, vK + tt // 4, (tt % 4) * TS_B)
        A1, _, o1 = addr(t + 1)
        A2, B2, o2 = addr(t + 2)
        if x == 0:
            f1 = [f"ds_read_b128 {vr(V0[o],4)}, v{A1} offset:{o1+1024}"]
            f2 = [f"ds_read_b128 {vr(V1[o],4)}, v{A1} offset:{o1+2048}"]
            f4 = [f"ds_read_b128 {vr(K1[e],4)}, v{A2} offset:{o2}"]
        else:
            f1 = [f"ds_read_b64 {vr(K2[e],2)}, v{B2} offset:{o2}"]
            f2 = ["s_barrier"] if t % 2 == 0 else (["s_waitcnt vmcnt(0)"] if t == 1 else [])
            f4 = ["s_waitcnt lgkmcnt(0)"]
        if "halfread" in XP and (t // 2) % 2 == 1:
            f1 = [l for l in f1 if not l.startswith("ds_read")]; f2 = [l for l in f2 if not l.startswith("ds_read")]; f4 = [l for l in f4 if not l.startswith("ds_read")]
        if "nox8" in XP: M3 = "s_nop 0"
        if "pvz" in XP:
            M2 = M2.replace(vr(V1[o if x == 0 else e],4), "v[140:143]"); M4 = M4.replace(vr(V0[e],4), "v[140:143]")
        out = []
        PR = os.environ.get("PRIO", "")
        p0 = p1 = []
        if (PR == "1" and x == 1) or PR == "2":
            p0, p1 = ["s_setprio 0"], ["s_setprio 1"]
        out += [M1] + f1 + E[0:4]
        out += [M2] + f2 + [E[4], C[0], E[5], C[1], E[6], E[7]]
        out += [M3] + p0 + [E[8]] + p1 + [C[2], E[9], C[3], E[10], E[11]]
        out += [M4] + f4 + [E[12], C[4], E[13], C[5], E[14], E[15], C[6], C[7]]
        return out
    if os.environ.get("PRIO") == "3":
        a(f"s_cmp_lt_u32 s{s_w}, 4\ns_cbranch_scc1 L_noprio\ns_setprio 1\nL_noprio:")
    if "pvz" in XP:
        for r in range(4): a(f"v_mov_b32 v{140+r}, 0")
    stamp(a, 4)
    a(".p2align 6")
    a.label("L_attn_loop")
    for t in range(8):
        for x in range(2):
            for l in unit(x, t): a(l)
    a(f"""
s_add_u32 s{s_cnt}, s{s_cnt}, 1
s_cmp_lt_u32 s{s_cnt}, 8
s_cbranch_scc1 L_attn_loop
v_mfma_f32_32x32x16_bf16 {vr(O[1],16)}, {vr(V1[1],4)}, {vr(P+4,4)}, {vr(O[1],16)}
s_nop 7
s_nop 7
""")
    stamp(a, 5)
    def getl(x, dst):
        a(f"""
v_mov_b32 v{dst}, v{O[x]+8}
v_mov_b32 v{t0}, v{O[x]+8}
s_nop 1
v_permlane32_swap_b32 v{t0}, v{dst}
s_nop 1
""")
    a(f"s_mov_b32 s4, {f32bits(2.0**-20):#x}\ns_mov_b32 s5, {f32bits(2.0**60):#x}\ns_mov_b32 s3, 0x7f800000\ns_mov_b64 s[46:47], -1")
    for x in range(2):
        getl(x, mx + x)
        o = O[x]
        a(f"v_add_f32 v{t3}, abs(v{o}), abs(v{o+1})")
        for r in range(2, 8):
            a(f"v_add_f32 v{t3}, v{t3}, abs(v{o+r})")
        a(f"v_add_f32 v{t0}, abs(v{o+8}), abs(v{o+9})")
        a(f"v_add_f32 v{t0}, v{t0}, abs(v{o+10})")
        a(f"v_add_f32 v{t0}, v{t0}, abs(v{o+11})")
        a(f"v_cndmask_b32 v{t0}, v{t0}, 0, {MHI}")
        a(f"v_add_f32 v{t3}, v{t3}, v{t0}")
        a(f"""
v_cmp_gt_f32 vcc, s3, v{t3}
s_and_b64 s[46:47], s[46:47], vcc
v_cmp_le_f32 vcc, s4, v{mx+x}
s_and_b64 s[46:47], s[46:47], vcc
v_cmp_ge_f32 vcc, s5, v{mx+x}
s_and_b64 s[46:47], s[46:47], vcc
""")
    a(f"""
s_cmp_eq_u64 s[46:47], -1
s_cbranch_scc0 L_attn_slow
L_attn_fin:
v_lshlrev_b32 v{t1}, 3, v{lane}
v_lshrrev_b32 v{t2}, 5, v{lane}
v_mul_u32_u24 v{t2}, {RI_B - 256}, v{t2}
v_add_u32 v{t1}, v{t1}, v{t2}
""")
    for x in range(2):
        o = O[x]; d = S[x]
        a(f"v_rcp_f32 v{t0}, v{mx+x}\ns_nop 0")
        for r in range(12):
            a(f"v_mul_f32 v{o+r}, v{o+r}, v{t0}")
        a(f"""
v_cvt_pk_bf16_f32 v{d}, v{o}, v{o+1}
v_cvt_pk_bf16_f32 v{d+1}, v{o+2}, v{o+3}
v_cvt_pk_bf16_f32 v{d+2}, v{o+4}, v{o+5}
v_cvt_pk_bf16_f32 v{d+3}, v{o+6}, v{o+7}
v_cvt_pk_bf16_f32 v{P+2*x}, v{o+8}, v{o+9}
v_cvt_pk_bf16_f32 v{P+2*x+1}, v{o+10}, v{o+11}
v_permlane32_swap_b32 v{d}, v{d+2}
v_permlane32_swap_b32 v{d+1}, v{d+3}
s_nop 1
buffer_store_dwordx4 {vr(d,4)}, v{vdma}, {WS}, s{s_ob} offen offset:{RI_B*x} {SC1}
""")
    a(f"""
v_permlane32_swap_b32 v{P}, v{P+2}
v_permlane32_swap_b32 v{P+1}, v{P+3}
s_nop 1
buffer_store_dwordx2 {vr(P,2)}, v{t1}, {WS}, s{s_ob} offen offset:1024 {SC1}
""")
    V = Regs(VB + 1, 160, "v")
    om = V.alloc("om"); ot = V.alloc("ot"); wr = V.alloc("wr", 2); oa = V.alloc("oa")
    OF = V.alloc("OF", 80, 4); CA = V.alloc("CA", 20, 4); WF = V.alloc("WF", 40, 4)
    SO = SX
    pi16(t2)
    a(f"""
s_lshl_b32 s3, s{s_br}, 11
s_lshl_b32 s4, s{s_mt}, 2
s_add_u32 s3, s3, s4
s_lshr_b32 s4, s{s_w}, 1
s_add_u32 s3, s3, s4
s_mul_i32 s3, s3, {RI_B}
s_add_u32 s33, s3, {WS_O}
s_and_b32 s4, s{s_w}, 1
s_lshl_b32 s4, s4, 4
v_add_u32 v{t2}, s4, v{t2}
v_lshrrev_b32 v{t0}, 1, v{g}
s_mov_b32 s5, {RIH_B}
v_mul_lo_u32 v{t0}, v{t0}, s5
v_and_b32 v{t3}, 1, v{g}
v_lshlrev_b32 v{t3}, 9, v{t3}
v_lshl_add_u32 v{t3}, v{t2}, 4, v{t3}
v_add_u32 v{om}, v{t0}, v{t3}
s_mov_b32 s5, {2*RIH_B}
v_mul_lo_u32 v{t0}, v{g}, s5
v_lshl_add_u32 v{ot}, v{t2}, 3, v{t0}
v_lshrrev_b32 v{t0}, 1, v{g}
v_mul_u32_u24 v{t0}, 2560, v{t0}
v_and_b32 v{t3}, 1, v{g}
v_lshl_add_u32 v{t0}, v{t3}, 7, v{t0}
v_lshl_add_u32 v{wr+1}, v{l16}, 3, v{t0}
v_add_u32 v{wr}, {WO1}, v{wr+1}
s_lshl_b32 s3, s{s_mt}, 7
s_lshl_b32 s4, s{s_w}, 4
s_add_u32 s3, s3, s4
s_mul_i32 s3, s3, 2560
s_mul_i32 s4, s{s_br}, 1280
s_add_u32 s3, s3, s4
s_mul_i32 s4, s{s_hg}, 160
s_add_u32 s32, s3, s4
v_mul_u32_u24 v{oa}, 2560, v{l16}
v_lshl_add_u32 v{oa}, v{g}, 3, v{oa}
s_mul_i32 s6, s{s_hg}, {4*RIH_B*CROT}
s_add_u32 s6, s6, s33
s_add_u32 s7, s33, {32*RIH_B}
s_mov_b32 s{SO}, s64
s_mov_b32 s{SO+1}, s65
s_mov_b32 s{SO+2}, {2048*2560}
s_mov_b32 s{SO+3}, 0x20000
s_waitcnt vmcnt(0)
s_barrier
""")
    stamp(a, 6)
    def rwo(st):
        b = WF + (st % 2) * 20
        reg, base = (wr, st * 5120) if st < NWO1 else (wr + 1, (st - NWO1) * 5120)
        return [[f"ds_read_b64_tr_b16 {vr(b+4*j,2)}, v{reg} offset:{base + j*256}",
                 f"ds_read_b64_tr_b16 {vr(b+4*j+2,2)}, v{reg} offset:{base + 1280 + j*256}"] for j in range(5)]
    for r in range(20): a(f"v_mov_b32 v{CA+r}, 0")
    for gl in rwo(0) + rwo(1):
        for l in gl: a(l)
    a("s_barrier")
    stamp2(a, 10)
    CD = int(os.environ.get("CD", "20"))
    oq = []
    def oload(st):
        if st < 16:
            a(f"buffer_load_dwordx4 {vr(OF+4*st,4)}, v{om}, {WS}, s6 offen {SC1}"); oq.append(st)
            if st < 15: a(f"s_add_u32 s6, s6, {2*RIH_B}\ns_cmp_eq_u32 s6, s7\ns_cselect_b32 s6, s33, s6")
            else: a(f"s_add_u32 s33, s33, 1024\ns_add_u32 s4, s33, {RIH_B}")
        elif st < 20:
            u = st - 16
            a(f"buffer_load_dwordx2 {vr(OF+64+4*u,2)}, v{ot}, {WS}, s33 offen {SC1}")
            a(f"buffer_load_dwordx2 {vr(OF+66+4*u,2)}, v{ot}, {WS}, s4 offen {SC1}"); oq.extend([st, st])
            if u < 3: a(f"s_add_u32 s33, s33, {8*RIH_B}\ns_add_u32 s4, s4, {8*RIH_B}")
    for st in range(CD): oload(st)
    pend = []
    for st in range(20):
        b = WF + (st % 2) * 20
        nl = len([x for x in oq if x > st])
        a(f"s_waitcnt vmcnt({nl})" + (" lgkmcnt(0)" if st == 0 else ""))
        if STAMPS and os.environ.get("CST") and st in (0, 8, 16):
            a(f"s_memrealtime s[{40+st//4}:{41+st//4}]")
        nxt_ = rwo(st + 2) if st + 2 < 20 else None
        for j in range(5):
            if (st, j) in pend:
                k = pend.index((st, j))
                n = 2 * (len(pend) - 1 - k)
                if n < 14 or j == 0 or True:
                    a(f"s_waitcnt lgkmcnt({min(n, 14)})")
                pend = pend[k+1:] if n <= 14 else pend[len(pend)-7:]
            a(f"v_mfma_f32_16x16x32_bf16 {vr(CA+4*j,4)}, {vr(b+4*j,4)}, {vr(OF+4*st,4)}, {vr(CA+4*j,4)}")
            if nxt_:
                for l in nxt_[j]: a(l)
                pend.append((st + 2, j))
            if j == 0: oload(st + CD)
    a("s_nop 7\ns_nop 3")
    stamp2(a, 11)
    if STAMPS and os.environ.get("CST"):
        b = SV[0]
        for n, r in enumerate((40, 42, 44)):
            a(f"v_mov_b32 v{b}, s{r}\nv_mov_b32 v{b+1}, s{r+1}\nbuffer_store_dwordx2 v[{b}:{b+1}], v{b+4}, s[72:75], s71 offen offset:{(13+n)*8}\ns_nop 4")
    for j in range(5):
        d = WF + 2 * j
        a(f"v_cvt_pk_bf16_f32 v{d}, v{CA+4*j}, v{CA+4*j+1}")
        a(f"v_cvt_pk_bf16_f32 v{d+1}, v{CA+4*j+2}, v{CA+4*j+3}")
        a(f"buffer_store_dwordx2 {vr(d,2)}, v{oa}, {srd(SO)}, s32 offen offset:{j*32}")
    if STAMPS:
        a("s_waitcnt vmcnt(0)")
        stamp(a, 7)
    a("s_endpgm")

    a.label("L_aux")
    aux_start = len(a.lines)
    SA_, SB_ = 80, 84
    wm_, wt_ = VB + 6, VB + 11
    def wo_addr():
        a(f"s_mul_i32 s7, s{s_hg}, 160")
        for i in range(5):
            a(f"""
v_add_u32 v{t0}, {4*i}, v{g}
v_mul_u32_u24 v{t1}, 205, v{t0}
v_lshrrev_b32 v{t1}, 10, v{t1}
v_mul_u32_u24 v{t2}, 5, v{t1}
v_sub_u32 v{t0}, v{t0}, v{t2}
v_lshlrev_b32 v{t0}, 5, v{t0}
v_and_b32 v{t2}, 1, v{lane}
v_lshl_add_u32 v{t0}, v{t2}, 4, v{t0}
v_add_u32 v{t0}, s7, v{t0}
v_bfe_u32 v{t2}, v{lane}, 1, 2
v_bfe_u32 v{t3}, v{lane}, 3, 1
v_lshrrev_b32 v{wm_+i}, 1, v{t1}
v_mul_u32_u24 v{wm_+i}, 20, v{wm_+i}
v_lshl_add_u32 v{wm_+i}, v{t3}, 3, v{wm_+i}
v_and_b32 v{wt_+i}, 1, v{t1}
v_lshl_add_u32 v{wm_+i}, v{wt_+i}, 2, v{wm_+i}
v_add_u32 v{wm_+i}, v{wm_+i}, v{t2}
v_mul_u32_u24 v{wm_+i}, 1280, v{wm_+i}
v_add_u32 v{wm_+i}, v{wm_+i}, v{t0}
v_lshrrev_b32 v{t1}, 1, v{t1}
v_lshl_add_u32 v{t1}, v{t1}, 1, v{t3}
v_lshl_add_u32 v{wt_+i}, v{t1}, 1, v{wt_+i}
v_mul_u32_u24 v{wt_+i}, 20, v{wt_+i}
v_add3_u32 v{wt_+i}, v{wt_+i}, v{t2}, 16
v_mul_u32_u24 v{wt_+i}, 1280, v{wt_+i}
v_add_u32 v{wt_+i}, v{wt_+i}, v{t0}
""")
    def signal(cnt_sgpr):
        a(f"""
s_lshl_b32 s3, s{cnt_sgpr}, 8
s_add_u32 s3, s3, {WS_CNT}
v_mov_b32 v{t0}, 0
v_mov_b32 v{t1}, 1
s_mov_b64 exec, 1
buffer_atomic_add v{t1}, v{t0}, {WS}, s3 offen sc1
s_mov_b64 exec, -1
""")
    auxq = []
    a(f"v_lshlrev_b32 v{vdma}, 4, v{lane}")
    a(f"""
s_mov_b32 s80, s58
s_mov_b32 s81, s59
s_mov_b32 s82, {640*40}
s_mov_b32 s83, 0x20000
s_mov_b32 s84, s60
s_mov_b32 s85, s61
s_mov_b32 s86, {640*40}
s_mov_b32 s87, 0x20000
""")
    def edma(st):
        a(f"s_cmp_eq_u32 s{s_br}, 0\ns_cbranch_scc1 L_e{st}\ns_add_u32 s5, s94, {st}\ns_cmp_ge_u32 s5, 10\ns_cselect_b32 s4, 10, 0\ns_sub_u32 s5, s5, s4\ns_mul_i32 s5, s5, 2560")
        for m, sr_ in enumerate((80, 84)):
            a(f"s_mov_b32 m0, {(st%4)*SL + 26624 + m*3072}\ns_nop 0")
            for n in range(3):
                a(f"buffer_load_dwordx4 v{vdma}, {srd(sr_)}, s5 offen offset:{n*1024} lds")
        a(f"L_e{st}:")
        auxq.extend([("e", st)] * 6)
    for st in range(4): edma(st)
    if "cw" in XP:
        a(f"""
s_getpc_b64 s[4:5]
L_pc:
s_sub_u32 s4, s4, L_pc-{NAME}
s_subb_u32 s5, s5, 0
s_lshr_b32 s3, s2, 3
s_lshl_b32 s3, s3, 10
v_lshlrev_b32 v{t2}, 6, v{l16}
v_add_u32 v{t2}, s3, v{t2}
v_min_u32 v{t2}, L_end-{NAME}, v{t2}
s_mov_b64 exec, 0xffff
global_load_dword v{VB+2}, v{t2}, s[4:5]
s_mov_b64 exec, -1
""")
    a(f"""
s_setprio 3
v_mov_b32 v{t0}, 0
v_mov_b32 v{t1}, 1
s_cmp_ge_u32 s2, {NCNT}
s_cbranch_scc1 L_aux_noinit
s_lshl_b32 s3, s2, 8
s_add_u32 s3, s3, {WS_CNT}
s_mov_b64 exec, 1
buffer_store_dword v{t0}, v{t0}, {WS}, s3 offen sc1
s_waitcnt vmcnt(0)
buffer_atomic_add v{t1}, v{t0}, {srd(SDBG)}, 0 offen sc1
s_mov_b64 exec, -1
L_aux_noinit:
""")
    ca = VB + 24; cd = VB + 48
    for i in range(5):
        a(f"""
v_add_u32 v{t0}, {64*i}, v{lane}
v_mul_u32_u24 v{t1}, 3277, v{t0}
v_lshrrev_b32 v{t1}, 18, v{t1}
v_mul_u32_u24 v{t2}, 80, v{t1}
v_sub_u32 v{t2}, v{t0}, v{t2}
v_mul_u32_u24 v{t1}, {TILE_B}, v{t1}
v_lshl_add_u32 v{ca+i}, v{t2}, 4, v{t1}
v_cmp_le_u32 vcc, 64, v{t2}
v_mov_b32 v{t3}, 2048
v_mul_u32_u24 v{t1}, 205, v{t2}
v_cndmask_b32 v{t3}, 0, v{t3}, vcc
v_lshrrev_b32 v{t1}, 12, v{t1}
v_mul_u32_u24 v{t1}, 192, v{t1}
v_add_u32 v{t1}, 1024, v{t1}
s_cmp_ge_u32 s{s_c16}, 8
s_cselect_b64 vcc, -1, 0
v_cndmask_b32 v{t3}, v{t3}, v{t1}, vcc
v_add_u32 v{ca+i}, v{ca+i}, v{t3}
""")
    wo_addr()
    a(f"""
s_and_b32 s3, s{s_c16}, 7
s_lshl_b32 s3, s3, 8
s_lshl_b32 s4, s{s_mu}, 2
s_add_u32 s3, s3, s4
s_mul_i32 s26, s3, {TILE_B}
s_add_u32 s26, s26, {WS_KV}
v_lshlrev_b32 v{vdma}, 4, v{lane}
v_add_u32 v{VB+3}, {STG}, v{vdma}
v_mov_b32 v{VB+31}, 0
""")
    pfx, pfw = VB + 33, VB + 34
    PX, PW = [36, 16], [96, 20]
    s_px, s_pw, s_pws = [24, 25], [88, 89], [90, 91]
    if PFM == "aux":
        for rnd in range(2):
            a(f"""
s_add_u32 s3, s{s_br}, {rnd}
s_mul_i32 s4, s{s_hg}, 160
s_mul_i32 s5, s{s_c16}, 160
s_add_u32 s5, s5, 1280
s_cmp_eq_u32 s3, 1
s_cselect_b32 s7, s4, s5
s_cselect_b32 s4, s{s_mt}, s{s_mu}
s_lshl_b32 s4, s4, 7
s_lshl_b32 s5, s{s_hg}, 4
s_add_u32 s4, s4, s5
s_mul_i32 s{s_px[rnd]}, s4, 1280
s_movk_i32 s4, 3840
s_mov_b32 s5, {640*3840}
s_cmp_gt_u32 s{s_br}, {rnd}
s_cselect_b32 s6, 1280, s4
s_cselect_b32 s{PW[rnd]+2}, {640*1280}, s5
s_cselect_b32 s{PW[rnd]}, s56, s50
s_cselect_b32 s{PW[rnd]+1}, s57, s51
s_cselect_b32 s{PX[rnd]}, s54, s48
s_cselect_b32 s{PX[rnd]+1}, s55, s49
s_mov_b32 s{PX[rnd]+2}, {2048*1280}
s_mov_b32 s{PX[rnd]+3}, 0x20000
s_mov_b32 s{PW[rnd]+3}, 0x20000
s_bfe_u32 s5, s2, 0x20003
s_lshl_b32 s5, s5, 4
s_add_u32 s5, s5, {256 if rnd == 0 else 0}
s_mul_i32 s5, s5, s6
s_add_u32 s{s_pw[rnd]}, s5, s7
s_lshl_b32 s{s_pws[rnd]}, s6, 6
v_lshrrev_b32 v{pfw+rnd}, 2, v{lane}
v_mul_lo_u32 v{pfw+rnd}, v{pfw+rnd}, s6
v_and_b32 v{t3}, 3, v{lane}
v_lshlrev_b32 v{t3}, 6, v{t3}
v_min_u32 v{t2}, 156, v{t3}
v_add_u32 v{pfw+rnd}, v{pfw+rnd}, v{t2}
""")
        a(f"""
v_lshrrev_b32 v{pfx}, 2, v{lane}
v_mul_u32_u24 v{pfx}, 1280, v{pfx}
v_add_u32 v{pfx}, v{pfx}, v{t3}
""")
    if PFM == "aux" and "l128" in XP:
        for rnd in range(2):
            a(f"""
s_lshr_b32 s6, s{s_pws[rnd]}, 6
v_lshrrev_b32 v{t0}, 5, v{lane}
v_lshlrev_b32 v{t0}, 6, v{t0}
v_bfe_u32 v{t1}, v{lane}, 1, 4
v_add_u32 v{t0}, v{t0}, v{t1}
v_mul_lo_u32 v{pfw+rnd}, v{t0}, s6
v_and_b32 v{t1}, 1, v{lane}
v_mul_u32_u24 v{t1}, 156, v{t1}
v_add_u32 v{pfw+rnd}, v{pfw+rnd}, v{t1}
s_lshl_b32 s{s_pws[rnd]}, s{s_pws[rnd]}, 1
""")
        a(f"v_add_u32 v{pfx}, v{pfx}, v{t3}")
    def pf(stage):
        if PFM != "aux" or stage >= 20: return
        r, st = divmod(stage, 10)
        if "l128" in XP:
            if st % 4 == 0:
                a(f"buffer_load_dword v{VB+4}, v{pfx}, {srd(PX[r])}, s{s_px[r]} offen offset:{min(128*st, 768)}"); auxq.append("p")
            if st % 2 == 0:
                a(f"buffer_load_dword v{VB+5}, v{pfw+r}, {srd(PW[r])}, s{s_pw[r]} offen {PPOL}"); auxq.append("p")
                a(f"s_add_u32 s{s_pw[r]}, s{s_pw[r]}, s{s_pws[r]}")
            return
        if st % 2 == 0:
            a(f"buffer_load_dword v{VB+4}, v{pfx}, {srd(PX[r])}, s{s_px[r]} offen offset:{128*st} {PPOL}"); auxq.append("p")
        a(f"buffer_load_dword v{VB+5}, v{pfw+r}, {srd(PW[r])}, s{s_pw[r]} offen {PPOL}"); auxq.append("p")
        a(f"s_add_u32 s{s_pw[r]}, s{s_pw[r]}, s{s_pws[r]}")
    PRE = int(os.environ.get("PRE", "4"))
    for st in range(4, PRE): pf(st)
    nxt = [max(PRE, 4)]
    if os.environ.get("SKIP0"): nxt = [10]
    for k in range(0, 11):
        if k < 10:
            last = max(i for i, tg in enumerate(auxq) if tg == ("e", k))
            a(f"s_waitcnt vmcnt({min(len(auxq) - 1 - last, 63)})")
        a("s_barrier")
        if 1 <= k <= 6: edma(k + 3)
        if k == 5:
            a(f"buffer_load_dword v{VB+32}, v{VB+31}, {srd(SDBG)}, 0 offen sc1"); auxq.append("d")
        n = 0
        lim = k + LEAD
        if os.environ.get("SCHED"): lim = [int(x) for x in os.environ["SCHED"].split(",")][k]
        while nxt[0] <= lim and nxt[0] < 20 and n < PFN:
            pf(nxt[0]); nxt[0] += 1; n += 1
        if k == 9:
            a(f"""
s_mov_b32 s4, 0
s_waitcnt vmcnt({auxq[auxq.index("d"):].count("p")})
L_aux_chk:
v_cmp_ne_u32 vcc, {NCNT}, v{VB+32}
s_add_u32 s4, s4, 1
s_cmp_gt_u32 s4, {SPIN_MAX}
s_cbranch_scc1 L_aux_chkt
s_cbranch_vccz L_aux_chkd
s_sleep 4
buffer_load_dword v{VB+32}, v{VB+31}, {srd(SDBG)}, 0 offen sc1
s_waitcnt vmcnt(0)
s_branch L_aux_chk
L_aux_chkt:
""")
            diag(a, 0, VB + 32)
            a.label("L_aux_chkd")
    def copy_unit(lo, hi):
        for i in range(lo, hi):
            a(f"ds_read_b128 {vr(cd+4*i,4)}, v{VB+3} offset:{1024*i}")
        for i in range(lo, hi):
            a(f"s_waitcnt lgkmcnt({hi-1-i})")
            if i % 5 == 0: a(f"s_add_u32 s6, s26, {(i//5)*HEAD_B}")
            a(f"buffer_store_dwordx4 {vr(cd+4*i,4)}, v{ca+i%5}, {WS}, s6 offen {SC1}")
    a(f"s_cmp_eq_u32 s{s_br}, 0\ns_cbranch_scc0 L_aux_ex")
    copy_unit(0, 10)
    a("s_barrier")
    copy_unit(10, 20)
    a(f"s_barrier\ns_mov_b32 s4, s{s_c16}\ns_branch L_aux_sig0")
    a.label("L_aux_ex")
    pi16(t2)
    a(f"""
v_lshlrev_b32 v{t0}, 3, v{lane}
v_add_u32 v{t0}, {STGE}, v{t0}
ds_read_b64 {vr(cd,2)}, v{t0}
ds_read_b64 {vr(cd+2,2)}, v{t0} offset:512
ds_read_b64 {vr(cd+4,2)}, v{t0} offset:1024
ds_read_b64 {vr(cd+6,2)}, v{t0} offset:1536
s_lshl_b32 s3, s{s_mt}, 2
s_lshr_b32 s4, s{s_hg}, 1
s_add_u32 s3, s3, s4
s_mul_i32 s6, s3, {TILE_B}
s_add_u32 s6, s6, {WS_KV + 32*HEAD_B}
s_and_b32 s4, s{s_hg}, 1
s_lshl_b32 s5, s4, 4
v_add_u32 v{t2}, s5, v{t2}
v_lshrrev_b32 v{t3}, 1, v{g}
v_lshl_add_u32 v{t3}, v{t3}, 5, v{t2}
v_lshlrev_b32 v{t3}, 4, v{t3}
v_and_b32 v{t0}, 1, v{g}
v_lshl_add_u32 v{cd+8}, v{t0}, 3, v{t3}
v_lshlrev_b32 v{cd+9}, 3, v{t2}
v_lshrrev_b32 v{t3}, 1, v{g}
v_lshlrev_b32 v{t3}, 9, v{t3}
v_lshl_add_u32 v{t3}, v{t0}, 3, v{t3}
s_lshl_b32 s4, s4, 10
v_add_u32 v{t3}, s4, v{t3}
v_lshl_add_u32 v{cd+10}, v{l16}, 4, v{t3}
s_waitcnt lgkmcnt(0)
buffer_store_dwordx2 {vr(cd,2)}, v{cd+8}, {WS}, s6 offen {SC1}
buffer_store_dwordx2 {vr(cd+4,2)}, v{cd+10}, {WS}, s6 offen offset:1024 {SC1}
s_mov_b64 exec, 0xffff
buffer_store_dwordx2 {vr(cd+2,2)}, v{cd+9}, {WS}, s6 offen offset:3072 {SC1}
s_mov_b32 exec_lo, 0x000f000f
s_mov_b32 exec_hi, 0x000f000f
buffer_store_dwordx2 {vr(cd+6,2)}, v{cd+10}, {WS}, s6 offen offset:{1024+256} {SC1}
s_mov_b64 exec, -1
s_barrier
s_barrier
s_lshr_b32 s4, s{s_mt}, 1
s_add_u32 s4, s4, {C_EX}
s_waitcnt vmcnt(0)
""")
    signal(4)
    a(f"""
s_barrier
s_branch L_aux_sig1
L_aux_sig0:
s_barrier
s_waitcnt vmcnt(0)
""")
    signal(4)
    a(f"""
L_aux_sig1:
s_cmp_eq_u32 s{s_br}, 0
s_cselect_b32 s{SB_}, s52, s62
s_cselect_b32 s{SB_+1}, s53, s63
s_mov_b32 s{SB_+2}, {640*1280}
s_mov_b32 s{SB_+3}, 0x20000
s_barrier
""")
    img_base()
    a(f"""
s_add_u32 s{s_gd}, s{s_img}, {7*TILE_B}
""")
    a("""
s_barrier
s_barrier
s_barrier
s_barrier
s_barrier
s_barrier
""")
    s_wl, s_wg, s_sl = 25, 24, 27
    a(f"""
s_mov_b32 s{s_wl}, {WO1}
s_mul_i32 s{s_wg}, s{s_hg}, {80*1280*CROT}
s_mov_b32 s{s_sl}, {7*TS_B}
s_mov_b32 s{s_cnt}, 0
s_barrier
s_cmp_eq_u32 s{s_br}, 0
s_cbranch_scc0 L_pB
""")
    def wo_step(regs, rows):
        for i in range(5):
            a(f"s_add_u32 m0, s{s_wl}, {i*1024}\ns_nop 0")
            a(f"buffer_load_dwordx4 v{regs+i}, {srd(SB_)}, s{s_wg} offen lds")
        a(f"s_add_u32 s{s_wl}, s{s_wl}, 5120\ns_add_u32 s{s_wg}, s{s_wg}, {rows*1280}")
        if rows == 40: a(f"s_cmp_eq_u32 s{s_wg}, {640*1280}\ns_cselect_b32 s{s_wg}, 0, s{s_wg}")
    def one_tile(nh):
        for h in range(nh):
            if h: a(f"s_add_u32 s4, s{s_gd}, {h*HEAD_B}")
            for l in dma_tile(f"s_add_u32 m0, s{s_sl}, {h*SLOT_B}", 4 if h else s_gd): a(l)
        a(f"""
s_add_u32 s{s_gd}, s{s_gd}, {TILE_B}
s_add_u32 s{s_sl}, s{s_sl}, {TS_B}
s_cmp_eq_u32 s{s_sl}, {8*TS_B}
s_cselect_b32 s{s_sl}, 0, s{s_sl}
""")
    def producer(lab, nh):
        B_ = 8 * nh
        a(f"""
s_barrier
""")
        one_tile(nh); one_tile(nh)
        if nh == 1:
            copy_unit(0, 10); copy_unit(10, 20)
        else:
            a(f"""
v_and_b32 v{t2}, 1, v{lane}
v_lshlrev_b32 v{t2}, 3, v{t2}
v_add_u32 v{t2}, s{s_hg}, v{t2}
v_add_u32 v{t2}, 16, v{t2}
v_lshlrev_b32 v{t2}, 8, v{t2}
v_add_u32 v{t2}, {WS_CNT}, v{t2}
""")
        a(f"s_mov_b32 s{s_cnt}, 1")
        a.label(lab + "_w")
        a(f"s_waitcnt vmcnt({B_})\ns_barrier")
        a(f"s_cmp_lg_u32 s{s_cnt}, {2 if nh == 1 else 11}\ns_cbranch_scc1 {lab}_h")
        if nh == 1:
            a(f"s_add_u32 s4, s{s_c16}, 16")
            signal(4)
        else:
            poll(lab + "_late", 3, 8)
        a.label(lab + "_h")
        wo_step(wm_, 40)
        one_tile(nh); one_tile(nh)
        a(f"""
s_add_u32 s{s_cnt}, s{s_cnt}, 1
s_cmp_lt_u32 s{s_cnt}, {NWO1+1}
s_cbranch_scc1 {lab}_w
""")
        a.label(lab + "_n")
        a(f"s_waitcnt vmcnt({B_})\ns_barrier")
        one_tile(nh); one_tile(nh)
        a(f"""
s_add_u32 s{s_cnt}, s{s_cnt}, 1
s_cmp_lt_u32 s{s_cnt}, 28
s_cbranch_scc1 {lab}_n
s_waitcnt vmcnt({B_})
s_barrier
""")
        one_tile(nh)
        a(f"""
s_waitcnt vmcnt({B_//2})
s_barrier
s_waitcnt vmcnt(0)
s_barrier
""")
    producer("L_pA", 4)
    a("s_branch L_pend")
    a.label("L_pB")
    producer("L_pBq", 1)
    a.label("L_pend")
    a(f"s_mov_b32 s{s_wl}, 0")
    for _ in range(16 - NWO1): wo_step(wm_, 40)
    a(f"s_barrier\ns_mov_b32 s{s_wg}, 0")
    for _ in range(4): wo_step(wt_, 160)
    a(f"""
s_lshl_b32 s4, s{s_br}, 4
s_add_u32 s4, s4, s{s_mt}
s_add_u32 s4, s4, {C_O}
s_lshl_b32 s5, s4, 8
s_add_u32 s5, s5, {WS_CNT}
v_mov_b32 v{t2}, s5
s_barrier
""")
    signal(4)
    poll("L_poll2", 1, 8)
    a("s_barrier")
    if STAMPS:
        new = []
        stop = False
        for l in a.lines[aux_start:]:
            new.append(l)
            if l.strip().startswith("L_pA_w") or "L_pB" in l: stop = True
            if l.strip() == "s_barrier" and not stop:
                new += ["    s_memrealtime s[76:77]", "    s_waitcnt lgkmcnt(0)", "    s_mov_b32 m0, s100", "    s_nop 1", "    v_writelane_b32 v166, s76, m0", "    s_add_u32 s100, s100, 1"]
        a.lines[aux_start:] = ["    s_mov_b32 s100, 0", "    v_mov_b32 v166, 0"] + new
        a(f"""
s_getreg_b32 s76, hwreg(HW_REG_XCC_ID)
v_writelane_b32 v166, s76, 40
s_getreg_b32 s76, hwreg(HW_REG_HW_ID)
v_writelane_b32 v166, s76, 41
v_lshlrev_b32 v167, 2, v{lane}
s_lshl_b32 s71, s70, 1
buffer_store_dword v166, v167, s[72:75], s71 offen
""")
    a("s_endpgm")

    a.label("L_attn_slow")
    zero_off()
    a(f"""
v_and_b32 v{t3}, 31, v{lane}
v_cmp_eq_u32 s[46:47], 20, v{t3}
v_mov_b32 v{vA}, 0x3f803f80
v_mov_b32 v{vK}, 0x3f80
v_mov_b32 v{mx}, 0xff800000
v_mov_b32 v{mx+1}, 0xff800000
s_mov_b32 s{s_gd}, s{s_img}
s_mov_b32 s{s_cnt}, 0
L_attn_slow1:
buffer_load_dwordx4 {vr(K1[0],4)}, v{vdma}, {WS}, s{s_gd} offen {SC1}
buffer_load_dwordx2 {vr(K2[0],2)}, v{vt8}, {WS}, s{s_gd} offen offset:3072 {SC1}
s_waitcnt vmcnt(0)
v_cndmask_b32 v{K2[0]}, v{K2[0]}, v{vA}, {MHI}
v_cndmask_b32 v{K2[0]+1}, v{K2[0]+1}, v{vK}, {MHI}
s_nop 1
""")
    for x in range(2):
        for l in qk(x, 0): a(l)
    a("s_nop 7\ns_nop 7")
    for x in range(2):
        rowmax(x, mx + x, False)
    a(f"""
s_add_u32 s{s_gd}, s{s_gd}, {TILE_B}
s_add_u32 s{s_cnt}, s{s_cnt}, 1
s_cmp_lt_u32 s{s_cnt}, 64
s_cbranch_scc1 L_attn_slow1
""")
    for x in range(2):
        set_off(x, mx + x)
    for r in range(16):
        a(f"v_mov_b32 v{O[0]+r}, 0\nv_mov_b32 v{O[1]+r}, 0")
    a(f"""
s_mov_b32 s{s_gd}, s{s_img}
s_mov_b32 s{s_cnt}, 0
L_attn_slow2:
buffer_load_dwordx4 {vr(K1[0],4)}, v{vdma}, {WS}, s{s_gd} offen {SC1}
buffer_load_dwordx2 {vr(K2[0],2)}, v{vt8}, {WS}, s{s_gd} offen offset:3072 {SC1}
buffer_load_dwordx4 {vr(V0[0],4)}, v{vdma}, {WS}, s{s_gd} offen offset:1024 {SC1}
buffer_load_dwordx4 {vr(V1[0],4)}, v{vdma}, {WS}, s{s_gd} offen offset:2048 {SC1}
s_waitcnt vmcnt(0)
v_cndmask_b32 v{K2[0]}, v{K2[0]}, v{vA}, {MHI}
v_cndmask_b32 v{K2[0]+1}, v{K2[0]+1}, v{vK}, {MHI}
""")
    for r in range(4):
        a(f"v_cndmask_b32 v{V0[0]+r}, v{V0[0]+r}, v{vA}, s[46:47]")
        a(f"v_cndmask_b32 v{V1[0]+r}, v{V1[0]+r}, v{vA}, s[46:47]")
    a("s_nop 1")
    for x in range(2):
        for l in qk(x, 0): a(l)
    a("s_nop 7\ns_nop 7")
    for x in range(2):
        s_ = S[x]
        for i in range(16): a(f"v_exp_f32 v{s_+i}, v{s_+i}")
        a("s_nop 0")
        for i in range(8): a(f"v_cvt_pk_bf16_f32 v{P+i}, v{s_+2*i}, v{s_+2*i+1}")
        a("s_nop 1")
        a(f"v_mfma_f32_32x32x16_bf16 {vr(O[x],16)}, {vr(V0[0],4)}, {vr(P,4)}, {vr(O[x],16)}")
        a(f"v_mfma_f32_32x32x16_bf16 {vr(O[x],16)}, {vr(V1[0],4)}, {vr(P+4,4)}, {vr(O[x],16)}")
    a(f"""
s_add_u32 s{s_gd}, s{s_gd}, {TILE_B}
s_add_u32 s{s_cnt}, s{s_cnt}, 1
s_cmp_lt_u32 s{s_cnt}, 64
s_cbranch_scc1 L_attn_slow2
s_nop 7
s_nop 7
""")
    for x in range(2):
        getl(x, mx + x)
    a("s_branch L_attn_fin")
    a.label("L_end")
    a("s_endpgm")
    nv = 168 if STAMPS else 160
    a(f""".section .rodata,"a"
.p2align 6
.amdhsa_kernel {NAME}
  .amdhsa_next_free_vgpr {nv}
  .amdhsa_next_free_sgpr 102
  .amdhsa_accum_offset {nv}
  .amdhsa_group_segment_fixed_size 0
  .amdhsa_kernarg_size 88
  .amdhsa_user_sgpr_count 2
  .amdhsa_user_sgpr_kernarg_segment_ptr 1
  .amdhsa_system_sgpr_workgroup_id_x 1
.end_amdhsa_kernel
""")

if __name__ == "__main__":
    import sys
    REF = open('concat_heads__softmax_full_mha__grouped_kv_mqa__prompt.s.ref').read()
    hdr = [l for l in REF.split("\n") if l.startswith(";") and "@launch" not in l]
    a = Asm()
    a('.amdgcn_target "amdgcn-amd-amdhsa--gfx950"\n.text')
    gen(a)
    out = "\n".join(hdr) + f"\n; @launch grid=(256,1,1) block=(576,1,1) lds={LDS_BYTES}\n" + a.text()
    path = sys.argv[1] if len(sys.argv) > 1 else 'concat_heads__softmax_full_mha__grouped_kv_mqa__prompt.s'
    open(path, 'w').write(out)
    open('launches_f.txt', 'w').write(f"{NAME} 256 1 1 576 1 1 {LDS_BYTES}\n")
```

```python
from asmlib import *
import struct, math, os

NAME = "concat_heads__softmax_full_mha__grouped_kv_mqa__prompt_kernel"
RI_B = 1280
RIH_B = 64 * RI_B
WS_O = 0x500000
WS_KV = 0xA00000
TILE_B = 3328
HEAD_B = 64 * TILE_B
WS_CNT = 0x10C0000
WS_SIZE = 268435456
C_KV, C_EX, C_O, NCNT = 0, 32, 40, 72
QSCALE = math.log2(math.e) / math.sqrt(20.0)
def f32bits(x): return struct.unpack("<I", struct.pack("<f", x))[0]
NST = 10
SL = 32768
STG = 4 * SL
SLOT_B = TILE_B + 16
TS_B = 4 * SLOT_B
WO1 = 8 * TS_B
STGE = STG + 16 * RI_B
NWO1 = 11
LDS_BYTES = 163840
assert WO1 + NWO1 * 5120 <= LDS_BYTES
SPIN_MAX = 60000
SC1 = "sc1"
XP = os.environ.get("EXPT", "")
APOL = os.environ.get("APOL", "")
PPOL = os.environ.get("PPOL", "")
ROT = int(os.environ.get("ROT", "4"))
CROT = int(os.environ.get("CROT", "1"))
PFM = os.environ.get("PFM", "none")
LEAD = int(os.environ.get("LEAD", "20"))
PFN = int(os.environ.get("PFN", "4"))

def stamp2(a, idx):
    if not STAMPS: return
    b = SV[0]
    a(f"""
s_memrealtime s[76:77]
s_add_u32 s71, s70, 0x80000
s_waitcnt lgkmcnt(0)
v_mov_b32 v{b}, s76
v_mov_b32 v{b+1}, s77
buffer_store_dwordx2 v[{b}:{b+1}], v{b+4}, s[72:75], s71 offen offset:{idx*8}
""")

DIAG = os.environ.get("DIAG") == "1"
def diag(a, idx, vreg):
    if not DIAG: return
    a(f"""
s_or_b32 s101, s2, 0xdead0000
v_mov_b32 v158, s101
v_mov_b32 v159, {WS_CNT + 0x8000 + idx*1024}
v_mbcnt_lo_u32_b32 v157, -1, 0
v_mbcnt_hi_u32_b32 v157, -1, v157
v_lshl_add_u32 v159, v157, 3, v159
buffer_store_dword v158, v159, s[8:11], 0 offen
buffer_store_dword v{vreg}, v159, s[8:11], 0 offen offset:4
""")

def gen(a):
    a(f".globl {NAME}\n.p2align 8\n.type {NAME},@function")
    a.label(NAME)
    srd = lambda r: f"s[{r}:{r+3}]"
    WS = "s[8:11]"
    s_w, s_br, s_hg, s_mt, s_c16, s_mu = 12, 13, 14, 15, 32, 33
    s_cnt, s_slot, s_rnd, s_type = 34, 35, 36, 37
    MV, MK, MHI = "s[40:41]", "s[42:43]", "s[44:45]"
    SX, SDBG = 16, 28
    lane, l16, g, t0, t1, t2, t3 = 1, 2, 3, 4, 5, 6, 7
    VB = 8
    Q1 = [148, 152]; Q2 = [156, 158]

    ROTC = {
        0: "s_mov_b32 s94, 0",
        1: f"s_mul_i32 s94, s6, 3\ns_add_u32 s94, s94, s{s_hg}\ns_cmp_ge_u32 s94, 10\ns_cselect_b32 s5, 10, 0\ns_sub_u32 s94, s94, s5",
        2: f"s_add_u32 s94, s6, s{s_hg}\ns_and_b32 s94, s94, 3\ns_mul_i32 s94, s94, 3",
        3: f"s_add_u32 s94, s6, s{s_hg}\ns_and_b32 s94, s94, 1\ns_mul_i32 s94, s94, 5",
        4: f"s_add_u32 s94, s6, s{s_hg}\ns_and_b32 s94, s94, 3\ns_mul_i32 s94, s94, 5\ns_lshr_b32 s94, s94, 1",
        5: f"s_lshl_b32 s94, s6, 1\ns_add_u32 s94, s94, s{s_hg}\ns_mul_i32 s5, s94, 52\ns_lshr_b32 s5, s5, 8\ns_mul_i32 s5, s5, 5\ns_sub_u32 s94, s94, s5\ns_lshl_b32 s94, s94, 1",
        6: f"s_add_u32 s94, s6, s{s_hg}\ns_mul_i32 s5, s94, 86\ns_lshr_b32 s5, s5, 8\ns_mul_i32 s5, s5, 3\ns_sub_u32 s94, s94, s5\ns_mul_i32 s94, s94, 7\ns_lshr_b32 s94, s94, 1",
        7: f"s_lshr_b32 s94, s{s_hg}, 1\ns_add_u32 s94, s6, s94\ns_and_b32 s94, s94, 3\ns_mul_i32 s94, s94, 5\ns_lshr_b32 s94, s94, 1",
    }[ROT]
    SCR = "s_and_b32 s3, s2, 31\ns_lshl_b32 s3, s3, 3\ns_lshr_b32 s2, s2, 5\ns_or_b32 s2, s2, s3" if "scr" in XP else "s_nop 0"
    a(f"""
s_cmp_ge_u32 s2, 256
s_cbranch_scc1 L_end
{SCR}
s_load_dwordx16 s[48:63], s[0:1], 0
s_load_dwordx4 s[64:67], s[0:1], 64
s_load_dwordx2 s[68:69], s[0:1], 80
v_lshrrev_b32 v{t0}, 6, v0
v_and_b32 v{lane}, 63, v0
v_readfirstlane_b32 s{s_w}, v{t0}
v_and_b32 v{l16}, 15, v0
v_bfe_u32 v{g}, v0, 4, 2
s_bfe_u32 s{s_br}, s2, 0x10002
s_and_b32 s3, s2, 3
s_bfe_u32 s6, s2, 0x20003
s_lshr_b32 s{s_hg}, s2, 5
s_lshl_b32 s5, s3, 2
s_add_u32 s{s_mt}, s5, s6
s_lshr_b32 s5, s3, 1
s_lshl_b32 s5, s5, 3
s_add_u32 s{s_c16}, s5, s{s_hg}
s_and_b32 s5, s3, 1
s_lshl_b32 s5, s5, 2
s_add_u32 s5, s5, s6
s_lshl_b32 s7, s{s_br}, 3
s_add_u32 s{s_mu}, s5, s7
{ROTC}
s_mov_b32 s10, {WS_SIZE}
s_mov_b32 s11, 0x20000
s_mov_b32 s{SDBG+2}, 256
s_mov_b32 s{SDBG+3}, 0x20000
s_mov_b32 s40, 0x000fffff
s_mov_b32 s41, 0x000fffff
s_mov_b32 s42, 0xffff
s_mov_b32 s43, 0
s_mov_b32 s44, 0
s_mov_b32 s45, -1
s_mov_b32 s{s_rnd}, 0
s_waitcnt lgkmcnt(0)
s_mov_b32 s8, s68
s_mov_b32 s9, s69
s_mov_b32 s{SDBG}, s66
s_mov_b32 s{SDBG+1}, s67
""")
    stamp_setup(a, 0, s_w, 68, 160)
    stamp(a, 0)
    a(f"""
s_cmp_lt_u32 s{s_w}, 4
s_cbranch_scc1 L_comp
s_cmp_eq_u32 s{s_w}, 8
s_cbranch_scc1 L_aux
""")
    xd = VB; gd = VB + 4; grow = VB + 8; gcol = VB + 12
    SW = 20
    s_xs, s_gs, s_gst, s_lx, s_lg, s_ldw = 88, 89, 90, 38, 39, 46
    s_lw = 47
    a(f"""
s_sub_u32 s{s_lw}, s{s_w}, 4
v_lshrrev_b32 v{t0}, 3, v{lane}
v_and_b32 v{t1}, 7, v{lane}
v_xor_b32 v{t2}, v{t1}, v{t0}
v_lshlrev_b32 v{t2}, 4, v{t2}
s_lshl_b32 s3, s{s_lw}, 5
v_add_u32 v{t3}, s3, v{t0}
v_mul_u32_u24 v{t3}, 1280, v{t3}
v_add_u32 v{xd}, v{t3}, v{t2}
v_add_u32 v{xd+1}, 10240, v{xd}
v_add_u32 v{xd+2}, 20480, v{xd}
v_add_u32 v{xd+3}, 30720, v{xd}
s_lshl_b32 s{s_lx}, s{s_lw}, 12
s_mul_i32 s4, s{s_lw}, 3
s_lshl_b32 s5, s{s_lw}, 1
s_add_u32 s5, s5, 2
s_min_u32 s91, s4, s5
s_lshl_b32 s{s_lg}, s91, 10
s_add_u32 s{s_lg}, s{s_lg}, 16384
s_mov_b32 s{SW+3}, 0x20000
s_mov_b32 s{SX+2}, {2048*1280}
s_mov_b32 s{SX+3}, 0x20000
s_mov_b32 s{s_slot}, 0
""")
    def ld_x_round():
        a(f"""
s_add_u32 s3, s{s_br}, s{s_rnd}
s_cmp_eq_u32 s3, 1
s_cselect_b32 s4, s{s_mt}, s{s_mu}
s_mul_i32 s{s_xs}, s4, {128*1280}
s_lshl_b32 s4, s94, 7
s_add_u32 s{s_xs}, s{s_xs}, s4
s_mov_b32 s95, s94
s_cmp_gt_u32 s{s_br}, s{s_rnd}
s_cselect_b32 s{SX}, s54, s48
s_cselect_b32 s{SX+1}, s55, s49
""")
    def xdma():
        o = []
        for i in range(4):
            o += [f"s_add_u32 m0, s{s_lx}, {i*1024}", "s_nop 0", f"buffer_load_dwordx4 v{xd+i}, {srd(SX)}, s{s_xs} offen {APOL} lds"]
        return o
    ld_x_round()
    for l in xdma(): a(l)
    for j in range(3):
        a(f"""
s_add_u32 s3, s91, {j}
s_cmp_ge_u32 s3, 5
s_cselect_b32 s4, 5, 0
s_cselect_b32 s5, 32, 0
s_sub_u32 s4, s3, s4
s_lshl_b32 s4, s4, 2
v_add_u32 v{t0}, s4, v{g}
v_mul_u32_u24 v{t1}, 205, v{t0}
v_lshrrev_b32 v{t1}, 10, v{t1}
v_mul_u32_u24 v{t2}, 5, v{t1}
v_sub_u32 v{t0}, v{t0}, v{t2}
v_lshlrev_b32 v{t0}, 5, v{t0}
v_and_b32 v{t2}, 1, v{lane}
v_lshl_add_u32 v{gcol+j}, v{t2}, 4, v{t0}
v_lshrrev_b32 v{t0}, 1, v{t1}
v_lshlrev_b32 v{t0}, 4, v{t0}
v_and_b32 v{t1}, 1, v{t1}
v_lshl_add_u32 v{t0}, v{t1}, 2, v{t0}
v_bfe_u32 v{t1}, v{lane}, 3, 1
v_lshl_add_u32 v{t0}, v{t1}, 3, v{t0}
v_bfe_u32 v{t1}, v{lane}, 1, 2
v_add3_u32 v{grow+j}, v{t0}, v{t1}, s5
""")
    def ld_g_round(tag):
        a(f"""
s_add_u32 s3, s{s_br}, s{s_rnd}
s_mul_i32 s4, s{s_hg}, 160
s_mul_i32 s5, s{s_c16}, 160
s_add_u32 s5, s5, 1280
s_cmp_eq_u32 s3, 1
s_cselect_b32 s{s_gs}, s4, s5
s_movk_i32 s4, 3840
s_mov_b32 s5, {640*3840}
s_cmp_gt_u32 s{s_br}, s{s_rnd}
s_cselect_b32 s{s_ldw}, 1280, s4
s_cselect_b32 s{SW+2}, {640*1280}, s5
s_cselect_b32 s{SW}, s56, s50
s_cselect_b32 s{SW+1}, s57, s51
s_lshl_b32 s{s_gst}, s{s_ldw}, 6
s_mul_i32 s4, s{s_gst}, s94
s_add_u32 s{s_gs}, s{s_gs}, s4
s_mul_i32 s96, s{s_gst}, 10
""")
        for j in range(3):
            a(f"v_mad_u32_u24 v{gd+j}, v{grow+j}, s{s_ldw}, v{gcol+j}")
    gd_n = [0]
    def gdma():
        o = []
        for j in range(3):
            if j == 2:
                gd_n[0] += 1
                o += [f"s_cmp_ge_u32 s{s_lw}, 2", f"s_cbranch_scc1 L_g2_{gd_n[0]}"]
            o += [f"s_add_u32 m0, s{s_lg}, {j*1024}", "s_nop 0", f"buffer_load_dwordx4 v{gd+j}, {srd(SW)}, s{s_gs} offen {APOL} lds"]
        o.append(f"L_g2_{gd_n[0]}:")
        return o
    def ladv(lab):
        a(f"s_add_u32 s{s_xs}, s{s_xs}, 128")
        a(f"""
s_add_u32 s{s_gs}, s{s_gs}, s{s_gst}
s_add_u32 s95, s95, 1
s_cmp_eq_u32 s95, 10
s_cselect_b32 s4, 1280, 0
s_cselect_b32 s5, s96, 0
s_cselect_b32 s95, 0, s95
s_sub_u32 s{s_xs}, s{s_xs}, s4
s_sub_u32 s{s_gs}, s{s_gs}, s5
""")
        a(f"""
s_add_u32 s{s_lx}, s{s_lx}, {SL}
s_add_u32 s{s_lg}, s{s_lg}, {SL}
s_and_b32 s{s_lx}, s{s_lx}, {4*SL-1}
s_and_b32 s{s_lg}, s{s_lg}, {4*SL-1}
s_add_u32 s{s_cnt}, s{s_cnt}, 1
""")
    D = 6
    pv = VB + 16
    a(f"""
v_and_b32 v{t2}, 1, v{lane}
v_lshlrev_b32 v{t2}, 3, v{t2}
v_add_u32 v{t2}, s{s_hg}, v{t2}
v_and_b32 v{t3}, 7, v{lane}
v_add_u32 v{t3}, {C_EX}, v{t3}
s_cmp_eq_u32 s{s_br}, 0
s_cselect_b64 vcc, -1, 0
s_cselect_b32 s92, 8, 16
v_cndmask_b32 v{t2}, v{t3}, v{t2}, vcc
v_lshlrev_b32 v{t2}, 8, v{t2}
v_add_u32 v{pv}, {WS_CNT}, v{t2}
v_mov_b32 v{pv+1}, 0
s_mul_i32 s3, s{s_br}, s{s_lw}
s_cmp_eq_u32 s3, 0
s_cselect_b32 s93, {2*NST-1}, 99
""")
    ld_g_round("a")
    for l in gdma(): a(l)
    a(f"s_mov_b32 s{s_cnt}, 0")
    ladv("")
    a.label("L_ld_pro")
    for l in xdma() + gdma(): a(l)
    ladv("")
    a(f"""
s_cmp_lt_u32 s{s_cnt}, 4
s_cbranch_scc1 L_ld_pro
s_waitcnt vmcnt({3*D})
s_barrier
L_ld_loop:
s_cmp_lg_u32 s{s_cnt}, {NST}
s_cbranch_scc1 L_ld_same
s_mov_b32 s{s_rnd}, 1
""")
    ld_x_round()
    ld_g_round("b")
    a(f"""
L_ld_same:
s_waitcnt vmcnt({2*D})
s_barrier
""")
    a(f"""
s_cmp_lg_u32 s{s_cnt}, 13
s_cbranch_scc1 L_ld_noq
s_cmp_eq_u32 s{s_br}, 0
s_cbranch_scc1 L_ld_noq
""")
    def read_q():
        a(f"""
s_mul_i32 s3, s{s_w}, {2*RI_B}
s_add_u32 s3, s3, {STG}
v_lshlrev_b32 v{t0}, 4, v{lane}
v_add_u32 v{t0}, s3, v{t0}
v_and_b32 v{t1}, 31, v{lane}
v_lshlrev_b32 v{t1}, 3, v{t1}
v_add_u32 v{t1}, s3, v{t1}
ds_read_b128 {vr(Q1[0],4)}, v{t0}
ds_read_b64 {vr(Q2[0],2)}, v{t1} offset:1024
ds_read_b128 {vr(Q1[1],4)}, v{t0} offset:{RI_B}
ds_read_b64 {vr(Q2[1],2)}, v{t1} offset:{RI_B+1024}
s_waitcnt lgkmcnt(0)
""")
    read_q()
    a.label("L_ld_noq")
    a(f"""
s_cmp_lg_u32 s{s_cnt}, s93
s_cbranch_scc1 L_ld_nop
buffer_load_dword v{pv+1}, v{pv}, {WS}, 0 offen sc1
L_ld_nop:
""")
    if "nodma" not in XP:
        for l in xdma() + gdma(): a(l)
    ladv("")
    a(f"""
s_cmp_lt_u32 s{s_cnt}, {2*NST}
s_cbranch_scc1 L_ld_loop
""")
    vdma = VB; cst = VB + 4
    s_img, s_gd, s_nh = 20, 21, 22
    def poll(lab, execmask, want):
        a(f"""
s_mov_b64 exec, {execmask}
s_mov_b32 s3, 0
{lab}:
buffer_load_dword v{t3}, v{t2}, {WS}, 0 offen sc1
s_waitcnt vmcnt(0)
v_cmp_ne_u32 vcc, {want}, v{t3}
s_add_u32 s3, s3, 1
s_cmp_gt_u32 s3, {SPIN_MAX}
s_cbranch_scc1 {lab}_t
s_cbranch_vccz {lab}_d
s_sleep 2
s_branch {lab}
{lab}_t:
""")
        diag(a, 2 if "late" in lab else 3, t3)
        a(f"""
{lab}_d:
s_mov_b64 exec, -1
""")
    def dma_tile(m0expr, s_g):
        return [m0expr,
                f"s_mov_b64 exec, {MV}",
                f"buffer_load_dwordx4 v{vdma}, {WS}, s{s_g} offen offset:1024 {SC1} lds",
                f"buffer_load_dwordx4 v{vdma}, {WS}, s{s_g} offen offset:2048 {SC1} lds",
                f"s_mov_b64 exec, {MK}",
                f"buffer_load_dwordx4 v{vdma}, {WS}, s{s_g} offen offset:3072 {SC1} lds",
                f"s_mov_b64 exec, -1",
                f"buffer_load_dwordx4 v{vdma}, {WS}, s{s_g} offen {SC1} lds"]
    def img_base():
        a(f"""
s_lshl_b32 s3, s{s_hg}, 2
s_cmp_eq_u32 s{s_br}, 0
s_cselect_b32 s3, s3, 32
s_cselect_b32 s{s_nh}, 4, 1
s_mul_i32 s{s_img}, s3, {HEAD_B}
s_add_u32 s{s_img}, s{s_img}, {WS_KV}
v_lshlrev_b32 v{vdma}, 4, v{lane}
""")
    def consts(*ts):
        a("s_mov_b32 exec_hi, 0x1ffff")
        for t in ts:
            a(f"ds_write_b128 v{VB + 1 if t < 4 else VB + 2}, {vr(cst,4)} offset:{(t % 4) * TS_B}")
        a("s_mov_b32 exec_hi, -1")
    def first_tile(t):
        for l in dma_tile(f"s_add_u32 m0, s23, {t*TS_B}", s_gd): a(l)
        a(f"s_add_u32 s{s_gd}, s{s_gd}, {TILE_B}")
    img_base()
    a(f"""
s_cmp_ge_u32 s{s_lw}, s{s_nh}
s_cbranch_scc1 L_ld_idle0
s_mul_i32 s3, s{s_lw}, {HEAD_B}
s_add_u32 s{s_gd}, s{s_img}, s3
s_mul_i32 s23, s{s_lw}, {SLOT_B}
v_mul_u32_u24 v{t0}, 43, v{lane}
v_lshrrev_b32 v{t0}, 9, v{t0}
v_mul_u32_u24 v{t1}, 12, v{t0}
v_sub_u32 v{t1}, v{lane}, v{t1}
v_lshlrev_b32 v{t0}, 9, v{t0}
v_lshl_add_u32 v{t0}, v{t1}, 4, v{t0}
v_add_u32 v{t0}, {1024+320}, v{t0}
v_min_u32 v{t0}, {TILE_B}, v{t0}
v_add_u32 v{VB+1}, s23, v{t0}
v_cmp_eq_u32 vcc, 0, v{t1}
v_mov_b32 v{t2}, 0x3f803f80
v_mov_b32 v{t3}, 0x3f80
v_cndmask_b32 v{cst}, 0, v{t2}, vcc
v_cndmask_b32 v{cst+2}, 0, v{t2}, vcc
v_cndmask_b32 v{cst+3}, 0, v{t2}, vcc
v_cmp_eq_u32 vcc, 48, v{lane}
s_nop 1
v_cndmask_b32 v{cst+1}, v{cst}, v{t3}, vcc
v_add_u32 v{VB+2}, {4*TS_B}, v{VB+1}
s_waitcnt vmcnt({2*D})
s_barrier
s_waitcnt vmcnt({D})
v_cmp_ne_u32 vcc, s92, v{pv+1}
s_and_b32 s3, vcc_lo, 0xff
s_cbranch_scc1 L_ld_slow
""")
    first_tile(0); first_tile(1); consts(0, 1)
    a("s_barrier")
    first_tile(2); first_tile(3); consts(2, 3)
    a("s_waitcnt vmcnt(16)\ns_barrier")
    first_tile(4)
    a("s_barrier\ns_branch L_ld_fin")
    a.label("L_ld_slow")
    consts(0, 1)
    a(f"""
s_barrier
buffer_load_dword v{pv+1}, v{pv}, {WS}, 0 offen sc1
""")
    consts(2, 3)
    a(f"""
s_waitcnt vmcnt(1)
s_barrier
s_mov_b32 s4, 0
L_pollL:
s_waitcnt vmcnt(0)
v_cmp_ne_u32 vcc, s92, v{pv+1}
s_add_u32 s4, s4, 1
s_cmp_gt_u32 s4, {SPIN_MAX}
s_cbranch_scc1 L_pollL_t
s_and_b32 s3, vcc_lo, 0xff
s_cbranch_scc0 L_pollL_d
s_sleep 1
buffer_load_dword v{pv+1}, v{pv}, {WS}, 0 offen sc1
s_branch L_pollL
L_pollL_t:
""")
    diag(a, 1, pv + 1)
    a.label("L_pollL_d")
    for t in range(3): first_tile(t)
    a("s_barrier")
    for t in range(3, 5): first_tile(t)
    a.label("L_ld_fin")
    consts(4, 5, 6, 7)
    a("s_mov_b32 s18, 1")
    a(f"""
s_waitcnt lgkmcnt(0)
s_branch L_join
L_ld_idle0:
s_mov_b32 s18, 0
s_waitcnt vmcnt({2*D})
s_barrier
s_waitcnt vmcnt({D})
s_barrier
s_waitcnt vmcnt(0)
s_barrier
s_barrier
s_branch L_join
""")

    a.label("L_comp")
    V = Regs(VB, 147, "v")
    xa = V.alloc("xa", 2); xe = V.alloc("xe", 2); wr_ = V.alloc("wr"); er = V.alloc("er")
    sa = V.alloc("sa", 10)
    sn = V.alloc("sn", 5)
    acc0 = V.alloc("acc", 44, 4); xf0 = V.alloc("xf", 24, 4); wf0 = V.alloc("wf", 24, 4); ep = V.alloc("ep", 12, 4)
    acc = lambda i, j: acc0 + (i * 5 + j) * 4
    acce = acc0 + 40
    xf = lambda st, i: xf0 + (st * 3 + i) * 4
    wf = lambda j: wf0 + j * 4
    a(f"""
v_and_b32 v{t0}, 7, v{l16}
v_xor_b32 v{t0}, v{t0}, v{g}
v_lshlrev_b32 v{t0}, 4, v{t0}
v_lshl_add_u32 v{t0}, v{l16}, 7, v{t0}
s_lshl_b32 s3, s{s_w}, 12
v_add_u32 v{xa}, s3, v{t0}
v_xor_b32 v{xa+1}, 64, v{xa}
s_lshl_b32 s3, s{s_hg}, 11
v_add_u32 v{xe}, s3, v{t0}
v_xor_b32 v{xe+1}, 64, v{xe}
v_lshrrev_b32 v{t0}, 1, v{g}
v_mul_u32_u24 v{t0}, 2560, v{t0}
v_and_b32 v{t1}, 1, v{g}
v_lshl_add_u32 v{t0}, v{t1}, 7, v{t0}
v_lshl_add_u32 v{t0}, v{l16}, 3, v{t0}
v_add_u32 v{wr_}, 16384, v{t0}
v_lshrrev_b32 v{t0}, 2, v{l16}
v_lshl_add_u32 v{t0}, v{g}, 3, v{t0}
v_mul_u32_u24 v{t0}, 40, v{t0}
v_and_b32 v{t1}, 3, v{l16}
v_lshl_add_u32 v{t0}, v{t1}, 3, v{t0}
s_lshr_b32 s3, s{s_w}, 1
s_mul_i32 s3, s3, 3072
s_and_b32 s4, s{s_w}, 1
s_lshl_b32 s4, s4, 5
s_add_u32 s3, s3, s4
s_add_u32 s3, s3, {16384+10240}
v_add_u32 v{er}, s3, v{t0}
s_mov_b32 s{s_slot}, 0
s_mov_b32 s46, 0
""")
    def pi16(dst):
        a(f"""
v_and_b32 v{dst}, 3, v{l16}
v_bfe_u32 v{t3}, v{l16}, 2, 1
v_lshl_add_u32 v{dst}, v{t3}, 3, v{dst}
v_bfe_u32 v{t3}, v{l16}, 3, 1
v_lshl_add_u32 v{dst}, v{t3}, 2, v{dst}
""")
    a(f"s_mul_i32 s4, s{s_w}, {RI_B}\ns_add_u32 s4, s4, {STG}")
    pi16(t2)
    for j in range(5):
        a(f"""
v_add_u32 v{t0}, {4*j}, v{g}
v_mul_u32_u24 v{t1}, 205, v{t0}
v_lshrrev_b32 v{t1}, 10, v{t1}
v_mul_u32_u24 v{t3}, 5, v{t1}
v_sub_u32 v{t0}, v{t0}, v{t3}
v_mul_u32_u24 v{t1}, {4*RI_B}, v{t1}
v_lshrrev_b32 v{t3}, 1, v{t0}
v_lshl_add_u32 v{t3}, v{t3}, 5, v{t2}
v_lshlrev_b32 v{t3}, 4, v{t3}
v_and_b32 v{ep}, 1, v{t0}
v_lshl_add_u32 v{t3}, v{ep}, 3, v{t3}
v_lshlrev_b32 v{ep}, 3, v{t2}
v_add_u32 v{ep}, 1024, v{ep}
v_cmp_eq_u32 vcc, 4, v{t0}
v_mov_b32 v{ep+1}, 256
v_mov_b32 v{ep+2}, 128
v_cndmask_b32 v{t3}, v{t3}, v{ep}, vcc
v_cndmask_b32 v{ep+1}, v{ep+1}, v{ep+2}, vcc
v_add3_u32 v{sa+2*j}, v{t1}, v{t3}, s4
v_add_u32 v{sa+2*j+1}, v{sa+2*j}, v{ep+1}
""")
    a(f"""
v_lshrrev_b32 v{t2}, 1, v{g}
v_mul_u32_u24 v{t2}, 320, v{t2}
v_and_b32 v{t3}, 1, v{g}
v_lshl_add_u32 v{t2}, v{t3}, 3, v{t2}
""")
    for j in range(5):
        a(f"""
v_add_u32 v{t0}, {16*j}, v{l16}
v_mul_u32_u24 v{t1}, 205, v{t0}
v_lshrrev_b32 v{t1}, 12, v{t1}
v_mul_u32_u24 v{t3}, 20, v{t1}
v_sub_u32 v{t0}, v{t0}, v{t3}
v_mul_u32_u24 v{t1}, {4*RI_B}, v{t1}
v_lshl_add_u32 v{t0}, v{t0}, 4, v{t2}
v_add3_u32 v{sn+j}, v{t0}, v{t1}, s4
""")
    for r in range(44): a(f"v_mov_b32 v{acc0+r}, 0")
    JK = 147
    if PFM == "comp":
        a(f"""
v_lshrrev_b32 v{ep}, 2, v{lane}
v_and_b32 v{t3}, 3, v{lane}
v_lshlrev_b32 v{t3}, 6, v{t3}
v_mul_u32_u24 v{ep+1}, 1280, v{ep}
v_add_u32 v{ep+1}, v{ep+1}, v{t3}
v_min_u32 v{t3}, 156, v{t3}
s_mov_b32 s18, {2048*1280}
s_mov_b32 s19, 0x20000
s_mov_b32 s23, 0x20000
""")
        for rnd in range(2):
            nrow = 24 if rnd == 0 else 40
            a(f"""
s_add_u32 s3, s{s_br}, {rnd}
s_mul_i32 s4, s{s_hg}, 160
s_mul_i32 s5, s{s_c16}, 160
s_add_u32 s5, s5, 1280
s_cmp_eq_u32 s3, 1
s_cselect_b32 s7, s4, s5
s_cselect_b32 s4, s{s_mt}, s{s_mu}
s_lshl_b32 s4, s4, 7
s_lshl_b32 s5, s{s_hg}, 4
s_add_u32 s4, s4, s5
s_mul_i32 s24, s4, 1280
s_lshl_b32 s5, s{s_w}, 8
s_add_u32 s25, s24, s5
s_movk_i32 s4, 3840
s_mov_b32 s5, {640*3840}
s_cmp_gt_u32 s{s_br}, {rnd}
s_cselect_b32 s6, 1280, s4
s_cselect_b32 s22, {640*1280}, s5
s_cselect_b32 s20, s56, s50
s_cselect_b32 s21, s57, s51
s_cselect_b32 s16, s54, s48
s_cselect_b32 s17, s55, s49
s_lshl_b32 s5, s{s_w}, 2
s_bfe_u32 s4, s2, 0x20003
s_add_u32 s5, s5, s4
s_mul_i32 s5, s5, {nrow}
s_add_u32 s5, s5, {256 if rnd == 0 else 0}
s_mul_i32 s5, s5, s6
s_add_u32 s26, s5, s7
s_mul_i32 s5, s6, {nrow - 16}
s_add_u32 s27, s26, s5
v_mad_u32_u24 v{t0}, v{ep}, s6, v{t3}
""")
            if rnd == 0:
                a(f"""
buffer_load_dword v{JK}, v{ep+1}, s[16:19], s25 offen offset:256
buffer_load_dword v{JK}, v{t0}, s[20:23], s26 offen
buffer_load_dword v{JK}, v{t0}, s[20:23], s27 offen
""")
            else:
                a(f"""
buffer_load_dword v{JK}, v{ep+1}, s[16:19], s25 offen
buffer_load_dword v{JK}, v{t0}, s[20:23], s26 offen
s_lshl_b32 s5, s6, 4
s_add_u32 s26, s26, s5
buffer_load_dword v{JK}, v{t0}, s[20:23], s26 offen
buffer_load_dword v{JK}, v{t0}, s[20:23], s27 offen
buffer_load_dword v{JK}, v{ep+1}, s[16:19], s24 offen offset:1024
""")
    a.label("L_round")
    a(f"""
s_mov_b32 s{s_cnt}, 0
s_add_u32 s3, s{s_br}, s{s_rnd}
s_lshr_b32 s4, s{s_c16}, 3
s_add_u32 s4, s4, 1
s_mul_i32 s5, s{s_br}, 3
s_cmp_eq_u32 s3, 1
s_cselect_b32 s{s_type}, s5, s4
v_add_u32 v{xa}, s46, v{xa}
v_add_u32 v{xa+1}, s46, v{xa+1}
v_add_u32 v{wr_}, s46, v{wr_}
s_waitcnt lgkmcnt(0)
s_barrier
s_cmp_lg_u32 s3, 2
s_cbranch_scc1 L_rnd_noq
""")
    read_q()
    a.label("L_rnd_noq")
    ENTRY_HOOK = True
    def rx(st, i):
        if i < 2: return f"ds_read_b128 {vr(xf(st,i),4)}, v{xa+st} offset:{i*2048}"
        return f"ds_read_b128 {vr(xf(st,2),4)}, v{xe+st}"
    def rw(st, j, h):
        if j < 5: return f"ds_read_b64_tr_b16 {vr(wf(j)+2*h,2)}, v{wr_} offset:{st*5120 + h*1280 + j*256}"
        return f"ds_read_b64_tr_b16 {vr(wf(5)+2*h,2)}, v{er} offset:{(32*st+4*h)*40}"
    def mf_list(st, orient, ext):
        out = []
        for j in range(5):
            for i in range(2):
                A, B = (wf(j), xf(st, i)) if orient == 'T' else (xf(st, i), wf(j))
                out.append((f"v_mfma_f32_16x16x32_bf16 {vr(acc(i,j),4)}, {vr(A,4)}, {vr(B,4)}, {vr(acc(i,j),4)}", [("x", st, i), ("w", j)]))
        if ext:
            A, B = (wf(5), xf(st, 2)) if ext == 'T' else (xf(st, 2), wf(5))
            out.append((f"v_mfma_f32_16x16x32_bf16 {vr(acce,4)}, {vr(A,4)}, {vr(B,4)}, {vr(acce,4)}", [("x", st, 2), ("w", 5)]))
        return out
    def gaps(rs, ext, late):
        W = lambda j, h: (rw(rs, j, h), ("w", j))
        X = lambda i: (rx(rs, i), ("x", rs, i))
        if late:
            gp = {1: [W(0,0), W(0,1)], 2: [X(0)], 3: [W(1,0), X(1)], 4: [W(1,1)], 5: [W(2,0)], 6: [W(2,1)], 7: [W(3,0)], 8: [W(3,1)], 9: [W(4,0), W(4,1)]}
        else:
            gp = {0: [X(0)], 1: [W(0,0), W(0,1)], 2: [X(1)], 3: [W(1,0)], 4: [W(1,1)], 5: [W(2,0)], 6: [W(2,1)], 7: [W(3,0)], 8: [W(3,1)], 9: [W(4,0), W(4,1)]}
        if ext:
            gp[6] = gp[6] + [X(2)]
            gp[10] = [W(5,0), W(5,1)]
        return gp
    def body(orient, ext, pend):
        out = []
        for st, rs, late in ((1, 0, True), (0, 1, False)):
            gp = gaps(rs, ext, late)
            if not late: out.append("@MID@")
            for m, (ins, needs) in enumerate(mf_list(st, orient, ext)):
                k = max([i for i, tg in enumerate(pend) if tg in needs], default=-1)
                if k >= 0:
                    n = len(pend) - 1 - k
                    out.append(f"s_waitcnt lgkmcnt({min(n, 15)})")
                    pend[:] = pend[k+1:] if n <= 15 else pend[len(pend)-15:]
                out.append(ins)
                if late and m == 1:
                    out += ["@ADV@", "s_waitcnt lgkmcnt(0)", "s_barrier"]; pend[:] = []
                for (r, tg) in gp.get(m, []):
                    out.append(r); pend.append(tg)
        return out
    def entry_reads(ext):
        for i in range(3 if ext else 2): a(rx(0, i))
        for j in range(6 if ext else 5):
            a(rw(0, j, 0)); a(rw(0, j, 1))
    entry_reads(False)
    a(f"""
s_cmp_eq_u32 s{s_type}, 2
s_waitcnt lgkmcnt(0)
s_cbranch_scc1 L_g_N_mid
s_cmp_eq_u32 s{s_type}, 3
s_cbranch_scc0 L_g_T_mid
""")
    a(rx(0, 2)); a(rw(0, 5, 0)); a(rw(0, 5, 1))
    a(f"""
s_cmp_lt_u32 s{s_w}, 2
s_waitcnt lgkmcnt(0)
s_cbranch_scc1 L_g_ET_mid
s_branch L_g_EN_mid
""")
    def gemm(label, orient, ext):
        a.label(label)
        pend = []
        body(orient, ext, pend)
        p0 = list(pend)
        code = body(orient, ext, pend)
        assert pend == p0
        regs = [xa, xa + 1, wr_] + ([xe, xe + 1, er] if ext else [])
        if "nomfma" in XP: code = [l for l in code if not l.startswith("v_mfma")]
        if "noread" in XP: code = [l for l in code if not l.startswith("ds_read")]
        for l in code:
            if l == "@ADV@":
                for r in regs: a(f"v_add_u32 v{r}, s46, v{r}")
            elif l == "@MID@": a.label(label + "_mid")
            else: a(l)
        a(f"""
s_add_u32 s{s_slot}, s{s_slot}, 1
s_and_b32 s{s_slot}, s{s_slot}, 3
s_mov_b32 s46, {(-3*SL) & 0xffffffff:#x}
s_cselect_b32 s46, {SL}, s46
s_add_u32 s{s_cnt}, s{s_cnt}, 1
s_cmp_lt_u32 s{s_cnt}, {NST}
s_cbranch_scc1 {label}
""")
        for m, (ins, needs) in enumerate(mf_list(1, orient, ext)):
            k = max([i for i, tg in enumerate(pend) if tg in needs], default=-1)
            if k >= 0:
                a(f"s_waitcnt lgkmcnt({min(len(pend) - 1 - k, 15)})"); pend[:] = pend[k+1:]
            a(ins)
    def pack(dst, src, scale=None):
        if scale is not None:
            a(f"v_pk_mul_f32 {vr(src,2)}, {vr(src,2)}, s[{scale}:{scale+1}]")
            a(f"v_pk_mul_f32 {vr(src+2,2)}, {vr(src+2,2)}, s[{scale}:{scale+1}]")
        a(f"v_cvt_pk_bf16_f32 v{dst}, v{src}, v{src+1}")
        a(f"v_cvt_pk_bf16_f32 v{dst+1}, v{src+2}, v{src+3}")
    def extra():
        a(f"""
s_lshl_b32 s3, s{s_w}, 9
s_add_u32 s3, s3, {STGE}
v_lshlrev_b32 v{t0}, 3, v{lane}
v_add_u32 v{t0}, s3, v{t0}
s_nop 7
""")
        pack(ep + 8, acce)
        a(f"ds_write_b64 v{t0}, {vr(ep+8,2)}")
    gemm("L_g_ET", 'T', 'T')
    extra()
    a("s_branch L_epi")
    gemm("L_g_EN", 'T', 'N')
    extra()
    a("s_branch L_epi")
    def epi(orient):
        n = 0
        for j in range(5):
            for i in range(2):
                d = ep + 2 * (n % 4); n += 1
                pack(d, acc(i, j), 6 if orient == 'T' else None)
                if orient == 'T': a(f"ds_write_b64 v{sa+2*j+i}, {vr(d,2)}")
                else: a(f"ds_write_b64 v{sn+j}, {vr(d,2)} offset:{640*i}")
                for r in range(4): a(f"v_mov_b32 v{acc(i,j)+r}, 0")
    gemm("L_g_N", 'N', None)
    a("s_nop 3")
    epi('N')
    a("s_branch L_epid")
    gemm("L_g_T", 'T', None)
    a.label("L_epi")
    a(f"""
s_mov_b32 s6, {f32bits(QSCALE):#x}
s_cmp_eq_u32 s{s_type}, 1
s_cselect_b32 s6, 1.0, s6
s_mov_b32 s7, s6
s_nop 3
""")
    epi('T')
    a.label("L_epid")
    a(f"""
s_cmp_eq_u32 s{s_rnd}, 1
s_mov_b32 s{s_rnd}, 1
s_cbranch_scc0 L_round
s_mov_b32 s18, 0
s_waitcnt lgkmcnt(0)
s_barrier
""")
    a.label("L_join")
    stamp(a, 1)
    a(f"s_cmp_eq_u32 s{s_br}, 1\ns_cbranch_scc1 L_haveq")
    read_q()
    a.label("L_haveq")
    V = Regs(VB, 148, "v")
    vdma = V.alloc("vdma"); vA = V.alloc("vA", 2); vK = V.alloc("vK", 2); vt8 = V.alloc("vt8"); mx = V.alloc("mx", 2)
    K2 = [V.alloc("K2e", 2, 2), V.alloc("K2o", 2, 2)]
    K1 = [V.alloc("K1e", 4, 4), V.alloc("K1o", 4, 4)]
    V0 = [V.alloc("V0e", 4, 4), V.alloc("V0o", 4, 4)]
    V1 = [V.alloc("V1e", 4, 4), V.alloc("V1o", 4, 4)]
    P = V.alloc("P", 8, 4)
    S = [V.alloc("SA", 16, 4), V.alloc("SB", 16, 4)]
    O = [V.alloc("OA", 16, 4), V.alloc("OB", 16, 4)]
    assert vdma == VB
    s_ob = 19
    img_base()
    a(f"""
s_lshr_b32 s3, s{s_w}, 1
s_cmp_eq_u32 s{s_br}, 0
s_cselect_b32 s4, s3, 0
s_mul_i32 s5, s4, {HEAD_B}
s_add_u32 s{s_img}, s{s_img}, s5
s_mul_i32 s4, s4, {SLOT_B}
v_add_u32 v{vA}, s4, v{vdma}
v_add_u32 v{vA+1}, {4*TS_B}, v{vA}
v_and_b32 v{t1}, 31, v{lane}
v_lshlrev_b32 v{vt8}, 3, v{t1}
v_add_u32 v{t0}, 3072, v{vt8}
v_mov_b32 v{t1}, {TILE_B}
v_cndmask_b32 v{t0}, v{t0}, v{t1}, {MHI}
v_add_u32 v{vK}, s4, v{t0}
v_add_u32 v{vK+1}, {4*TS_B}, v{vK}
s_lshl_b32 s4, s{s_br}, 5
s_lshl_b32 s5, s{s_hg}, 2
s_add_u32 s4, s4, s5
s_add_u32 s4, s4, s3
s_lshl_b32 s4, s4, 6
s_lshl_b32 s5, s{s_mt}, 2
s_add_u32 s4, s4, s5
s_and_b32 s5, s{s_w}, 1
s_lshl_b32 s5, s5, 1
s_add_u32 s4, s4, s5
s_mul_i32 s{s_ob}, s4, {RI_B}
s_add_u32 s{s_ob}, s{s_ob}, {WS_O}
s_mov_b32 s{s_cnt}, 0
""")
    for r in range(16):
        a(f"v_mov_b32 v{O[0]+r}, 0\nv_mov_b32 v{O[1]+r}, 0")
    for r in range(4):
        a(f"v_mov_b32 v{P+4+r}, 0\nv_mov_b32 v{V1[1]+r}, 0")
    def zero_off():
        for x in range(2):
            a(f"v_cndmask_b32 v{Q2[x]}, v{Q2[x]}, 0, {MHI}")
            a(f"v_cndmask_b32 v{Q2[x]+1}, v{Q2[x]+1}, 0, {MHI}")
    zero_off()
    a(f"""
s_waitcnt vmcnt(8) lgkmcnt(0)
s_barrier
ds_read_b128 {vr(K1[0],4)}, v{vA}
ds_read_b64 {vr(K2[0],2)}, v{vK}
ds_read_b128 {vr(V0[0],4)}, v{vA} offset:1024
ds_read_b128 {vr(V1[0],4)}, v{vA} offset:2048
ds_read_b128 {vr(K1[1],4)}, v{vA} offset:{TS_B}
ds_read_b64 {vr(K2[1],2)}, v{vK} offset:{TS_B}
""")
    a("s_cmp_eq_u32 s18, 0\ns_cbranch_scc1 L_no56")
    first_tile(5); first_tile(6)
    a.label("L_no56")
    stamp(a, 3)
    def qk(x, kb):
        return [f"v_mfma_f32_32x32x16_bf16 {vr(S[x],16)}, {vr(K1[kb],4)}, {vr(Q1[x],4)}, 0",
                f"v_mfma_f32_32x32x8_bf16 {vr(S[x],16)}, {vr(K2[kb],2)}, {vr(Q2[x],2)}, {vr(S[x],16)}"]
    def rowmax(x, dst, first):
        s = S[x]
        if first:
            a(f"v_max3_f32 v{dst}, v{s}, v{s+1}, v{s+2}")
            a(f"v_max_f32 v{dst}, v{dst}, v{s+3}")
            rs = range(4, 16, 2)
        else:
            rs = range(0, 16, 2)
        for r in rs:
            a(f"v_max3_f32 v{dst}, v{dst}, v{s+r}, v{s+r+1}")
    def set_off(x, m):
        a(f"""
v_mov_b32 v{t0}, v{m}
s_nop 1
v_permlane32_swap_b32 v{m}, v{t0}
s_nop 1
v_max_f32 v{t0}, v{m}, v{t0}
v_sub_f32 v{t0}, 0, v{t0}
v_and_b32 v{t1}, 0xffff0000, v{t0}
v_sub_f32 v{t0}, v{t0}, v{t1}
v_and_b32 v{t2}, 0xffff0000, v{t0}
v_sub_f32 v{t0}, v{t0}, v{t2}
s_mov_b32 s3, 0x07060302
v_perm_b32 v{t1}, v{t2}, v{t1}, s3
v_lshrrev_b32 v{t0}, 16, v{t0}
v_cndmask_b32 v{Q2[x]}, v{Q2[x]}, v{t1}, {MHI}
v_cndmask_b32 v{Q2[x]+1}, v{Q2[x]+1}, v{t0}, {MHI}
""")
    a("s_waitcnt lgkmcnt(4)")
    for x in range(2):
        for l in qk(x, 0): a(l)
    a("s_nop 7\ns_nop 3")
    rowmax(0, mx, True)
    set_off(0, mx)
    a("s_nop 1")
    for l in qk(0, 0): a(l)
    rowmax(1, mx + 1, True)
    set_off(1, mx + 1)
    a("s_waitcnt vmcnt(8) lgkmcnt(0)")

    def unit(x, t):
        y = 1 - x
        s = S[x]
        e = t & 1; o = 1 - e
        E = [f"v_exp_f32 v{s+i}, v{s+i}" for i in range(16)]
        C = [f"v_cvt_pk_bf16_f32 v{P+i}, v{s+2*i}, v{s+2*i+1}" for i in range(8)]
        M1, M3 = qk(y, e if x == 0 else o)
        M2 = f"v_mfma_f32_32x32x16_bf16 {vr(O[y],16)}, {vr(V1[o if x == 0 else e],4)}, {vr(P+4,4)}, {vr(O[y],16)}"
        M4 = f"v_mfma_f32_32x32x16_bf16 {vr(O[x],16)}, {vr(V0[e],4)}, {vr(P,4)}, {vr(O[x],16)}"
        def addr(tt):
            tt %= 8
            return (vA + tt // 4, vK + tt // 4, (tt % 4) * TS_B)
        A1, _, o1 = addr(t + 1)
        A2, B2, o2 = addr(t + 2)
        if x == 0:
            f1 = [f"ds_read_b128 {vr(V0[o],4)}, v{A1} offset:{o1+1024}"]
            f2 = [f"ds_read_b128 {vr(V1[o],4)}, v{A1} offset:{o1+2048}"]
            f4 = [f"ds_read_b128 {vr(K1[e],4)}, v{A2} offset:{o2}"]
        else:
            f1 = [f"ds_read_b64 {vr(K2[e],2)}, v{B2} offset:{o2}"]
            f2 = ["s_barrier"] if t % 2 == 0 else (["s_waitcnt vmcnt(0)"] if t == 1 else [])
            f4 = ["s_waitcnt lgkmcnt(0)"]
        if "halfread" in XP and (t // 2) % 2 == 1:
            f1 = [l for l in f1 if not l.startswith("ds_read")]; f2 = [l for l in f2 if not l.startswith("ds_read")]; f4 = [l for l in f4 if not l.startswith("ds_read")]
        if "nox8" in XP: M3 = "s_nop 0"
        if "pvz" in XP:
            M2 = M2.replace(vr(V1[o if x == 0 else e],4), "v[140:143]"); M4 = M4.replace(vr(V0[e],4), "v[140:143]")
        out = []
        PR = os.environ.get("PRIO", "")
        p0 = p1 = []
        if (PR == "1" and x == 1) or PR == "2":
            p0, p1 = ["s_setprio 0"], ["s_setprio 1"]
        out += [M1] + f1 + E[0:4]
        out += [M2] + f2 + [E[4], C[0], E[5], C[1], E[6], E[7]]
        out += [M3] + p0 + [E[8]] + p1 + [C[2], E[9], C[3], E[10], E[11]]
        out += [M4] + f4 + [E[12], C[4], E[13], C[5], E[14], E[15], C[6], C[7]]
        return out
    if os.environ.get("PRIO") == "3":
        a(f"s_cmp_lt_u32 s{s_w}, 4\ns_cbranch_scc1 L_noprio\ns_setprio 1\nL_noprio:")
    if "pvz" in XP:
        for r in range(4): a(f"v_mov_b32 v{140+r}, 0")
    stamp(a, 4)
    a(".p2align 6")
    a.label("L_attn_loop")
    for t in range(8):
        for x in range(2):
            for l in unit(x, t): a(l)
    a(f"""
s_add_u32 s{s_cnt}, s{s_cnt}, 1
s_cmp_lt_u32 s{s_cnt}, 8
s_cbranch_scc1 L_attn_loop
v_mfma_f32_32x32x16_bf16 {vr(O[1],16)}, {vr(V1[1],4)}, {vr(P+4,4)}, {vr(O[1],16)}
s_nop 7
s_nop 7
""")
    stamp(a, 5)
    def getl(x, dst):
        a(f"""
v_mov_b32 v{dst}, v{O[x]+8}
v_mov_b32 v{t0}, v{O[x]+8}
s_nop 1
v_permlane32_swap_b32 v{t0}, v{dst}
s_nop 1
""")
    a(f"s_mov_b32 s4, {f32bits(2.0**-20):#x}\ns_mov_b32 s5, {f32bits(2.0**60):#x}\ns_mov_b32 s3, 0x7f800000\ns_mov_b64 s[46:47], -1")
    for x in range(2):
        getl(x, mx + x)
        o = O[x]
        a(f"v_add_f32 v{t3}, abs(v{o}), abs(v{o+1})")
        for r in range(2, 8):
            a(f"v_add_f32 v{t3}, v{t3}, abs(v{o+r})")
        a(f"v_add_f32 v{t0}, abs(v{o+8}), abs(v{o+9})")
        a(f"v_add_f32 v{t0}, v{t0}, abs(v{o+10})")
        a(f"v_add_f32 v{t0}, v{t0}, abs(v{o+11})")
        a(f"v_cndmask_b32 v{t0}, v{t0}, 0, {MHI}")
        a(f"v_add_f32 v{t3}, v{t3}, v{t0}")
        a(f"""
v_cmp_gt_f32 vcc, s3, v{t3}
s_and_b64 s[46:47], s[46:47], vcc
v_cmp_le_f32 vcc, s4, v{mx+x}
s_and_b64 s[46:47], s[46:47], vcc
v_cmp_ge_f32 vcc, s5, v{mx+x}
s_and_b64 s[46:47], s[46:47], vcc
""")
    a(f"""
s_cmp_eq_u64 s[46:47], -1
s_cbranch_scc0 L_attn_slow
L_attn_fin:
v_lshlrev_b32 v{t1}, 3, v{lane}
v_lshrrev_b32 v{t2}, 5, v{lane}
v_mul_u32_u24 v{t2}, {RI_B - 256}, v{t2}
v_add_u32 v{t1}, v{t1}, v{t2}
""")
    for x in range(2):
        o = O[x]; d = S[x]
        a(f"v_rcp_f32 v{t0}, v{mx+x}\ns_nop 0")
        for r in range(12):
            a(f"v_mul_f32 v{o+r}, v{o+r}, v{t0}")
        a(f"""
v_cvt_pk_bf16_f32 v{d}, v{o}, v{o+1}
v_cvt_pk_bf16_f32 v{d+1}, v{o+2}, v{o+3}
v_cvt_pk_bf16_f32 v{d+2}, v{o+4}, v{o+5}
v_cvt_pk_bf16_f32 v{d+3}, v{o+6}, v{o+7}
v_cvt_pk_bf16_f32 v{P+2*x}, v{o+8}, v{o+9}
v_cvt_pk_bf16_f32 v{P+2*x+1}, v{o+10}, v{o+11}
v_permlane32_swap_b32 v{d}, v{d+2}
v_permlane32_swap_b32 v{d+1}, v{d+3}
s_nop 1
buffer_store_dwordx4 {vr(d,4)}, v{vdma}, {WS}, s{s_ob} offen offset:{RI_B*x} {SC1}
""")
    a(f"""
v_permlane32_swap_b32 v{P}, v{P+2}
v_permlane32_swap_b32 v{P+1}, v{P+3}
s_nop 1
buffer_store_dwordx2 {vr(P,2)}, v{t1}, {WS}, s{s_ob} offen offset:1024 {SC1}
""")
    V = Regs(VB + 1, 160, "v")
    om = V.alloc("om"); ot = V.alloc("ot"); wr = V.alloc("wr", 2); oa = V.alloc("oa")
    OF = V.alloc("OF", 80, 4); CA = V.alloc("CA", 20, 4); WF = V.alloc("WF", 40, 4)
    SO = SX
    pi16(t2)
    a(f"""
s_lshl_b32 s3, s{s_br}, 11
s_lshl_b32 s4, s{s_mt}, 2
s_add_u32 s3, s3, s4
s_lshr_b32 s4, s{s_w}, 1
s_add_u32 s3, s3, s4
s_mul_i32 s3, s3, {RI_B}
s_add_u32 s33, s3, {WS_O}
s_and_b32 s4, s{s_w}, 1
s_lshl_b32 s4, s4, 4
v_add_u32 v{t2}, s4, v{t2}
v_lshrrev_b32 v{t0}, 1, v{g}
s_mov_b32 s5, {RIH_B}
v_mul_lo_u32 v{t0}, v{t0}, s5
v_and_b32 v{t3}, 1, v{g}
v_lshlrev_b32 v{t3}, 9, v{t3}
v_lshl_add_u32 v{t3}, v{t2}, 4, v{t3}
v_add_u32 v{om}, v{t0}, v{t3}
s_mov_b32 s5, {2*RIH_B}
v_mul_lo_u32 v{t0}, v{g}, s5
v_lshl_add_u32 v{ot}, v{t2}, 3, v{t0}
v_lshrrev_b32 v{t0}, 1, v{g}
v_mul_u32_u24 v{t0}, 2560, v{t0}
v_and_b32 v{t3}, 1, v{g}
v_lshl_add_u32 v{t0}, v{t3}, 7, v{t0}
v_lshl_add_u32 v{wr+1}, v{l16}, 3, v{t0}
v_add_u32 v{wr}, {WO1}, v{wr+1}
s_lshl_b32 s3, s{s_mt}, 7
s_lshl_b32 s4, s{s_w}, 4
s_add_u32 s3, s3, s4
s_mul_i32 s3, s3, 2560
s_mul_i32 s4, s{s_br}, 1280
s_add_u32 s3, s3, s4
s_mul_i32 s4, s{s_hg}, 160
s_add_u32 s32, s3, s4
v_mul_u32_u24 v{oa}, 2560, v{l16}
v_lshl_add_u32 v{oa}, v{g}, 3, v{oa}
s_mul_i32 s6, s{s_hg}, {4*RIH_B*CROT}
s_add_u32 s6, s6, s33
s_add_u32 s7, s33, {32*RIH_B}
s_mov_b32 s{SO}, s64
s_mov_b32 s{SO+1}, s65
s_mov_b32 s{SO+2}, {2048*2560}
s_mov_b32 s{SO+3}, 0x20000
s_waitcnt vmcnt(0)
s_barrier
""")
    stamp(a, 6)
    def rwo(st):
        b = WF + (st % 2) * 20
        reg, base = (wr, st * 5120) if st < NWO1 else (wr + 1, (st - NWO1) * 5120)
        return [[f"ds_read_b64_tr_b16 {vr(b+4*j,2)}, v{reg} offset:{base + j*256}",
                 f"ds_read_b64_tr_b16 {vr(b+4*j+2,2)}, v{reg} offset:{base + 1280 + j*256}"] for j in range(5)]
    for r in range(20): a(f"v_mov_b32 v{CA+r}, 0")
    for gl in rwo(0) + rwo(1):
        for l in gl: a(l)
    a("s_barrier")
    stamp2(a, 10)
    CD = int(os.environ.get("CD", "20"))
    oq = []
    def oload(st):
        if st < 16:
            a(f"buffer_load_dwordx4 {vr(OF+4*st,4)}, v{om}, {WS}, s6 offen {SC1}"); oq.append(st)
            if st < 15: a(f"s_add_u32 s6, s6, {2*RIH_B}\ns_cmp_eq_u32 s6, s7\ns_cselect_b32 s6, s33, s6")
            else: a(f"s_add_u32 s33, s33, 1024\ns_add_u32 s4, s33, {RIH_B}")
        elif st < 20:
            u = st - 16
            a(f"buffer_load_dwordx2 {vr(OF+64+4*u,2)}, v{ot}, {WS}, s33 offen {SC1}")
            a(f"buffer_load_dwordx2 {vr(OF+66+4*u,2)}, v{ot}, {WS}, s4 offen {SC1}"); oq.extend([st, st])
            if u < 3: a(f"s_add_u32 s33, s33, {8*RIH_B}\ns_add_u32 s4, s4, {8*RIH_B}")
    for st in range(CD): oload(st)
    pend = []
    for st in range(20):
        b = WF + (st % 2) * 20
        nl = len([x for x in oq if x > st])
        a(f"s_waitcnt vmcnt({nl})" + (" lgkmcnt(0)" if st == 0 else ""))
        if STAMPS and os.environ.get("CST") and st in (0, 8, 16):
            a(f"s_memrealtime s[{40+st//4}:{41+st//4}]")
        nxt_ = rwo(st + 2) if st + 2 < 20 else None
        for j in range(5):
            if (st, j) in pend:
                k = pend.index((st, j))
                n = 2 * (len(pend) - 1 - k)
                if n < 14 or j == 0 or True:
                    a(f"s_waitcnt lgkmcnt({min(n, 14)})")
                pend = pend[k+1:] if n <= 14 else pend[len(pend)-7:]
            a(f"v_mfma_f32_16x16x32_bf16 {vr(CA+4*j,4)}, {vr(b+4*j,4)}, {vr(OF+4*st,4)}, {vr(CA+4*j,4)}")
            if nxt_:
                for l in nxt_[j]: a(l)
                pend.append((st + 2, j))
            if j == 0: oload(st + CD)
    a("s_nop 7\ns_nop 3")
    stamp2(a, 11)
    if STAMPS and os.environ.get("CST"):
        b = SV[0]
        for n, r in enumerate((40, 42, 44)):
            a(f"v_mov_b32 v{b}, s{r}\nv_mov_b32 v{b+1}, s{r+1}\nbuffer_store_dwordx2 v[{b}:{b+1}], v{b+4}, s[72:75], s71 offen offset:{(13+n)*8}\ns_nop 4")
    for j in range(5):
        d = WF + 2 * j
        a(f"v_cvt_pk_bf16_f32 v{d}, v{CA+4*j}, v{CA+4*j+1}")
        a(f"v_cvt_pk_bf16_f32 v{d+1}, v{CA+4*j+2}, v{CA+4*j+3}")
        a(f"buffer_store_dwordx2 {vr(d,2)}, v{oa}, {srd(SO)}, s32 offen offset:{j*32}")
    if STAMPS:
        a("s_waitcnt vmcnt(0)")
        stamp(a, 7)
    a("s_endpgm")

    a.label("L_aux")
    aux_start = len(a.lines)
    SA_, SB_ = 80, 84
    wm_, wt_ = VB + 6, VB + 11
    def wo_addr():
        a(f"s_mul_i32 s7, s{s_hg}, 160")
        for i in range(5):
            a(f"""
v_add_u32 v{t0}, {4*i}, v{g}
v_mul_u32_u24 v{t1}, 205, v{t0}
v_lshrrev_b32 v{t1}, 10, v{t1}
v_mul_u32_u24 v{t2}, 5, v{t1}
v_sub_u32 v{t0}, v{t0}, v{t2}
v_lshlrev_b32 v{t0}, 5, v{t0}
v_and_b32 v{t2}, 1, v{lane}
v_lshl_add_u32 v{t0}, v{t2}, 4, v{t0}
v_add_u32 v{t0}, s7, v{t0}
v_bfe_u32 v{t2}, v{lane}, 1, 2
v_bfe_u32 v{t3}, v{lane}, 3, 1
v_lshrrev_b32 v{wm_+i}, 1, v{t1}
v_mul_u32_u24 v{wm_+i}, 20, v{wm_+i}
v_lshl_add_u32 v{wm_+i}, v{t3}, 3, v{wm_+i}
v_and_b32 v{wt_+i}, 1, v{t1}
v_lshl_add_u32 v{wm_+i}, v{wt_+i}, 2, v{wm_+i}
v_add_u32 v{wm_+i}, v{wm_+i}, v{t2}
v_mul_u32_u24 v{wm_+i}, 1280, v{wm_+i}
v_add_u32 v{wm_+i}, v{wm_+i}, v{t0}
v_lshrrev_b32 v{t1}, 1, v{t1}
v_lshl_add_u32 v{t1}, v{t1}, 1, v{t3}
v_lshl_add_u32 v{wt_+i}, v{t1}, 1, v{wt_+i}
v_mul_u32_u24 v{wt_+i}, 20, v{wt_+i}
v_add3_u32 v{wt_+i}, v{wt_+i}, v{t2}, 16
v_mul_u32_u24 v{wt_+i}, 1280, v{wt_+i}
v_add_u32 v{wt_+i}, v{wt_+i}, v{t0}
""")
    def signal(cnt_sgpr):
        a(f"""
s_lshl_b32 s3, s{cnt_sgpr}, 8
s_add_u32 s3, s3, {WS_CNT}
v_mov_b32 v{t0}, 0
v_mov_b32 v{t1}, 1
s_mov_b64 exec, 1
buffer_atomic_add v{t1}, v{t0}, {WS}, s3 offen sc1
s_mov_b64 exec, -1
""")
    auxq = []
    a(f"v_lshlrev_b32 v{vdma}, 4, v{lane}")
    a(f"""
s_mov_b32 s80, s58
s_mov_b32 s81, s59
s_mov_b32 s82, {640*40}
s_mov_b32 s83, 0x20000
s_mov_b32 s84, s60
s_mov_b32 s85, s61
s_mov_b32 s86, {640*40}
s_mov_b32 s87, 0x20000
""")
    def edma(st):
        a(f"s_cmp_eq_u32 s{s_br}, 0\ns_cbranch_scc1 L_e{st}\ns_add_u32 s5, s94, {st}\ns_cmp_ge_u32 s5, 10\ns_cselect_b32 s4, 10, 0\ns_sub_u32 s5, s5, s4\ns_mul_i32 s5, s5, 2560")
        for m, sr_ in enumerate((80, 84)):
            a(f"s_mov_b32 m0, {(st%4)*SL + 26624 + m*3072}\ns_nop 0")
            for n in range(3):
                a(f"buffer_load_dwordx4 v{vdma}, {srd(sr_)}, s5 offen offset:{n*1024} lds")
        a(f"L_e{st}:")
        auxq.extend([("e", st)] * 6)
    for st in range(4): edma(st)
    if "cw" in XP:
        a(f"""
s_getpc_b64 s[4:5]
L_pc:
s_sub_u32 s4, s4, L_pc-{NAME}
s_subb_u32 s5, s5, 0
s_lshr_b32 s3, s2, 3
s_lshl_b32 s3, s3, 10
v_lshlrev_b32 v{t2}, 6, v{l16}
v_add_u32 v{t2}, s3, v{t2}
v_min_u32 v{t2}, L_end-{NAME}, v{t2}
s_mov_b64 exec, 0xffff
global_load_dword v{VB+2}, v{t2}, s[4:5]
s_mov_b64 exec, -1
""")
    a(f"""
s_setprio 3
v_mov_b32 v{t0}, 0
v_mov_b32 v{t1}, 1
s_cmp_ge_u32 s2, {NCNT}
s_cbranch_scc1 L_aux_noinit
s_lshl_b32 s3, s2, 8
s_add_u32 s3, s3, {WS_CNT}
s_mov_b64 exec, 1
buffer_store_dword v{t0}, v{t0}, {WS}, s3 offen sc1
s_waitcnt vmcnt(0)
buffer_atomic_add v{t1}, v{t0}, {srd(SDBG)}, 0 offen sc1
s_mov_b64 exec, -1
L_aux_noinit:
""")
    ca = VB + 24; cd = VB + 48
    for i in range(5):
        a(f"""
v_add_u32 v{t0}, {64*i}, v{lane}
v_mul_u32_u24 v{t1}, 3277, v{t0}
v_lshrrev_b32 v{t1}, 18, v{t1}
v_mul_u32_u24 v{t2}, 80, v{t1}
v_sub_u32 v{t2}, v{t0}, v{t2}
v_mul_u32_u24 v{t1}, {TILE_B}, v{t1}
v_lshl_add_u32 v{ca+i}, v{t2}, 4, v{t1}
v_cmp_le_u32 vcc, 64, v{t2}
v_mov_b32 v{t3}, 2048
v_mul_u32_u24 v{t1}, 205, v{t2}
v_cndmask_b32 v{t3}, 0, v{t3}, vcc
v_lshrrev_b32 v{t1}, 12, v{t1}
v_mul_u32_u24 v{t1}, 192, v{t1}
v_add_u32 v{t1}, 1024, v{t1}
s_cmp_ge_u32 s{s_c16}, 8
s_cselect_b64 vcc, -1, 0
v_cndmask_b32 v{t3}, v{t3}, v{t1}, vcc
v_add_u32 v{ca+i}, v{ca+i}, v{t3}
""")
    wo_addr()
    a(f"""
s_and_b32 s3, s{s_c16}, 7
s_lshl_b32 s3, s3, 8
s_lshl_b32 s4, s{s_mu}, 2
s_add_u32 s3, s3, s4
s_mul_i32 s26, s3, {TILE_B}
s_add_u32 s26, s26, {WS_KV}
v_lshlrev_b32 v{vdma}, 4, v{lane}
v_add_u32 v{VB+3}, {STG}, v{vdma}
v_mov_b32 v{VB+31}, 0
""")
    pfx, pfw = VB + 33, VB + 34
    PX, PW = [36, 16], [96, 20]
    s_px, s_pw, s_pws = [24, 25], [88, 89], [90, 91]
    if PFM == "aux":
        for rnd in range(2):
            a(f"""
s_add_u32 s3, s{s_br}, {rnd}
s_mul_i32 s4, s{s_hg}, 160
s_mul_i32 s5, s{s_c16}, 160
s_add_u32 s5, s5, 1280
s_cmp_eq_u32 s3, 1
s_cselect_b32 s7, s4, s5
s_cselect_b32 s4, s{s_mt}, s{s_mu}
s_lshl_b32 s4, s4, 7
s_lshl_b32 s5, s{s_hg}, 4
s_add_u32 s4, s4, s5
s_mul_i32 s{s_px[rnd]}, s4, 1280
s_movk_i32 s4, 3840
s_mov_b32 s5, {640*3840}
s_cmp_gt_u32 s{s_br}, {rnd}
s_cselect_b32 s6, 1280, s4
s_cselect_b32 s{PW[rnd]+2}, {640*1280}, s5
s_cselect_b32 s{PW[rnd]}, s56, s50
s_cselect_b32 s{PW[rnd]+1}, s57, s51
s_cselect_b32 s{PX[rnd]}, s54, s48
s_cselect_b32 s{PX[rnd]+1}, s55, s49
s_mov_b32 s{PX[rnd]+2}, {2048*1280}
s_mov_b32 s{PX[rnd]+3}, 0x20000
s_mov_b32 s{PW[rnd]+3}, 0x20000
s_bfe_u32 s5, s2, 0x20003
s_lshl_b32 s5, s5, 4
s_add_u32 s5, s5, {256 if rnd == 0 else 0}
s_mul_i32 s5, s5, s6
s_add_u32 s{s_pw[rnd]}, s5, s7
s_lshl_b32 s{s_pws[rnd]}, s6, 6
v_lshrrev_b32 v{pfw+rnd}, 2, v{lane}
v_mul_lo_u32 v{pfw+rnd}, v{pfw+rnd}, s6
v_and_b32 v{t3}, 3, v{lane}
v_lshlrev_b32 v{t3}, 6, v{t3}
v_min_u32 v{t2}, 156, v{t3}
v_add_u32 v{pfw+rnd}, v{pfw+rnd}, v{t2}
""")
        a(f"""
v_lshrrev_b32 v{pfx}, 2, v{lane}
v_mul_u32_u24 v{pfx}, 1280, v{pfx}
v_add_u32 v{pfx}, v{pfx}, v{t3}
""")
    if PFM == "aux" and "l128" in XP:
        for rnd in range(2):
            a(f"""
s_lshr_b32 s6, s{s_pws[rnd]}, 6
v_lshrrev_b32 v{t0}, 5, v{lane}
v_lshlrev_b32 v{t0}, 6, v{t0}
v_bfe_u32 v{t1}, v{lane}, 1, 4
v_add_u32 v{t0}, v{t0}, v{t1}
v_mul_lo_u32 v{pfw+rnd}, v{t0}, s6
v_and_b32 v{t1}, 1, v{lane}
v_mul_u32_u24 v{t1}, 156, v{t1}
v_add_u32 v{pfw+rnd}, v{pfw+rnd}, v{t1}
s_lshl_b32 s{s_pws[rnd]}, s{s_pws[rnd]}, 1
""")
        a(f"v_add_u32 v{pfx}, v{pfx}, v{t3}")
    def pf(stage):
        if PFM != "aux" or stage >= 20: return
        r, st = divmod(stage, 10)
        if "l128" in XP:
            if st % 4 == 0:
                a(f"buffer_load_dword v{VB+4}, v{pfx}, {srd(PX[r])}, s{s_px[r]} offen offset:{min(128*st, 768)}"); auxq.append("p")
            if st % 2 == 0:
                a(f"buffer_load_dword v{VB+5}, v{pfw+r}, {srd(PW[r])}, s{s_pw[r]} offen {PPOL}"); auxq.append("p")
                a(f"s_add_u32 s{s_pw[r]}, s{s_pw[r]}, s{s_pws[r]}")
            return
        if st % 2 == 0:
            a(f"buffer_load_dword v{VB+4}, v{pfx}, {srd(PX[r])}, s{s_px[r]} offen offset:{128*st} {PPOL}"); auxq.append("p")
        a(f"buffer_load_dword v{VB+5}, v{pfw+r}, {srd(PW[r])}, s{s_pw[r]} offen {PPOL}"); auxq.append("p")
        a(f"s_add_u32 s{s_pw[r]}, s{s_pw[r]}, s{s_pws[r]}")
    PRE = int(os.environ.get("PRE", "4"))
    for st in range(4, PRE): pf(st)
    nxt = [max(PRE, 4)]
    if os.environ.get("SKIP0"): nxt = [10]
    for k in range(0, 11):
        if k < 10:
            last = max(i for i, tg in enumerate(auxq) if tg == ("e", k))
            a(f"s_waitcnt vmcnt({min(len(auxq) - 1 - last, 63)})")
        a("s_barrier")
        if 1 <= k <= 6: edma(k + 3)
        if k == 5:
            a(f"buffer_load_dword v{VB+32}, v{VB+31}, {srd(SDBG)}, 0 offen sc1"); auxq.append("d")
        n = 0
        lim = k + LEAD
        if os.environ.get("SCHED"): lim = [int(x) for x in os.environ["SCHED"].split(",")][k]
        while nxt[0] <= lim and nxt[0] < 20 and n < PFN:
            pf(nxt[0]); nxt[0] += 1; n += 1
        if k == 9:
            a(f"""
s_mov_b32 s4, 0
s_waitcnt vmcnt({auxq[auxq.index("d"):].count("p")})
L_aux_chk:
v_cmp_ne_u32 vcc, {NCNT}, v{VB+32}
s_add_u32 s4, s4, 1
s_cmp_gt_u32 s4, {SPIN_MAX}
s_cbranch_scc1 L_aux_chkt
s_cbranch_vccz L_aux_chkd
s_sleep 4
buffer_load_dword v{VB+32}, v{VB+31}, {srd(SDBG)}, 0 offen sc1
s_waitcnt vmcnt(0)
s_branch L_aux_chk
L_aux_chkt:
""")
            diag(a, 0, VB + 32)
            a.label("L_aux_chkd")
    def copy_unit(lo, hi):
        for i in range(lo, hi):
            a(f"ds_read_b128 {vr(cd+4*i,4)}, v{VB+3} offset:{1024*i}")
        for i in range(lo, hi):
            a(f"s_waitcnt lgkmcnt({hi-1-i})")
            if i % 5 == 0: a(f"s_add_u32 s6, s26, {(i//5)*HEAD_B}")
            a(f"buffer_store_dwordx4 {vr(cd+4*i,4)}, v{ca+i%5}, {WS}, s6 offen {SC1}")
    a(f"s_cmp_eq_u32 s{s_br}, 0\ns_cbranch_scc0 L_aux_ex")
    copy_unit(0, 10)
    a("s_barrier")
    copy_unit(10, 20)
    a(f"s_barrier\ns_mov_b32 s4, s{s_c16}\ns_branch L_aux_sig0")
    a.label("L_aux_ex")
    pi16(t2)
    a(f"""
v_lshlrev_b32 v{t0}, 3, v{lane}
v_add_u32 v{t0}, {STGE}, v{t0}
ds_read_b64 {vr(cd,2)}, v{t0}
ds_read_b64 {vr(cd+2,2)}, v{t0} offset:512
ds_read_b64 {vr(cd+4,2)}, v{t0} offset:1024
ds_read_b64 {vr(cd+6,2)}, v{t0} offset:1536
s_lshl_b32 s3, s{s_mt}, 2
s_lshr_b32 s4, s{s_hg}, 1
s_add_u32 s3, s3, s4
s_mul_i32 s6, s3, {TILE_B}
s_add_u32 s6, s6, {WS_KV + 32*HEAD_B}
s_and_b32 s4, s{s_hg}, 1
s_lshl_b32 s5, s4, 4
v_add_u32 v{t2}, s5, v{t2}
v_lshrrev_b32 v{t3}, 1, v{g}
v_lshl_add_u32 v{t3}, v{t3}, 5, v{t2}
v_lshlrev_b32 v{t3}, 4, v{t3}
v_and_b32 v{t0}, 1, v{g}
v_lshl_add_u32 v{cd+8}, v{t0}, 3, v{t3}
v_lshlrev_b32 v{cd+9}, 3, v{t2}
v_lshrrev_b32 v{t3}, 1, v{g}
v_lshlrev_b32 v{t3}, 9, v{t3}
v_lshl_add_u32 v{t3}, v{t0}, 3, v{t3}
s_lshl_b32 s4, s4, 10
v_add_u32 v{t3}, s4, v{t3}
v_lshl_add_u32 v{cd+10}, v{l16}, 4, v{t3}
s_waitcnt lgkmcnt(0)
buffer_store_dwordx2 {vr(cd,2)}, v{cd+8}, {WS}, s6 offen {SC1}
buffer_store_dwordx2 {vr(cd+4,2)}, v{cd+10}, {WS}, s6 offen offset:1024 {SC1}
s_mov_b64 exec, 0xffff
buffer_store_dwordx2 {vr(cd+2,2)}, v{cd+9}, {WS}, s6 offen offset:3072 {SC1}
s_mov_b32 exec_lo, 0x000f000f
s_mov_b32 exec_hi, 0x000f000f
buffer_store_dwordx2 {vr(cd+6,2)}, v{cd+10}, {WS}, s6 offen offset:{1024+256} {SC1}
s_mov_b64 exec, -1
s_barrier
s_barrier
s_lshr_b32 s4, s{s_mt}, 1
s_add_u32 s4, s4, {C_EX}
s_waitcnt vmcnt(0)
""")
    signal(4)
    a(f"""
s_barrier
s_branch L_aux_sig1
L_aux_sig0:
s_barrier
s_waitcnt vmcnt(0)
""")
    signal(4)
    a(f"""
L_aux_sig1:
s_cmp_eq_u32 s{s_br}, 0
s_cselect_b32 s{SB_}, s52, s62
s_cselect_b32 s{SB_+1}, s53, s63
s_mov_b32 s{SB_+2}, {640*1280}
s_mov_b32 s{SB_+3}, 0x20000
s_barrier
""")
    img_base()
    a(f"""
s_add_u32 s{s_gd}, s{s_img}, {7*TILE_B}
""")
    a("""
s_barrier
s_barrier
s_barrier
s_barrier
s_barrier
s_barrier
""")
    s_wl, s_wg, s_sl = 25, 24, 27
    a(f"""
s_mov_b32 s{s_wl}, {WO1}
s_mul_i32 s{s_wg}, s{s_hg}, {80*1280*CROT}
s_mov_b32 s{s_sl}, {7*TS_B}
s_mov_b32 s{s_cnt}, 0
s_barrier
s_cmp_eq_u32 s{s_br}, 0
s_cbranch_scc0 L_pB
""")
    def wo_step(regs, rows):
        for i in range(5):
            a(f"s_add_u32 m0, s{s_wl}, {i*1024}\ns_nop 0")
            a(f"buffer_load_dwordx4 v{regs+i}, {srd(SB_)}, s{s_wg} offen lds")
        a(f"s_add_u32 s{s_wl}, s{s_wl}, 5120\ns_add_u32 s{s_wg}, s{s_wg}, {rows*1280}")
        if rows == 40: a(f"s_cmp_eq_u32 s{s_wg}, {640*1280}\ns_cselect_b32 s{s_wg}, 0, s{s_wg}")
    def one_tile(nh):
        for h in range(nh):
            if h: a(f"s_add_u32 s4, s{s_gd}, {h*HEAD_B}")
            for l in dma_tile(f"s_add_u32 m0, s{s_sl}, {h*SLOT_B}", 4 if h else s_gd): a(l)
        a(f"""
s_add_u32 s{s_gd}, s{s_gd}, {TILE_B}
s_add_u32 s{s_sl}, s{s_sl}, {TS_B}
s_cmp_eq_u32 s{s_sl}, {8*TS_B}
s_cselect_b32 s{s_sl}, 0, s{s_sl}
""")
    def producer(lab, nh):
        B_ = 8 * nh
        a(f"""
s_barrier
""")
        one_tile(nh); one_tile(nh)
        if nh == 1:
            copy_unit(0, 10); copy_unit(10, 20)
        else:
            a(f"""
v_and_b32 v{t2}, 1, v{lane}
v_lshlrev_b32 v{t2}, 3, v{t2}
v_add_u32 v{t2}, s{s_hg}, v{t2}
v_add_u32 v{t2}, 16, v{t2}
v_lshlrev_b32 v{t2}, 8, v{t2}
v_add_u32 v{t2}, {WS_CNT}, v{t2}
""")
        a(f"s_mov_b32 s{s_cnt}, 1")
        a.label(lab + "_w")
        a(f"s_waitcnt vmcnt({B_})\ns_barrier")
        a(f"s_cmp_lg_u32 s{s_cnt}, {2 if nh == 1 else 11}\ns_cbranch_scc1 {lab}_h")
        if nh == 1:
            a(f"s_add_u32 s4, s{s_c16}, 16")
            signal(4)
        else:
            poll(lab + "_late", 3, 8)
        a.label(lab + "_h")
        wo_step(wm_, 40)
        one_tile(nh); one_tile(nh)
        a(f"""
s_add_u32 s{s_cnt}, s{s_cnt}, 1
s_cmp_lt_u32 s{s_cnt}, {NWO1+1}
s_cbranch_scc1 {lab}_w
""")
        a.label(lab + "_n")
        a(f"s_waitcnt vmcnt({B_})\ns_barrier")
        one_tile(nh); one_tile(nh)
        a(f"""
s_add_u32 s{s_cnt}, s{s_cnt}, 1
s_cmp_lt_u32 s{s_cnt}, 28
s_cbranch_scc1 {lab}_n
s_waitcnt vmcnt({B_})
s_barrier
""")
        one_tile(nh)
        a(f"""
s_waitcnt vmcnt({B_//2})
s_barrier
s_waitcnt vmcnt(0)
s_barrier
""")
    producer("L_pA", 4)
    a("s_branch L_pend")
    a.label("L_pB")
    producer("L_pBq", 1)
    a.label("L_pend")
    a(f"s_mov_b32 s{s_wl}, 0")
    for _ in range(16 - NWO1): wo_step(wm_, 40)
    a(f"s_barrier\ns_mov_b32 s{s_wg}, 0")
    for _ in range(4): wo_step(wt_, 160)
    a(f"""
s_lshl_b32 s4, s{s_br}, 4
s_add_u32 s4, s4, s{s_mt}
s_add_u32 s4, s4, {C_O}
s_lshl_b32 s5, s4, 8
s_add_u32 s5, s5, {WS_CNT}
v_mov_b32 v{t2}, s5
s_barrier
""")
    signal(4)
    poll("L_poll2", 1, 8)
    a("s_barrier")
    if STAMPS:
        new = []
        stop = False
        for l in a.lines[aux_start:]:
            new.append(l)
            if l.strip().startswith("L_pA_w") or "L_pB" in l: stop = True
            if l.strip() == "s_barrier" and not stop:
                new += ["    s_memrealtime s[76:77]", "    s_waitcnt lgkmcnt(0)", "    s_mov_b32 m0, s100", "    s_nop 1", "    v_writelane_b32 v166, s76, m0", "    s_add_u32 s100, s100, 1"]
        a.lines[aux_start:] = ["    s_mov_b32 s100, 0", "    v_mov_b32 v166, 0"] + new
        a(f"""
s_getreg_b32 s76, hwreg(HW_REG_XCC_ID)
v_writelane_b32 v166, s76, 40
s_getreg_b32 s76, hwreg(HW_REG_HW_ID)
v_writelane_b32 v166, s76, 41
v_lshlrev_b32 v167, 2, v{lane}
s_lshl_b32 s71, s70, 1
buffer_store_dword v166, v167, s[72:75], s71 offen
""")
    a("s_endpgm")

    a.label("L_attn_slow")
    zero_off()
    a(f"""
v_and_b32 v{t3}, 31, v{lane}
v_cmp_eq_u32 s[46:47], 20, v{t3}
v_mov_b32 v{vA}, 0x3f803f80
v_mov_b32 v{vK}, 0x3f80
v_mov_b32 v{mx}, 0xff800000
v_mov_b32 v{mx+1}, 0xff800000
s_mov_b32 s{s_gd}, s{s_img}
s_mov_b32 s{s_cnt}, 0
L_attn_slow1:
buffer_load_dwordx4 {vr(K1[0],4)}, v{vdma}, {WS}, s{s_gd} offen {SC1}
buffer_load_dwordx2 {vr(K2[0],2)}, v{vt8}, {WS}, s{s_gd} offen offset:3072 {SC1}
s_waitcnt vmcnt(0)
v_cndmask_b32 v{K2[0]}, v{K2[0]}, v{vA}, {MHI}
v_cndmask_b32 v{K2[0]+1}, v{K2[0]+1}, v{vK}, {MHI}
s_nop 1
""")
    for x in range(2):
        for l in qk(x, 0): a(l)
    a("s_nop 7\ns_nop 7")
    for x in range(2):
        rowmax(x, mx + x, False)
    a(f"""
s_add_u32 s{s_gd}, s{s_gd}, {TILE_B}
s_add_u32 s{s_cnt}, s{s_cnt}, 1
s_cmp_lt_u32 s{s_cnt}, 64
s_cbranch_scc1 L_attn_slow1
""")
    for x in range(2):
        set_off(x, mx + x)
    for r in range(16):
        a(f"v_mov_b32 v{O[0]+r}, 0\nv_mov_b32 v{O[1]+r}, 0")
    a(f"""
s_mov_b32 s{s_gd}, s{s_img}
s_mov_b32 s{s_cnt}, 0
L_attn_slow2:
buffer_load_dwordx4 {vr(K1[0],4)}, v{vdma}, {WS}, s{s_gd} offen {SC1}
buffer_load_dwordx2 {vr(K2[0],2)}, v{vt8}, {WS}, s{s_gd} offen offset:3072 {SC1}
buffer_load_dwordx4 {vr(V0[0],4)}, v{vdma}, {WS}, s{s_gd} offen offset:1024 {SC1}
buffer_load_dwordx4 {vr(V1[0],4)}, v{vdma}, {WS}, s{s_gd} offen offset:2048 {SC1}
s_waitcnt vmcnt(0)
v_cndmask_b32 v{K2[0]}, v{K2[0]}, v{vA}, {MHI}
v_cndmask_b32 v{K2[0]+1}, v{K2[0]+1}, v{vK}, {MHI}
""")
    for r in range(4):
        a(f"v_cndmask_b32 v{V0[0]+r}, v{V0[0]+r}, v{vA}, s[46:47]")
        a(f"v_cndmask_b32 v{V1[0]+r}, v{V1[0]+r}, v{vA}, s[46:47]")
    a("s_nop 1")
    for x in range(2):
        for l in qk(x, 0): a(l)
    a("s_nop 7\ns_nop 7")
    for x in range(2):
        s_ = S[x]
        for i in range(16): a(f"v_exp_f32 v{s_+i}, v{s_+i}")
        a("s_nop 0")
        for i in range(8): a(f"v_cvt_pk_bf16_f32 v{P+i}, v{s_+2*i}, v{s_+2*i+1}")
        a("s_nop 1")
        a(f"v_mfma_f32_32x32x16_bf16 {vr(O[x],16)}, {vr(V0[0],4)}, {vr(P,4)}, {vr(O[x],16)}")
        a(f"v_mfma_f32_32x32x16_bf16 {vr(O[x],16)}, {vr(V1[0],4)}, {vr(P+4,4)}, {vr(O[x],16)}")
    a(f"""
s_add_u32 s{s_gd}, s{s_gd}, {TILE_B}
s_add_u32 s{s_cnt}, s{s_cnt}, 1
s_cmp_lt_u32 s{s_cnt}, 64
s_cbranch_scc1 L_attn_slow2
s_nop 7
s_nop 7
""")
    for x in range(2):
        getl(x, mx + x)
    a("s_branch L_attn_fin")
    a.label("L_end")
    a("s_endpgm")
    nv = 168 if STAMPS else 160
    a(f""".section .rodata,"a"
.p2align 6
.amdhsa_kernel {NAME}
  .amdhsa_next_free_vgpr {nv}
  .amdhsa_next_free_sgpr 102
  .amdhsa_accum_offset {nv}
  .amdhsa_group_segment_fixed_size 0
  .amdhsa_kernarg_size 88
  .amdhsa_user_sgpr_count 2
  .amdhsa_user_sgpr_kernarg_segment_ptr 1
  .amdhsa_system_sgpr_workgroup_id_x 1
.end_amdhsa_kernel
""")

DOC = """
; ---------------------------------------------------------------------------------------------------------------
;           so every hand-off is complete before it is needed.
;           and O are checked (2^-20 <= l <= 2^60, O finite) and a wave that fails recomputes with the true row maximum.
; ---------------------------------------------------------------------------------------------------------------
"""

if __name__ == "__main__":
    import sys
    REF = open('concat_heads__softmax_full_mha__grouped_kv_mqa__prompt.s.ref').read()
    hdr = [l for l in REF.split("\n") if l.startswith(";") and "@launch" not in l]
    a = Asm()
    a('.amdgcn_target "amdgcn-amd-amdhsa--gfx950"\n.text')
    gen(a)
    out = "\n".join(hdr) + f"\n; @launch grid=(256,1,1) block=(576,1,1) lds={LDS_BYTES}" + DOC + a.text()
    path = sys.argv[1] if len(sys.argv) > 1 else 'concat_heads__softmax_full_mha__grouped_kv_mqa__prompt.s'
    open(path, 'w').write(out)
    open('launches_f.txt', 'w').write(f"{NAME} 256 1 1 576 1 1 {LDS_BYTES}\n")
```

```python
from asmlib import *
import struct, math, os

NAME = "concat_heads__softmax_full_mha__grouped_kv_mqa__prompt_kernel"
RI_B = 1280
RIH_B = 64 * RI_B
WS_O = 0x500000
WS_KV = 0xA00000
TILE_B = 3328
HEAD_B = 64 * TILE_B
WS_CNT = 0x10C0000
WS_SIZE = 268435456
C_KV, C_EX, C_O, NCNT = 0, 32, 40, 72
QSCALE = math.log2(math.e) / math.sqrt(20.0)
def f32bits(x): return struct.unpack("<I", struct.pack("<f", x))[0]
NST = 10
SL = 32768
STG = 4 * SL
SLOT_B = TILE_B + 16
TS_B = 4 * SLOT_B
WO1 = 8 * TS_B
STGE = STG + 16 * RI_B
NWO1 = 11
LDS_BYTES = 163840
assert WO1 + NWO1 * 5120 <= LDS_BYTES
SPIN_MAX = 60000
SC1 = "sc1"
XP = os.environ.get("EXPT", "")
OPOL = os.environ.get("OPOL", "")
APOL = os.environ.get("APOL", "")
PPOL = os.environ.get("PPOL", "")
ROT = int(os.environ.get("ROT", "4"))
CROT = int(os.environ.get("CROT", "1"))
PFM = os.environ.get("PFM", "none")
LEAD = int(os.environ.get("LEAD", "20"))
PFN = int(os.environ.get("PFN", "4"))

def stamp2(a, idx):
    if not STAMPS: return
    b = SV[0]
    a(f"""
s_memrealtime s[76:77]
s_add_u32 s71, s70, 0x80000
s_waitcnt lgkmcnt(0)
v_mov_b32 v{b}, s76
v_mov_b32 v{b+1}, s77
buffer_store_dwordx2 v[{b}:{b+1}], v{b+4}, s[72:75], s71 offen offset:{idx*8}
""")

DIAG = os.environ.get("DIAG") == "1"
def diag(a, idx, vreg):
    if not DIAG: return
    a(f"""
s_or_b32 s101, s2, 0xdead0000
v_mov_b32 v158, s101
v_mov_b32 v159, {WS_CNT + 0x8000 + idx*1024}
v_mbcnt_lo_u32_b32 v157, -1, 0
v_mbcnt_hi_u32_b32 v157, -1, v157
v_lshl_add_u32 v159, v157, 3, v159
buffer_store_dword v158, v159, s[8:11], 0 offen
buffer_store_dword v{vreg}, v159, s[8:11], 0 offen offset:4
""")

def gen(a):
    a(f".globl {NAME}\n.p2align 8\n.type {NAME},@function")
    a.label(NAME)
    srd = lambda r: f"s[{r}:{r+3}]"
    WS = "s[8:11]"
    s_w, s_br, s_hg, s_mt, s_c16, s_mu = 12, 13, 14, 15, 32, 33
    s_cnt, s_slot, s_rnd, s_type = 34, 35, 36, 37
    MV, MK, MHI = "s[40:41]", "s[42:43]", "s[44:45]"
    SX, SDBG = 16, 28
    lane, l16, g, t0, t1, t2, t3 = 1, 2, 3, 4, 5, 6, 7
    VB = 8
    Q1 = [148, 152]; Q2 = [156, 158]

    ROTC = {
        0: "s_mov_b32 s94, 0",
        1: f"s_mul_i32 s94, s6, 3\ns_add_u32 s94, s94, s{s_hg}\ns_cmp_ge_u32 s94, 10\ns_cselect_b32 s5, 10, 0\ns_sub_u32 s94, s94, s5",
        2: f"s_add_u32 s94, s6, s{s_hg}\ns_and_b32 s94, s94, 3\ns_mul_i32 s94, s94, 3",
        3: f"s_add_u32 s94, s6, s{s_hg}\ns_and_b32 s94, s94, 1\ns_mul_i32 s94, s94, 5",
        4: f"s_add_u32 s94, s6, s{s_hg}\ns_and_b32 s94, s94, 3\ns_mul_i32 s94, s94, 5\ns_lshr_b32 s94, s94, 1",
        5: f"s_lshl_b32 s94, s6, 1\ns_add_u32 s94, s94, s{s_hg}\ns_mul_i32 s5, s94, 52\ns_lshr_b32 s5, s5, 8\ns_mul_i32 s5, s5, 5\ns_sub_u32 s94, s94, s5\ns_lshl_b32 s94, s94, 1",
        6: f"s_add_u32 s94, s6, s{s_hg}\ns_mul_i32 s5, s94, 86\ns_lshr_b32 s5, s5, 8\ns_mul_i32 s5, s5, 3\ns_sub_u32 s94, s94, s5\ns_mul_i32 s94, s94, 7\ns_lshr_b32 s94, s94, 1",
        7: f"s_lshr_b32 s94, s{s_hg}, 1\ns_add_u32 s94, s6, s94\ns_and_b32 s94, s94, 3\ns_mul_i32 s94, s94, 5\ns_lshr_b32 s94, s94, 1",
    }[ROT]
    BRMAP = {"0": f"s_bfe_u32 s{s_br}, s2, 0x10002\ns_and_b32 s3, s2, 3",
             "1": f"s_and_b32 s{s_br}, s2, 1\ns_bfe_u32 s3, s2, 0x20001",
             "2": f"s_and_b32 s{s_br}, s2, 1\ns_xor_b32 s{s_br}, s{s_br}, 1\ns_bfe_u32 s3, s2, 0x20001"}[os.environ.get("BRM", "1")]
    SCR = "s_and_b32 s3, s2, 31\ns_lshl_b32 s3, s3, 3\ns_lshr_b32 s2, s2, 5\ns_or_b32 s2, s2, s3" if "scr" in XP else "s_nop 0"
    a(f"""
s_cmp_ge_u32 s2, 256
s_cbranch_scc1 L_end
{SCR}
s_load_dwordx16 s[48:63], s[0:1], 0
s_load_dwordx4 s[64:67], s[0:1], 64
s_load_dwordx2 s[68:69], s[0:1], 80
v_lshrrev_b32 v{t0}, 6, v0
v_and_b32 v{lane}, 63, v0
v_readfirstlane_b32 s{s_w}, v{t0}
v_and_b32 v{l16}, 15, v0
v_bfe_u32 v{g}, v0, 4, 2
{BRMAP}
s_bfe_u32 s6, s2, 0x20003
s_lshr_b32 s{s_hg}, s2, 5
s_lshl_b32 s5, s3, 2
s_add_u32 s{s_mt}, s5, s6
s_lshr_b32 s5, s3, 1
s_lshl_b32 s5, s5, 3
s_add_u32 s{s_c16}, s5, s{s_hg}
s_and_b32 s5, s3, 1
s_lshl_b32 s5, s5, 2
s_add_u32 s5, s5, s6
s_lshl_b32 s7, s{s_br}, 3
s_add_u32 s{s_mu}, s5, s7
{ROTC}
s_mov_b32 s10, {WS_SIZE}
s_mov_b32 s11, 0x20000
s_mov_b32 s{SDBG+2}, 256
s_mov_b32 s{SDBG+3}, 0x20000
s_mov_b32 s40, 0x000fffff
s_mov_b32 s41, 0x000fffff
s_mov_b32 s42, 0xffff
s_mov_b32 s43, 0
s_mov_b32 s44, 0
s_mov_b32 s45, -1
s_mov_b32 s{s_rnd}, 0
s_waitcnt lgkmcnt(0)
s_mov_b32 s8, s68
s_mov_b32 s9, s69
s_mov_b32 s{SDBG}, s66
s_mov_b32 s{SDBG+1}, s67
""")
    stamp_setup(a, 0, s_w, 68, 160)
    stamp(a, 0)
    a(f"""
s_cmp_lt_u32 s{s_w}, 4
s_cbranch_scc1 L_comp
s_cmp_eq_u32 s{s_w}, 8
s_cbranch_scc1 L_aux
""")
    xd = VB; gd = VB + 4; grow = VB + 8; gcol = VB + 12
    SW = 20
    s_xs, s_gs, s_gst, s_lx, s_lg, s_ldw = 88, 89, 90, 38, 39, 46
    s_lw = 47
    a(f"""
s_sub_u32 s{s_lw}, s{s_w}, 4
v_lshrrev_b32 v{t0}, 3, v{lane}
v_and_b32 v{t1}, 7, v{lane}
v_xor_b32 v{t2}, v{t1}, v{t0}
v_lshlrev_b32 v{t2}, 4, v{t2}
s_lshl_b32 s3, s{s_lw}, 5
v_add_u32 v{t3}, s3, v{t0}
v_mul_u32_u24 v{t3}, 1280, v{t3}
v_add_u32 v{xd}, v{t3}, v{t2}
v_add_u32 v{xd+1}, 10240, v{xd}
v_add_u32 v{xd+2}, 20480, v{xd}
v_add_u32 v{xd+3}, 30720, v{xd}
s_lshl_b32 s{s_lx}, s{s_lw}, 12
s_mul_i32 s4, s{s_lw}, 3
s_lshl_b32 s5, s{s_lw}, 1
s_add_u32 s5, s5, 2
s_min_u32 s91, s4, s5
s_lshl_b32 s{s_lg}, s91, 10
s_add_u32 s{s_lg}, s{s_lg}, 16384
s_mov_b32 s{SW+3}, 0x20000
s_mov_b32 s{SX+2}, {2048*1280}
s_mov_b32 s{SX+3}, 0x20000
s_mov_b32 s{s_slot}, 0
""")
    def ld_x_round():
        a(f"""
s_add_u32 s3, s{s_br}, s{s_rnd}
s_cmp_eq_u32 s3, 1
s_cselect_b32 s4, s{s_mt}, s{s_mu}
s_mul_i32 s{s_xs}, s4, {128*1280}
s_lshl_b32 s4, s94, 7
s_add_u32 s{s_xs}, s{s_xs}, s4
s_mov_b32 s95, s94
s_cmp_gt_u32 s{s_br}, s{s_rnd}
s_cselect_b32 s{SX}, s54, s48
s_cselect_b32 s{SX+1}, s55, s49
""")
    def xdma():
        o = []
        for i in range(4):
            o += [f"s_add_u32 m0, s{s_lx}, {i*1024}", "s_nop 0", f"buffer_load_dwordx4 v{xd+i}, {srd(SX)}, s{s_xs} offen {APOL} lds"]
        return o
    ld_x_round()
    for l in xdma(): a(l)
    for j in range(3):
        a(f"""
s_add_u32 s3, s91, {j}
s_cmp_ge_u32 s3, 5
s_cselect_b32 s4, 5, 0
s_cselect_b32 s5, 32, 0
s_sub_u32 s4, s3, s4
s_lshl_b32 s4, s4, 2
v_add_u32 v{t0}, s4, v{g}
v_mul_u32_u24 v{t1}, 205, v{t0}
v_lshrrev_b32 v{t1}, 10, v{t1}
v_mul_u32_u24 v{t2}, 5, v{t1}
v_sub_u32 v{t0}, v{t0}, v{t2}
v_lshlrev_b32 v{t0}, 5, v{t0}
v_and_b32 v{t2}, 1, v{lane}
v_lshl_add_u32 v{gcol+j}, v{t2}, 4, v{t0}
v_lshrrev_b32 v{t0}, 1, v{t1}
v_lshlrev_b32 v{t0}, 4, v{t0}
v_and_b32 v{t1}, 1, v{t1}
v_lshl_add_u32 v{t0}, v{t1}, 2, v{t0}
v_bfe_u32 v{t1}, v{lane}, 3, 1
v_lshl_add_u32 v{t0}, v{t1}, 3, v{t0}
v_bfe_u32 v{t1}, v{lane}, 1, 2
v_add3_u32 v{grow+j}, v{t0}, v{t1}, s5
""")
    def ld_g_round(tag):
        a(f"""
s_add_u32 s3, s{s_br}, s{s_rnd}
s_mul_i32 s4, s{s_hg}, 160
s_mul_i32 s5, s{s_c16}, 160
s_add_u32 s5, s5, 1280
s_cmp_eq_u32 s3, 1
s_cselect_b32 s{s_gs}, s4, s5
s_movk_i32 s4, 3840
s_mov_b32 s5, {640*3840}
s_cmp_gt_u32 s{s_br}, s{s_rnd}
s_cselect_b32 s{s_ldw}, 1280, s4
s_cselect_b32 s{SW+2}, {640*1280}, s5
s_cselect_b32 s{SW}, s56, s50
s_cselect_b32 s{SW+1}, s57, s51
s_lshl_b32 s{s_gst}, s{s_ldw}, 6
s_mul_i32 s4, s{s_gst}, s94
s_add_u32 s{s_gs}, s{s_gs}, s4
s_mul_i32 s96, s{s_gst}, 10
""")
        for j in range(3):
            a(f"v_mad_u32_u24 v{gd+j}, v{grow+j}, s{s_ldw}, v{gcol+j}")
    gd_n = [0]
    def gdma():
        o = []
        for j in range(3):
            if j == 2:
                gd_n[0] += 1
                o += [f"s_cmp_ge_u32 s{s_lw}, 2", f"s_cbranch_scc1 L_g2_{gd_n[0]}"]
            o += [f"s_add_u32 m0, s{s_lg}, {j*1024}", "s_nop 0", f"buffer_load_dwordx4 v{gd+j}, {srd(SW)}, s{s_gs} offen {APOL} lds"]
        o.append(f"L_g2_{gd_n[0]}:")
        return o
    def ladv(lab):
        a(f"s_add_u32 s{s_xs}, s{s_xs}, 128")
        a(f"""
s_add_u32 s{s_gs}, s{s_gs}, s{s_gst}
s_add_u32 s95, s95, 1
s_cmp_eq_u32 s95, 10
s_cselect_b32 s4, 1280, 0
s_cselect_b32 s5, s96, 0
s_cselect_b32 s95, 0, s95
s_sub_u32 s{s_xs}, s{s_xs}, s4
s_sub_u32 s{s_gs}, s{s_gs}, s5
""")
        a(f"""
s_add_u32 s{s_lx}, s{s_lx}, {SL}
s_add_u32 s{s_lg}, s{s_lg}, {SL}
s_and_b32 s{s_lx}, s{s_lx}, {4*SL-1}
s_and_b32 s{s_lg}, s{s_lg}, {4*SL-1}
s_add_u32 s{s_cnt}, s{s_cnt}, 1
""")
    D = 6
    pv = VB + 16
    a(f"""
v_and_b32 v{t2}, 1, v{lane}
v_lshlrev_b32 v{t2}, 3, v{t2}
v_add_u32 v{t2}, s{s_hg}, v{t2}
v_and_b32 v{t3}, 7, v{lane}
v_add_u32 v{t3}, {C_EX}, v{t3}
s_cmp_eq_u32 s{s_br}, 0
s_cselect_b64 vcc, -1, 0
s_cselect_b32 s92, 8, 16
v_cndmask_b32 v{t2}, v{t3}, v{t2}, vcc
v_lshlrev_b32 v{t2}, 8, v{t2}
v_add_u32 v{pv}, {WS_CNT}, v{t2}
v_mov_b32 v{pv+1}, 0
s_mul_i32 s3, s{s_br}, s{s_lw}
s_cmp_eq_u32 s3, 0
s_cselect_b32 s93, {2*NST-1}, 99
""")
    ld_g_round("a")
    for l in gdma(): a(l)
    a(f"s_mov_b32 s{s_cnt}, 0")
    ladv("")
    a.label("L_ld_pro")
    for l in xdma() + gdma(): a(l)
    ladv("")
    a(f"""
s_cmp_lt_u32 s{s_cnt}, 4
s_cbranch_scc1 L_ld_pro
s_waitcnt vmcnt({3*D})
s_barrier
L_ld_loop:
s_cmp_lg_u32 s{s_cnt}, {NST}
s_cbranch_scc1 L_ld_same
s_mov_b32 s{s_rnd}, 1
""")
    ld_x_round()
    ld_g_round("b")
    a(f"""
L_ld_same:
s_waitcnt vmcnt({2*D})
s_barrier
""")
    a(f"""
s_cmp_lg_u32 s{s_cnt}, 13
s_cbranch_scc1 L_ld_noq
s_cmp_eq_u32 s{s_br}, 0
s_cbranch_scc1 L_ld_noq
""")
    def read_q():
        a(f"""
s_mul_i32 s3, s{s_w}, {2*RI_B}
s_add_u32 s3, s3, {STG}
v_lshlrev_b32 v{t0}, 4, v{lane}
v_add_u32 v{t0}, s3, v{t0}
v_and_b32 v{t1}, 31, v{lane}
v_lshlrev_b32 v{t1}, 3, v{t1}
v_add_u32 v{t1}, s3, v{t1}
ds_read_b128 {vr(Q1[0],4)}, v{t0}
ds_read_b64 {vr(Q2[0],2)}, v{t1} offset:1024
ds_read_b128 {vr(Q1[1],4)}, v{t0} offset:{RI_B}
ds_read_b64 {vr(Q2[1],2)}, v{t1} offset:{RI_B+1024}
s_waitcnt lgkmcnt(0)
""")
    read_q()
    a.label("L_ld_noq")
    a(f"""
s_cmp_lg_u32 s{s_cnt}, s93
s_cbranch_scc1 L_ld_nop
buffer_load_dword v{pv+1}, v{pv}, {WS}, 0 offen sc1
L_ld_nop:
""")
    if "nodma" not in XP:
        for l in xdma() + gdma(): a(l)
    ladv("")
    a(f"""
s_cmp_lt_u32 s{s_cnt}, {2*NST}
s_cbranch_scc1 L_ld_loop
""")
    vdma = VB; cst = VB + 4
    s_img, s_gd, s_nh = 20, 21, 22
    def poll(lab, execmask, want):
        a(f"""
s_mov_b64 exec, {execmask}
s_mov_b32 s3, 0
{lab}:
buffer_load_dword v{t3}, v{t2}, {WS}, 0 offen sc1
s_waitcnt vmcnt(0)
v_cmp_ne_u32 vcc, {want}, v{t3}
s_add_u32 s3, s3, 1
s_cmp_gt_u32 s3, {SPIN_MAX}
s_cbranch_scc1 {lab}_t
s_cbranch_vccz {lab}_d
s_sleep 2
s_branch {lab}
{lab}_t:
""")
        diag(a, 2 if "late" in lab else 3, t3)
        a(f"""
{lab}_d:
s_mov_b64 exec, -1
""")
    def dma_tile(m0expr, s_g):
        return [m0expr,
                f"s_mov_b64 exec, {MV}",
                f"buffer_load_dwordx4 v{vdma}, {WS}, s{s_g} offen offset:1024 {SC1} lds",
                f"buffer_load_dwordx4 v{vdma}, {WS}, s{s_g} offen offset:2048 {SC1} lds",
                f"s_mov_b64 exec, {MK}",
                f"buffer_load_dwordx4 v{vdma}, {WS}, s{s_g} offen offset:3072 {SC1} lds",
                f"s_mov_b64 exec, -1",
                f"buffer_load_dwordx4 v{vdma}, {WS}, s{s_g} offen {SC1} lds"]
    def img_base():
        a(f"""
s_lshl_b32 s3, s{s_hg}, 2
s_cmp_eq_u32 s{s_br}, 0
s_cselect_b32 s3, s3, 32
s_cselect_b32 s{s_nh}, 4, 1
s_mul_i32 s{s_img}, s3, {HEAD_B}
s_add_u32 s{s_img}, s{s_img}, {WS_KV}
v_lshlrev_b32 v{vdma}, 4, v{lane}
""")
    def consts(*ts):
        a("s_mov_b32 exec_hi, 0x1ffff")
        for t in ts:
            a(f"ds_write_b128 v{VB + 1 if t < 4 else VB + 2}, {vr(cst,4)} offset:{(t % 4) * TS_B}")
        a("s_mov_b32 exec_hi, -1")
    def first_tile(t):
        for l in dma_tile(f"s_add_u32 m0, s23, {t*TS_B}", s_gd): a(l)
        a(f"s_add_u32 s{s_gd}, s{s_gd}, {TILE_B}")
    img_base()
    a(f"""
s_cmp_ge_u32 s{s_lw}, s{s_nh}
s_cbranch_scc1 L_ld_idle0
s_mul_i32 s3, s{s_lw}, {HEAD_B}
s_add_u32 s{s_gd}, s{s_img}, s3
s_mul_i32 s23, s{s_lw}, {SLOT_B}
v_mul_u32_u24 v{t0}, 43, v{lane}
v_lshrrev_b32 v{t0}, 9, v{t0}
v_mul_u32_u24 v{t1}, 12, v{t0}
v_sub_u32 v{t1}, v{lane}, v{t1}
v_lshlrev_b32 v{t0}, 9, v{t0}
v_lshl_add_u32 v{t0}, v{t1}, 4, v{t0}
v_add_u32 v{t0}, {1024+320}, v{t0}
v_min_u32 v{t0}, {TILE_B}, v{t0}
v_add_u32 v{VB+1}, s23, v{t0}
v_cmp_eq_u32 vcc, 0, v{t1}
v_mov_b32 v{t2}, 0x3f803f80
v_mov_b32 v{t3}, 0x3f80
v_cndmask_b32 v{cst}, 0, v{t2}, vcc
v_cndmask_b32 v{cst+2}, 0, v{t2}, vcc
v_cndmask_b32 v{cst+3}, 0, v{t2}, vcc
v_cmp_eq_u32 vcc, 48, v{lane}
s_nop 1
v_cndmask_b32 v{cst+1}, v{cst}, v{t3}, vcc
v_add_u32 v{VB+2}, {4*TS_B}, v{VB+1}
s_waitcnt vmcnt({2*D})
s_barrier
s_waitcnt vmcnt({D})
v_cmp_ne_u32 vcc, s92, v{pv+1}
s_and_b32 s3, vcc_lo, 0xff
s_cbranch_scc1 L_ld_slow
""")
    first_tile(0); first_tile(1); consts(0, 1)
    a("s_barrier")
    first_tile(2); first_tile(3); consts(2, 3)
    a("s_waitcnt vmcnt(16)\ns_barrier")
    first_tile(4)
    a("s_barrier\ns_branch L_ld_fin")
    a.label("L_ld_slow")
    consts(0, 1)
    a(f"""
s_barrier
buffer_load_dword v{pv+1}, v{pv}, {WS}, 0 offen sc1
""")
    consts(2, 3)
    a(f"""
s_waitcnt vmcnt(1)
s_barrier
s_mov_b32 s4, 0
L_pollL:
s_waitcnt vmcnt(0)
v_cmp_ne_u32 vcc, s92, v{pv+1}
s_add_u32 s4, s4, 1
s_cmp_gt_u32 s4, {SPIN_MAX}
s_cbranch_scc1 L_pollL_t
s_and_b32 s3, vcc_lo, 0xff
s_cbranch_scc0 L_pollL_d
s_sleep 1
buffer_load_dword v{pv+1}, v{pv}, {WS}, 0 offen sc1
s_branch L_pollL
L_pollL_t:
""")
    diag(a, 1, pv + 1)
    a.label("L_pollL_d")
    for t in range(3): first_tile(t)
    a("s_barrier")
    for t in range(3, 5): first_tile(t)
    a.label("L_ld_fin")
    consts(4, 5, 6, 7)
    a("s_mov_b32 s18, 1")
    a(f"""
s_waitcnt lgkmcnt(0)
s_branch L_join
L_ld_idle0:
s_mov_b32 s18, 0
s_waitcnt vmcnt({2*D})
s_barrier
s_waitcnt vmcnt({D})
s_barrier
s_waitcnt vmcnt(0)
s_barrier
s_barrier
s_branch L_join
""")

    a.label("L_comp")
    V = Regs(VB, 147, "v")
    xa = V.alloc("xa", 2); xe = V.alloc("xe", 2); wr_ = V.alloc("wr"); er = V.alloc("er")
    sa = V.alloc("sa", 10)
    sn = V.alloc("sn", 5)
    acc0 = V.alloc("acc", 44, 4); xf0 = V.alloc("xf", 24, 4); wf0 = V.alloc("wf", 24, 4); ep = V.alloc("ep", 12, 4)
    acc = lambda i, j: acc0 + (i * 5 + j) * 4
    acce = acc0 + 40
    xf = lambda st, i: xf0 + (st * 3 + i) * 4
    wf = lambda j: wf0 + j * 4
    a(f"""
v_and_b32 v{t0}, 7, v{l16}
v_xor_b32 v{t0}, v{t0}, v{g}
v_lshlrev_b32 v{t0}, 4, v{t0}
v_lshl_add_u32 v{t0}, v{l16}, 7, v{t0}
s_lshl_b32 s3, s{s_w}, 12
v_add_u32 v{xa}, s3, v{t0}
v_xor_b32 v{xa+1}, 64, v{xa}
s_lshl_b32 s3, s{s_hg}, 11
v_add_u32 v{xe}, s3, v{t0}
v_xor_b32 v{xe+1}, 64, v{xe}
v_lshrrev_b32 v{t0}, 1, v{g}
v_mul_u32_u24 v{t0}, 2560, v{t0}
v_and_b32 v{t1}, 1, v{g}
v_lshl_add_u32 v{t0}, v{t1}, 7, v{t0}
v_lshl_add_u32 v{t0}, v{l16}, 3, v{t0}
v_add_u32 v{wr_}, 16384, v{t0}
v_lshrrev_b32 v{t0}, 2, v{l16}
v_lshl_add_u32 v{t0}, v{g}, 3, v{t0}
v_mul_u32_u24 v{t0}, 40, v{t0}
v_and_b32 v{t1}, 3, v{l16}
v_lshl_add_u32 v{t0}, v{t1}, 3, v{t0}
s_lshr_b32 s3, s{s_w}, 1
s_mul_i32 s3, s3, 3072
s_and_b32 s4, s{s_w}, 1
s_lshl_b32 s4, s4, 5
s_add_u32 s3, s3, s4
s_add_u32 s3, s3, {16384+10240}
v_add_u32 v{er}, s3, v{t0}
s_mov_b32 s{s_slot}, 0
s_mov_b32 s46, 0
""")
    def pi16(dst):
        a(f"""
v_and_b32 v{dst}, 3, v{l16}
v_bfe_u32 v{t3}, v{l16}, 2, 1
v_lshl_add_u32 v{dst}, v{t3}, 3, v{dst}
v_bfe_u32 v{t3}, v{l16}, 3, 1
v_lshl_add_u32 v{dst}, v{t3}, 2, v{dst}
""")
    a(f"s_mul_i32 s4, s{s_w}, {RI_B}\ns_add_u32 s4, s4, {STG}")
    pi16(t2)
    for j in range(5):
        a(f"""
v_add_u32 v{t0}, {4*j}, v{g}
v_mul_u32_u24 v{t1}, 205, v{t0}
v_lshrrev_b32 v{t1}, 10, v{t1}
v_mul_u32_u24 v{t3}, 5, v{t1}
v_sub_u32 v{t0}, v{t0}, v{t3}
v_mul_u32_u24 v{t1}, {4*RI_B}, v{t1}
v_lshrrev_b32 v{t3}, 1, v{t0}
v_lshl_add_u32 v{t3}, v{t3}, 5, v{t2}
v_lshlrev_b32 v{t3}, 4, v{t3}
v_and_b32 v{ep}, 1, v{t0}
v_lshl_add_u32 v{t3}, v{ep}, 3, v{t3}
v_lshlrev_b32 v{ep}, 3, v{t2}
v_add_u32 v{ep}, 1024, v{ep}
v_cmp_eq_u32 vcc, 4, v{t0}
v_mov_b32 v{ep+1}, 256
v_mov_b32 v{ep+2}, 128
v_cndmask_b32 v{t3}, v{t3}, v{ep}, vcc
v_cndmask_b32 v{ep+1}, v{ep+1}, v{ep+2}, vcc
v_add3_u32 v{sa+2*j}, v{t1}, v{t3}, s4
v_add_u32 v{sa+2*j+1}, v{sa+2*j}, v{ep+1}
""")
    a(f"""
v_lshrrev_b32 v{t2}, 1, v{g}
v_mul_u32_u24 v{t2}, 320, v{t2}
v_and_b32 v{t3}, 1, v{g}
v_lshl_add_u32 v{t2}, v{t3}, 3, v{t2}
""")
    for j in range(5):
        a(f"""
v_add_u32 v{t0}, {16*j}, v{l16}
v_mul_u32_u24 v{t1}, 205, v{t0}
v_lshrrev_b32 v{t1}, 12, v{t1}
v_mul_u32_u24 v{t3}, 20, v{t1}
v_sub_u32 v{t0}, v{t0}, v{t3}
v_mul_u32_u24 v{t1}, {4*RI_B}, v{t1}
v_lshl_add_u32 v{t0}, v{t0}, 4, v{t2}
v_add3_u32 v{sn+j}, v{t0}, v{t1}, s4
""")
    for r in range(44): a(f"v_mov_b32 v{acc0+r}, 0")
    JK = 147
    if PFM == "comp":
        a(f"""
v_lshrrev_b32 v{ep}, 2, v{lane}
v_and_b32 v{t3}, 3, v{lane}
v_lshlrev_b32 v{t3}, 6, v{t3}
v_mul_u32_u24 v{ep+1}, 1280, v{ep}
v_add_u32 v{ep+1}, v{ep+1}, v{t3}
v_min_u32 v{t3}, 156, v{t3}
s_mov_b32 s18, {2048*1280}
s_mov_b32 s19, 0x20000
s_mov_b32 s23, 0x20000
""")
        for rnd in range(2):
            nrow = 24 if rnd == 0 else 40
            a(f"""
s_add_u32 s3, s{s_br}, {rnd}
s_mul_i32 s4, s{s_hg}, 160
s_mul_i32 s5, s{s_c16}, 160
s_add_u32 s5, s5, 1280
s_cmp_eq_u32 s3, 1
s_cselect_b32 s7, s4, s5
s_cselect_b32 s4, s{s_mt}, s{s_mu}
s_lshl_b32 s4, s4, 7
s_lshl_b32 s5, s{s_hg}, 4
s_add_u32 s4, s4, s5
s_mul_i32 s24, s4, 1280
s_lshl_b32 s5, s{s_w}, 8
s_add_u32 s25, s24, s5
s_movk_i32 s4, 3840
s_mov_b32 s5, {640*3840}
s_cmp_gt_u32 s{s_br}, {rnd}
s_cselect_b32 s6, 1280, s4
s_cselect_b32 s22, {640*1280}, s5
s_cselect_b32 s20, s56, s50
s_cselect_b32 s21, s57, s51
s_cselect_b32 s16, s54, s48
s_cselect_b32 s17, s55, s49
s_lshl_b32 s5, s{s_w}, 2
s_bfe_u32 s4, s2, 0x20003
s_add_u32 s5, s5, s4
s_mul_i32 s5, s5, {nrow}
s_add_u32 s5, s5, {256 if rnd == 0 else 0}
s_mul_i32 s5, s5, s6
s_add_u32 s26, s5, s7
s_mul_i32 s5, s6, {nrow - 16}
s_add_u32 s27, s26, s5
v_mad_u32_u24 v{t0}, v{ep}, s6, v{t3}
""")
            if rnd == 0:
                a(f"""
buffer_load_dword v{JK}, v{ep+1}, s[16:19], s25 offen offset:256
buffer_load_dword v{JK}, v{t0}, s[20:23], s26 offen
buffer_load_dword v{JK}, v{t0}, s[20:23], s27 offen
""")
            else:
                a(f"""
buffer_load_dword v{JK}, v{ep+1}, s[16:19], s25 offen
buffer_load_dword v{JK}, v{t0}, s[20:23], s26 offen
s_lshl_b32 s5, s6, 4
s_add_u32 s26, s26, s5
buffer_load_dword v{JK}, v{t0}, s[20:23], s26 offen
buffer_load_dword v{JK}, v{t0}, s[20:23], s27 offen
buffer_load_dword v{JK}, v{ep+1}, s[16:19], s24 offen offset:1024
""")
    a.label("L_round")
    a(f"""
s_mov_b32 s{s_cnt}, 0
s_add_u32 s3, s{s_br}, s{s_rnd}
s_lshr_b32 s4, s{s_c16}, 3
s_add_u32 s4, s4, 1
s_mul_i32 s5, s{s_br}, 3
s_cmp_eq_u32 s3, 1
s_cselect_b32 s{s_type}, s5, s4
v_add_u32 v{xa}, s46, v{xa}
v_add_u32 v{xa+1}, s46, v{xa+1}
v_add_u32 v{wr_}, s46, v{wr_}
s_waitcnt lgkmcnt(0)
s_barrier
s_cmp_lg_u32 s3, 2
s_cbranch_scc1 L_rnd_noq
""")
    read_q()
    a.label("L_rnd_noq")
    ENTRY_HOOK = True
    def rx(st, i):
        if i < 2: return f"ds_read_b128 {vr(xf(st,i),4)}, v{xa+st} offset:{i*2048}"
        return f"ds_read_b128 {vr(xf(st,2),4)}, v{xe+st}"
    def rw(st, j, h):
        if j < 5: return f"ds_read_b64_tr_b16 {vr(wf(j)+2*h,2)}, v{wr_} offset:{st*5120 + h*1280 + j*256}"
        return f"ds_read_b64_tr_b16 {vr(wf(5)+2*h,2)}, v{er} offset:{(32*st+4*h)*40}"
    def mf_list(st, orient, ext):
        out = []
        for j in range(5):
            for i in range(2):
                A, B = (wf(j), xf(st, i)) if orient == 'T' else (xf(st, i), wf(j))
                out.append((f"v_mfma_f32_16x16x32_bf16 {vr(acc(i,j),4)}, {vr(A,4)}, {vr(B,4)}, {vr(acc(i,j),4)}", [("x", st, i), ("w", j)]))
        if ext:
            A, B = (wf(5), xf(st, 2)) if ext == 'T' else (xf(st, 2), wf(5))
            out.append((f"v_mfma_f32_16x16x32_bf16 {vr(acce,4)}, {vr(A,4)}, {vr(B,4)}, {vr(acce,4)}", [("x", st, 2), ("w", 5)]))
        return out
    def gaps(rs, ext, late):
        W = lambda j, h: (rw(rs, j, h), ("w", j))
        X = lambda i: (rx(rs, i), ("x", rs, i))
        if late:
            gp = {1: [W(0,0), W(0,1)], 2: [X(0)], 3: [W(1,0), X(1)], 4: [W(1,1)], 5: [W(2,0)], 6: [W(2,1)], 7: [W(3,0)], 8: [W(3,1)], 9: [W(4,0), W(4,1)]}
        else:
            gp = {0: [X(0)], 1: [W(0,0), W(0,1)], 2: [X(1)], 3: [W(1,0)], 4: [W(1,1)], 5: [W(2,0)], 6: [W(2,1)], 7: [W(3,0)], 8: [W(3,1)], 9: [W(4,0), W(4,1)]}
        if ext:
            gp[6] = gp[6] + [X(2)]
            gp[10] = [W(5,0), W(5,1)]
        return gp
    def body(orient, ext, pend):
        out = []
        for st, rs, late in ((1, 0, True), (0, 1, False)):
            gp = gaps(rs, ext, late)
            if not late: out.append("@MID@")
            for m, (ins, needs) in enumerate(mf_list(st, orient, ext)):
                k = max([i for i, tg in enumerate(pend) if tg in needs], default=-1)
                if k >= 0:
                    n = len(pend) - 1 - k
                    out.append(f"s_waitcnt lgkmcnt({min(n, 15)})")
                    pend[:] = pend[k+1:] if n <= 15 else pend[len(pend)-15:]
                out.append(ins)
                if late and m == 1:
                    out += ["@ADV@", "s_waitcnt lgkmcnt(0)", "s_barrier"]; pend[:] = []
                for (r, tg) in gp.get(m, []):
                    out.append(r); pend.append(tg)
        return out
    def entry_reads(ext):
        for i in range(3 if ext else 2): a(rx(0, i))
        for j in range(6 if ext else 5):
            a(rw(0, j, 0)); a(rw(0, j, 1))
    entry_reads(False)
    a(f"""
s_cmp_eq_u32 s{s_type}, 2
s_waitcnt lgkmcnt(0)
s_cbranch_scc1 L_g_N_mid
s_cmp_eq_u32 s{s_type}, 3
s_cbranch_scc0 L_g_T_mid
""")
    a(rx(0, 2)); a(rw(0, 5, 0)); a(rw(0, 5, 1))
    a(f"""
s_cmp_lt_u32 s{s_w}, 2
s_waitcnt lgkmcnt(0)
s_cbranch_scc1 L_g_ET_mid
s_branch L_g_EN_mid
""")
    def gemm(label, orient, ext):
        a.label(label)
        pend = []
        body(orient, ext, pend)
        p0 = list(pend)
        code = body(orient, ext, pend)
        assert pend == p0
        regs = [xa, xa + 1, wr_] + ([xe, xe + 1, er] if ext else [])
        if "nomfma" in XP: code = [l for l in code if not l.startswith("v_mfma")]
        if "noread" in XP: code = [l for l in code if not l.startswith("ds_read")]
        for l in code:
            if l == "@ADV@":
                for r in regs: a(f"v_add_u32 v{r}, s46, v{r}")
            elif l == "@MID@": a.label(label + "_mid")
            else: a(l)
        a(f"""
s_add_u32 s{s_slot}, s{s_slot}, 1
s_and_b32 s{s_slot}, s{s_slot}, 3
s_mov_b32 s46, {(-3*SL) & 0xffffffff:#x}
s_cselect_b32 s46, {SL}, s46
s_add_u32 s{s_cnt}, s{s_cnt}, 1
s_cmp_lt_u32 s{s_cnt}, {NST}
s_cbranch_scc1 {label}
""")
        for m, (ins, needs) in enumerate(mf_list(1, orient, ext)):
            k = max([i for i, tg in enumerate(pend) if tg in needs], default=-1)
            if k >= 0:
                a(f"s_waitcnt lgkmcnt({min(len(pend) - 1 - k, 15)})"); pend[:] = pend[k+1:]
            a(ins)
    def pack(dst, src, scale=None):
        if scale is not None:
            a(f"v_pk_mul_f32 {vr(src,2)}, {vr(src,2)}, s[{scale}:{scale+1}]")
            a(f"v_pk_mul_f32 {vr(src+2,2)}, {vr(src+2,2)}, s[{scale}:{scale+1}]")
        a(f"v_cvt_pk_bf16_f32 v{dst}, v{src}, v{src+1}")
        a(f"v_cvt_pk_bf16_f32 v{dst+1}, v{src+2}, v{src+3}")
    def extra():
        a(f"""
s_lshl_b32 s3, s{s_w}, 9
s_add_u32 s3, s3, {STGE}
v_lshlrev_b32 v{t0}, 3, v{lane}
v_add_u32 v{t0}, s3, v{t0}
s_nop 7
""")
        pack(ep + 8, acce)
        a(f"ds_write_b64 v{t0}, {vr(ep+8,2)}")
    gemm("L_g_ET", 'T', 'T')
    extra()
    a("s_branch L_epi")
    gemm("L_g_EN", 'T', 'N')
    extra()
    a("s_branch L_epi")
    def epi(orient):
        n = 0
        for j in range(5):
            for i in range(2):
                d = ep + 2 * (n % 4); n += 1
                pack(d, acc(i, j), 6 if orient == 'T' else None)
                if orient == 'T': a(f"ds_write_b64 v{sa+2*j+i}, {vr(d,2)}")
                else: a(f"ds_write_b64 v{sn+j}, {vr(d,2)} offset:{640*i}")
                for r in range(4): a(f"v_mov_b32 v{acc(i,j)+r}, 0")
    gemm("L_g_N", 'N', None)
    a("s_nop 3")
    epi('N')
    a("s_branch L_epid")
    gemm("L_g_T", 'T', None)
    a.label("L_epi")
    a(f"""
s_mov_b32 s6, {f32bits(QSCALE):#x}
s_cmp_eq_u32 s{s_type}, 1
s_cselect_b32 s6, 1.0, s6
s_mov_b32 s7, s6
s_nop 3
""")
    epi('T')
    a.label("L_epid")
    a(f"""
s_cmp_eq_u32 s{s_rnd}, 1
s_mov_b32 s{s_rnd}, 1
s_cbranch_scc0 L_round
s_mov_b32 s18, 0
s_waitcnt lgkmcnt(0)
s_barrier
""")
    a.label("L_join")
    stamp(a, 1)
    a(f"s_cmp_eq_u32 s{s_br}, 1\ns_cbranch_scc1 L_haveq")
    read_q()
    a.label("L_haveq")
    V = Regs(VB, 148, "v")
    vdma = V.alloc("vdma"); vA = V.alloc("vA", 2); vK = V.alloc("vK", 2); vt8 = V.alloc("vt8"); mx = V.alloc("mx", 2)
    K2 = [V.alloc("K2e", 2, 2), V.alloc("K2o", 2, 2)]
    K1 = [V.alloc("K1e", 4, 4), V.alloc("K1o", 4, 4)]
    V0 = [V.alloc("V0e", 4, 4), V.alloc("V0o", 4, 4)]
    V1 = [V.alloc("V1e", 4, 4), V.alloc("V1o", 4, 4)]
    P = V.alloc("P", 8, 4)
    S = [V.alloc("SA", 16, 4), V.alloc("SB", 16, 4)]
    O = [V.alloc("OA", 16, 4), V.alloc("OB", 16, 4)]
    assert vdma == VB
    s_ob = 19
    img_base()
    a(f"""
s_lshr_b32 s3, s{s_w}, 1
s_cmp_eq_u32 s{s_br}, 0
s_cselect_b32 s4, s3, 0
s_mul_i32 s5, s4, {HEAD_B}
s_add_u32 s{s_img}, s{s_img}, s5
s_mul_i32 s4, s4, {SLOT_B}
v_add_u32 v{vA}, s4, v{vdma}
v_add_u32 v{vA+1}, {4*TS_B}, v{vA}
v_and_b32 v{t1}, 31, v{lane}
v_lshlrev_b32 v{vt8}, 3, v{t1}
v_add_u32 v{t0}, 3072, v{vt8}
v_mov_b32 v{t1}, {TILE_B}
v_cndmask_b32 v{t0}, v{t0}, v{t1}, {MHI}
v_add_u32 v{vK}, s4, v{t0}
v_add_u32 v{vK+1}, {4*TS_B}, v{vK}
s_lshl_b32 s4, s{s_br}, 5
s_lshl_b32 s5, s{s_hg}, 2
s_add_u32 s4, s4, s5
s_add_u32 s4, s4, s3
s_lshl_b32 s4, s4, 6
s_lshl_b32 s5, s{s_mt}, 2
s_add_u32 s4, s4, s5
s_and_b32 s5, s{s_w}, 1
s_lshl_b32 s5, s5, 1
s_add_u32 s4, s4, s5
s_mul_i32 s{s_ob}, s4, {RI_B}
s_add_u32 s{s_ob}, s{s_ob}, {WS_O}
s_mov_b32 s{s_cnt}, 0
""")
    for r in range(16):
        a(f"v_mov_b32 v{O[0]+r}, 0\nv_mov_b32 v{O[1]+r}, 0")
    for r in range(4):
        a(f"v_mov_b32 v{P+4+r}, 0\nv_mov_b32 v{V1[1]+r}, 0")
    def zero_off():
        for x in range(2):
            a(f"v_cndmask_b32 v{Q2[x]}, v{Q2[x]}, 0, {MHI}")
            a(f"v_cndmask_b32 v{Q2[x]+1}, v{Q2[x]+1}, 0, {MHI}")
    zero_off()
    a(f"""
s_waitcnt vmcnt(8) lgkmcnt(0)
s_barrier
ds_read_b128 {vr(K1[0],4)}, v{vA}
ds_read_b64 {vr(K2[0],2)}, v{vK}
ds_read_b128 {vr(V0[0],4)}, v{vA} offset:1024
ds_read_b128 {vr(V1[0],4)}, v{vA} offset:2048
ds_read_b128 {vr(K1[1],4)}, v{vA} offset:{TS_B}
ds_read_b64 {vr(K2[1],2)}, v{vK} offset:{TS_B}
""")
    a("s_cmp_eq_u32 s18, 0\ns_cbranch_scc1 L_no56")
    first_tile(5); first_tile(6)
    a.label("L_no56")
    stamp(a, 3)
    def qk(x, kb):
        return [f"v_mfma_f32_32x32x16_bf16 {vr(S[x],16)}, {vr(K1[kb],4)}, {vr(Q1[x],4)}, 0",
                f"v_mfma_f32_32x32x8_bf16 {vr(S[x],16)}, {vr(K2[kb],2)}, {vr(Q2[x],2)}, {vr(S[x],16)}"]
    def rowmax(x, dst, first):
        s = S[x]
        if first:
            a(f"v_max3_f32 v{dst}, v{s}, v{s+1}, v{s+2}")
            a(f"v_max_f32 v{dst}, v{dst}, v{s+3}")
            rs = range(4, 16, 2)
        else:
            rs = range(0, 16, 2)
        for r in rs:
            a(f"v_max3_f32 v{dst}, v{dst}, v{s+r}, v{s+r+1}")
    def set_off(x, m):
        a(f"""
v_mov_b32 v{t0}, v{m}
s_nop 1
v_permlane32_swap_b32 v{m}, v{t0}
s_nop 1
v_max_f32 v{t0}, v{m}, v{t0}
v_sub_f32 v{t0}, 0, v{t0}
v_and_b32 v{t1}, 0xffff0000, v{t0}
v_sub_f32 v{t0}, v{t0}, v{t1}
v_and_b32 v{t2}, 0xffff0000, v{t0}
v_sub_f32 v{t0}, v{t0}, v{t2}
s_mov_b32 s3, 0x07060302
v_perm_b32 v{t1}, v{t2}, v{t1}, s3
v_lshrrev_b32 v{t0}, 16, v{t0}
v_cndmask_b32 v{Q2[x]}, v{Q2[x]}, v{t1}, {MHI}
v_cndmask_b32 v{Q2[x]+1}, v{Q2[x]+1}, v{t0}, {MHI}
""")
    a("s_waitcnt lgkmcnt(4)")
    for x in range(2):
        for l in qk(x, 0): a(l)
    a("s_nop 7\ns_nop 3")
    rowmax(0, mx, True)
    set_off(0, mx)
    a("s_nop 1")
    for l in qk(0, 0): a(l)
    rowmax(1, mx + 1, True)
    set_off(1, mx + 1)
    a("s_waitcnt vmcnt(8) lgkmcnt(0)")

    def unit(x, t):
        y = 1 - x
        s = S[x]
        e = t & 1; o = 1 - e
        E = [f"v_exp_f32 v{s+i}, v{s+i}" for i in range(16)]
        C = [f"v_cvt_pk_bf16_f32 v{P+i}, v{s+2*i}, v{s+2*i+1}" for i in range(8)]
        M1, M3 = qk(y, e if x == 0 else o)
        M2 = f"v_mfma_f32_32x32x16_bf16 {vr(O[y],16)}, {vr(V1[o if x == 0 else e],4)}, {vr(P+4,4)}, {vr(O[y],16)}"
        M4 = f"v_mfma_f32_32x32x16_bf16 {vr(O[x],16)}, {vr(V0[e],4)}, {vr(P,4)}, {vr(O[x],16)}"
        def addr(tt):
            tt %= 8
            return (vA + tt // 4, vK + tt // 4, (tt % 4) * TS_B)
        A1, _, o1 = addr(t + 1)
        A2, B2, o2 = addr(t + 2)
        if x == 0:
            f1 = [f"ds_read_b128 {vr(V0[o],4)}, v{A1} offset:{o1+1024}"]
            f2 = [f"ds_read_b128 {vr(V1[o],4)}, v{A1} offset:{o1+2048}"]
            f4 = [f"ds_read_b128 {vr(K1[e],4)}, v{A2} offset:{o2}"]
        else:
            f1 = [f"ds_read_b64 {vr(K2[e],2)}, v{B2} offset:{o2}"]
            f2 = ["s_barrier"] if t % 2 == 0 else (["s_waitcnt vmcnt(0)"] if t == 1 else [])
            f4 = ["s_waitcnt lgkmcnt(0)"]
        if "halfread" in XP and (t // 2) % 2 == 1:
            f1 = [l for l in f1 if not l.startswith("ds_read")]; f2 = [l for l in f2 if not l.startswith("ds_read")]; f4 = [l for l in f4 if not l.startswith("ds_read")]
        if "nox8" in XP: M3 = "s_nop 0"
        if "pvz" in XP:
            M2 = M2.replace(vr(V1[o if x == 0 else e],4), "v[140:143]"); M4 = M4.replace(vr(V0[e],4), "v[140:143]")
        out = []
        PR = os.environ.get("PRIO", "")
        p0 = p1 = []
        if (PR == "1" and x == 1) or PR == "2":
            p0, p1 = ["s_setprio 0"], ["s_setprio 1"]
        out += [M1] + f1 + E[0:4]
        out += [M2] + f2 + [E[4], C[0], E[5], C[1], E[6], E[7]]
        out += [M3] + p0 + [E[8]] + p1 + [C[2], E[9], C[3], E[10], E[11]]
        out += [M4] + f4 + [E[12], C[4], E[13], C[5], E[14], E[15], C[6], C[7]]
        return out
    if os.environ.get("PRIO") == "3":
        a(f"s_cmp_lt_u32 s{s_w}, 4\ns_cbranch_scc1 L_noprio\ns_setprio 1\nL_noprio:")
    if "pvz" in XP:
        for r in range(4): a(f"v_mov_b32 v{140+r}, 0")
    stamp(a, 4)
    a(".p2align 6")
    a.label("L_attn_loop")
    for t in range(8):
        for x in range(2):
            for l in unit(x, t): a(l)
    a(f"""
s_add_u32 s{s_cnt}, s{s_cnt}, 1
s_cmp_lt_u32 s{s_cnt}, 8
s_cbranch_scc1 L_attn_loop
v_mfma_f32_32x32x16_bf16 {vr(O[1],16)}, {vr(V1[1],4)}, {vr(P+4,4)}, {vr(O[1],16)}
s_nop 7
s_nop 7
""")
    stamp(a, 5)
    def getl(x, dst):
        a(f"""
v_mov_b32 v{dst}, v{O[x]+8}
v_mov_b32 v{t0}, v{O[x]+8}
s_nop 1
v_permlane32_swap_b32 v{t0}, v{dst}
s_nop 1
""")
    a(f"s_mov_b32 s4, {f32bits(2.0**-20):#x}\ns_mov_b32 s5, {f32bits(2.0**60):#x}\ns_mov_b32 s3, 0x7f800000\ns_mov_b64 s[46:47], -1")
    for x in range(2):
        getl(x, mx + x)
        o = O[x]
        a(f"v_add_f32 v{t3}, abs(v{o}), abs(v{o+1})")
        for r in range(2, 8):
            a(f"v_add_f32 v{t3}, v{t3}, abs(v{o+r})")
        a(f"v_add_f32 v{t0}, abs(v{o+8}), abs(v{o+9})")
        a(f"v_add_f32 v{t0}, v{t0}, abs(v{o+10})")
        a(f"v_add_f32 v{t0}, v{t0}, abs(v{o+11})")
        a(f"v_cndmask_b32 v{t0}, v{t0}, 0, {MHI}")
        a(f"v_add_f32 v{t3}, v{t3}, v{t0}")
        a(f"""
v_cmp_gt_f32 vcc, s3, v{t3}
s_and_b64 s[46:47], s[46:47], vcc
v_cmp_le_f32 vcc, s4, v{mx+x}
s_and_b64 s[46:47], s[46:47], vcc
v_cmp_ge_f32 vcc, s5, v{mx+x}
s_and_b64 s[46:47], s[46:47], vcc
""")
    a(f"""
s_cmp_eq_u64 s[46:47], -1
s_cbranch_scc0 L_attn_slow
L_attn_fin:
v_lshlrev_b32 v{t1}, 3, v{lane}
v_lshrrev_b32 v{t2}, 5, v{lane}
v_mul_u32_u24 v{t2}, {RI_B - 256}, v{t2}
v_add_u32 v{t1}, v{t1}, v{t2}
""")
    for x in range(2):
        o = O[x]; d = S[x]
        a(f"v_rcp_f32 v{t0}, v{mx+x}\ns_nop 0")
        for r in range(12):
            a(f"v_mul_f32 v{o+r}, v{o+r}, v{t0}")
        a(f"""
v_cvt_pk_bf16_f32 v{d}, v{o}, v{o+1}
v_cvt_pk_bf16_f32 v{d+1}, v{o+2}, v{o+3}
v_cvt_pk_bf16_f32 v{d+2}, v{o+4}, v{o+5}
v_cvt_pk_bf16_f32 v{d+3}, v{o+6}, v{o+7}
v_cvt_pk_bf16_f32 v{P+2*x}, v{o+8}, v{o+9}
v_cvt_pk_bf16_f32 v{P+2*x+1}, v{o+10}, v{o+11}
v_permlane32_swap_b32 v{d}, v{d+2}
v_permlane32_swap_b32 v{d+1}, v{d+3}
s_nop 1
buffer_store_dwordx4 {vr(d,4)}, v{vdma}, {WS}, s{s_ob} offen offset:{RI_B*x} {SC1}
""")
    a(f"""
v_permlane32_swap_b32 v{P}, v{P+2}
v_permlane32_swap_b32 v{P+1}, v{P+3}
s_nop 1
buffer_store_dwordx2 {vr(P,2)}, v{t1}, {WS}, s{s_ob} offen offset:1024 {SC1}
""")
    V = Regs(VB + 1, 160, "v")
    om = V.alloc("om"); ot = V.alloc("ot"); wr = V.alloc("wr", 2); oa = V.alloc("oa")
    OF = V.alloc("OF", 80, 4); CA = V.alloc("CA", 20, 4); WF = V.alloc("WF", 40, 4)
    SO = SX
    pi16(t2)
    a(f"""
s_lshl_b32 s3, s{s_br}, 11
s_lshl_b32 s4, s{s_mt}, 2
s_add_u32 s3, s3, s4
s_lshr_b32 s4, s{s_w}, 1
s_add_u32 s3, s3, s4
s_mul_i32 s3, s3, {RI_B}
s_add_u32 s33, s3, {WS_O}
s_and_b32 s4, s{s_w}, 1
s_lshl_b32 s4, s4, 4
v_add_u32 v{t2}, s4, v{t2}
v_lshrrev_b32 v{t0}, 1, v{g}
s_mov_b32 s5, {RIH_B}
v_mul_lo_u32 v{t0}, v{t0}, s5
v_and_b32 v{t3}, 1, v{g}
v_lshlrev_b32 v{t3}, 9, v{t3}
v_lshl_add_u32 v{t3}, v{t2}, 4, v{t3}
v_add_u32 v{om}, v{t0}, v{t3}
s_mov_b32 s5, {2*RIH_B}
v_mul_lo_u32 v{t0}, v{g}, s5
v_lshl_add_u32 v{ot}, v{t2}, 3, v{t0}
v_lshrrev_b32 v{t0}, 1, v{g}
v_mul_u32_u24 v{t0}, 2560, v{t0}
v_and_b32 v{t3}, 1, v{g}
v_lshl_add_u32 v{t0}, v{t3}, 7, v{t0}
v_lshl_add_u32 v{wr+1}, v{l16}, 3, v{t0}
v_add_u32 v{wr}, {WO1}, v{wr+1}
s_lshl_b32 s3, s{s_mt}, 7
s_lshl_b32 s4, s{s_w}, 4
s_add_u32 s3, s3, s4
s_mul_i32 s3, s3, 2560
s_mul_i32 s4, s{s_br}, 1280
s_add_u32 s3, s3, s4
s_mul_i32 s4, s{s_hg}, 160
s_add_u32 s32, s3, s4
v_mul_u32_u24 v{oa}, 2560, v{l16}
v_lshl_add_u32 v{oa}, v{g}, 3, v{oa}
s_mul_i32 s6, s{s_hg}, {4*RIH_B*CROT}
s_add_u32 s6, s6, s33
s_add_u32 s7, s33, {32*RIH_B}
s_mov_b32 s{SO}, s64
s_mov_b32 s{SO+1}, s65
s_mov_b32 s{SO+2}, {2048*2560}
s_mov_b32 s{SO+3}, 0x20000
s_waitcnt vmcnt(0)
s_barrier
""")
    stamp(a, 6)
    def rwo(st):
        b = WF + (st % 2) * 20
        reg, base = (wr, st * 5120) if st < NWO1 else (wr + 1, (st - NWO1) * 5120)
        return [[f"ds_read_b64_tr_b16 {vr(b+4*j,2)}, v{reg} offset:{base + j*256}",
                 f"ds_read_b64_tr_b16 {vr(b+4*j+2,2)}, v{reg} offset:{base + 1280 + j*256}"] for j in range(5)]
    for r in range(20): a(f"v_mov_b32 v{CA+r}, 0")
    for gl in rwo(0) + rwo(1):
        for l in gl: a(l)
    a("s_barrier")
    stamp2(a, 10)
    CD = int(os.environ.get("CD", "20"))
    oq = []
    def oload(st):
        if st < 16:
            a(f"buffer_load_dwordx4 {vr(OF+4*st,4)}, v{om}, {WS}, s6 offen {SC1}"); oq.append(st)
            if st < 15: a(f"s_add_u32 s6, s6, {2*RIH_B}\ns_cmp_eq_u32 s6, s7\ns_cselect_b32 s6, s33, s6")
            else: a(f"s_add_u32 s33, s33, 1024\ns_add_u32 s4, s33, {RIH_B}")
        elif st < 20:
            u = st - 16
            a(f"buffer_load_dwordx2 {vr(OF+64+4*u,2)}, v{ot}, {WS}, s33 offen {SC1}")
            a(f"buffer_load_dwordx2 {vr(OF+66+4*u,2)}, v{ot}, {WS}, s4 offen {SC1}"); oq.extend([st, st])
            if u < 3: a(f"s_add_u32 s33, s33, {8*RIH_B}\ns_add_u32 s4, s4, {8*RIH_B}")
    for st in range(CD): oload(st)
    pend = []
    for st in range(20):
        b = WF + (st % 2) * 20
        nl = len([x for x in oq if x > st])
        a(f"s_waitcnt vmcnt({nl})" + (" lgkmcnt(0)" if st == 0 else ""))
        if STAMPS and os.environ.get("CST") and st in (0, 8, 16):
            a(f"s_memrealtime s[{40+st//4}:{41+st//4}]")
        nxt_ = rwo(st + 2) if st + 2 < 20 else None
        for j in range(5):
            if (st, j) in pend:
                k = pend.index((st, j))
                n = 2 * (len(pend) - 1 - k)
                if n < 14 or j == 0 or True:
                    a(f"s_waitcnt lgkmcnt({min(n, 14)})")
                pend = pend[k+1:] if n <= 14 else pend[len(pend)-7:]
            a(f"v_mfma_f32_16x16x32_bf16 {vr(CA+4*j,4)}, {vr(b+4*j,4)}, {vr(OF+4*st,4)}, {vr(CA+4*j,4)}")
            if nxt_:
                for l in nxt_[j]: a(l)
                pend.append((st + 2, j))
            if j == 0: oload(st + CD)
    a("s_nop 7\ns_nop 3")
    stamp2(a, 11)
    if STAMPS and os.environ.get("CST"):
        b = SV[0]
        for n, r in enumerate((40, 42, 44)):
            a(f"v_mov_b32 v{b}, s{r}\nv_mov_b32 v{b+1}, s{r+1}\nbuffer_store_dwordx2 v[{b}:{b+1}], v{b+4}, s[72:75], s71 offen offset:{(13+n)*8}\ns_nop 4")
    for j in range(5):
        d = WF + 2 * j
        a(f"v_cvt_pk_bf16_f32 v{d}, v{CA+4*j}, v{CA+4*j+1}")
        a(f"v_cvt_pk_bf16_f32 v{d+1}, v{CA+4*j+2}, v{CA+4*j+3}")
        a(f"buffer_store_dwordx2 {vr(d,2)}, v{oa}, {srd(SO)}, s32 offen offset:{j*32} {OPOL}")
    if STAMPS:
        a("s_waitcnt vmcnt(0)")
        stamp(a, 7)
    a("s_endpgm")

    a.label("L_aux")
    aux_start = len(a.lines)
    SA_, SB_ = 80, 84
    wm_, wt_ = VB + 6, VB + 11
    def wo_addr():
        a(f"s_mul_i32 s7, s{s_hg}, 160")
        for i in range(5):
            a(f"""
v_add_u32 v{t0}, {4*i}, v{g}
v_mul_u32_u24 v{t1}, 205, v{t0}
v_lshrrev_b32 v{t1}, 10, v{t1}
v_mul_u32_u24 v{t2}, 5, v{t1}
v_sub_u32 v{t0}, v{t0}, v{t2}
v_lshlrev_b32 v{t0}, 5, v{t0}
v_and_b32 v{t2}, 1, v{lane}
v_lshl_add_u32 v{t0}, v{t2}, 4, v{t0}
v_add_u32 v{t0}, s7, v{t0}
v_bfe_u32 v{t2}, v{lane}, 1, 2
v_bfe_u32 v{t3}, v{lane}, 3, 1
v_lshrrev_b32 v{wm_+i}, 1, v{t1}
v_mul_u32_u24 v{wm_+i}, 20, v{wm_+i}
v_lshl_add_u32 v{wm_+i}, v{t3}, 3, v{wm_+i}
v_and_b32 v{wt_+i}, 1, v{t1}
v_lshl_add_u32 v{wm_+i}, v{wt_+i}, 2, v{wm_+i}
v_add_u32 v{wm_+i}, v{wm_+i}, v{t2}
v_mul_u32_u24 v{wm_+i}, 1280, v{wm_+i}
v_add_u32 v{wm_+i}, v{wm_+i}, v{t0}
v_lshrrev_b32 v{t1}, 1, v{t1}
v_lshl_add_u32 v{t1}, v{t1}, 1, v{t3}
v_lshl_add_u32 v{wt_+i}, v{t1}, 1, v{wt_+i}
v_mul_u32_u24 v{wt_+i}, 20, v{wt_+i}
v_add3_u32 v{wt_+i}, v{wt_+i}, v{t2}, 16
v_mul_u32_u24 v{wt_+i}, 1280, v{wt_+i}
v_add_u32 v{wt_+i}, v{wt_+i}, v{t0}
""")
    def signal(cnt_sgpr):
        a(f"""
s_lshl_b32 s3, s{cnt_sgpr}, 8
s_add_u32 s3, s3, {WS_CNT}
v_mov_b32 v{t0}, 0
v_mov_b32 v{t1}, 1
s_mov_b64 exec, 1
buffer_atomic_add v{t1}, v{t0}, {WS}, s3 offen sc1
s_mov_b64 exec, -1
""")
    auxq = []
    a(f"v_lshlrev_b32 v{vdma}, 4, v{lane}")
    a(f"""
s_mov_b32 s80, s58
s_mov_b32 s81, s59
s_mov_b32 s82, {640*40}
s_mov_b32 s83, 0x20000
s_mov_b32 s84, s60
s_mov_b32 s85, s61
s_mov_b32 s86, {640*40}
s_mov_b32 s87, 0x20000
""")
    def edma(st):
        a(f"s_cmp_eq_u32 s{s_br}, 0\ns_cbranch_scc1 L_e{st}\ns_add_u32 s5, s94, {st}\ns_cmp_ge_u32 s5, 10\ns_cselect_b32 s4, 10, 0\ns_sub_u32 s5, s5, s4\ns_mul_i32 s5, s5, 2560")
        for m, sr_ in enumerate((80, 84)):
            a(f"s_mov_b32 m0, {(st%4)*SL + 26624 + m*3072}\ns_nop 0")
            for n in range(3):
                a(f"buffer_load_dwordx4 v{vdma}, {srd(sr_)}, s5 offen offset:{n*1024} lds")
        a(f"L_e{st}:")
        auxq.extend([("e", st)] * 6)
    for st in range(4): edma(st)
    if "cw" in XP:
        a(f"""
s_getpc_b64 s[4:5]
L_pc:
s_sub_u32 s4, s4, L_pc-{NAME}
s_subb_u32 s5, s5, 0
s_lshr_b32 s3, s2, 3
s_lshl_b32 s3, s3, 10
v_lshlrev_b32 v{t2}, 6, v{l16}
v_add_u32 v{t2}, s3, v{t2}
v_min_u32 v{t2}, L_end-{NAME}, v{t2}
s_mov_b64 exec, 0xffff
global_load_dword v{VB+2}, v{t2}, s[4:5]
s_mov_b64 exec, -1
""")
    a(f"""
s_setprio 3
v_mov_b32 v{t0}, 0
v_mov_b32 v{t1}, 1
s_cmp_ge_u32 s2, {NCNT}
s_cbranch_scc1 L_aux_noinit
s_lshl_b32 s3, s2, 8
s_add_u32 s3, s3, {WS_CNT}
s_mov_b64 exec, 1
buffer_store_dword v{t0}, v{t0}, {WS}, s3 offen sc1
s_waitcnt vmcnt(0)
buffer_atomic_add v{t1}, v{t0}, {srd(SDBG)}, 0 offen sc1
s_mov_b64 exec, -1
L_aux_noinit:
""")
    ca = VB + 24; cd = VB + 48
    for i in range(5):
        a(f"""
v_add_u32 v{t0}, {64*i}, v{lane}
v_mul_u32_u24 v{t1}, 3277, v{t0}
v_lshrrev_b32 v{t1}, 18, v{t1}
v_mul_u32_u24 v{t2}, 80, v{t1}
v_sub_u32 v{t2}, v{t0}, v{t2}
v_mul_u32_u24 v{t1}, {TILE_B}, v{t1}
v_lshl_add_u32 v{ca+i}, v{t2}, 4, v{t1}
v_cmp_le_u32 vcc, 64, v{t2}
v_mov_b32 v{t3}, 2048
v_mul_u32_u24 v{t1}, 205, v{t2}
v_cndmask_b32 v{t3}, 0, v{t3}, vcc
v_lshrrev_b32 v{t1}, 12, v{t1}
v_mul_u32_u24 v{t1}, 192, v{t1}
v_add_u32 v{t1}, 1024, v{t1}
s_cmp_ge_u32 s{s_c16}, 8
s_cselect_b64 vcc, -1, 0
v_cndmask_b32 v{t3}, v{t3}, v{t1}, vcc
v_add_u32 v{ca+i}, v{ca+i}, v{t3}
""")
    wo_addr()
    a(f"""
s_and_b32 s3, s{s_c16}, 7
s_lshl_b32 s3, s3, 8
s_lshl_b32 s4, s{s_mu}, 2
s_add_u32 s3, s3, s4
s_mul_i32 s26, s3, {TILE_B}
s_add_u32 s26, s26, {WS_KV}
v_lshlrev_b32 v{vdma}, 4, v{lane}
v_add_u32 v{VB+3}, {STG}, v{vdma}
v_mov_b32 v{VB+31}, 0
""")
    pfx, pfw = VB + 33, VB + 34
    PX, PW = [36, 16], [96, 20]
    s_px, s_pw, s_pws = [24, 25], [88, 89], [90, 91]
    if PFM == "aux":
        for rnd in range(2):
            a(f"""
s_add_u32 s3, s{s_br}, {rnd}
s_mul_i32 s4, s{s_hg}, 160
s_mul_i32 s5, s{s_c16}, 160
s_add_u32 s5, s5, 1280
s_cmp_eq_u32 s3, 1
s_cselect_b32 s7, s4, s5
s_cselect_b32 s4, s{s_mt}, s{s_mu}
s_lshl_b32 s4, s4, 7
s_lshl_b32 s5, s{s_hg}, 4
s_add_u32 s4, s4, s5
s_mul_i32 s{s_px[rnd]}, s4, 1280
s_movk_i32 s4, 3840
s_mov_b32 s5, {640*3840}
s_cmp_gt_u32 s{s_br}, {rnd}
s_cselect_b32 s6, 1280, s4
s_cselect_b32 s{PW[rnd]+2}, {640*1280}, s5
s_cselect_b32 s{PW[rnd]}, s56, s50
s_cselect_b32 s{PW[rnd]+1}, s57, s51
s_cselect_b32 s{PX[rnd]}, s54, s48
s_cselect_b32 s{PX[rnd]+1}, s55, s49
s_mov_b32 s{PX[rnd]+2}, {2048*1280}
s_mov_b32 s{PX[rnd]+3}, 0x20000
s_mov_b32 s{PW[rnd]+3}, 0x20000
s_bfe_u32 s5, s2, 0x20003
s_lshl_b32 s5, s5, 4
s_add_u32 s5, s5, {256 if rnd == 0 else 0}
s_mul_i32 s5, s5, s6
s_add_u32 s{s_pw[rnd]}, s5, s7
s_lshl_b32 s{s_pws[rnd]}, s6, 6
v_lshrrev_b32 v{pfw+rnd}, 2, v{lane}
v_mul_lo_u32 v{pfw+rnd}, v{pfw+rnd}, s6
v_and_b32 v{t3}, 3, v{lane}
v_lshlrev_b32 v{t3}, 6, v{t3}
v_min_u32 v{t2}, 156, v{t3}
v_add_u32 v{pfw+rnd}, v{pfw+rnd}, v{t2}
""")
        a(f"""
v_lshrrev_b32 v{pfx}, 2, v{lane}
v_mul_u32_u24 v{pfx}, 1280, v{pfx}
v_add_u32 v{pfx}, v{pfx}, v{t3}
""")
    if PFM == "aux" and "l128" in XP:
        for rnd in range(2):
            a(f"""
s_lshr_b32 s6, s{s_pws[rnd]}, 6
v_lshrrev_b32 v{t0}, 5, v{lane}
v_lshlrev_b32 v{t0}, 6, v{t0}
v_bfe_u32 v{t1}, v{lane}, 1, 4
v_add_u32 v{t0}, v{t0}, v{t1}
v_mul_lo_u32 v{pfw+rnd}, v{t0}, s6
v_and_b32 v{t1}, 1, v{lane}
v_mul_u32_u24 v{t1}, 156, v{t1}
v_add_u32 v{pfw+rnd}, v{pfw+rnd}, v{t1}
s_lshl_b32 s{s_pws[rnd]}, s{s_pws[rnd]}, 1
""")
        a(f"v_add_u32 v{pfx}, v{pfx}, v{t3}")
    def pf(stage):
        if PFM != "aux" or stage >= 20: return
        r, st = divmod(stage, 10)
        if "l128" in XP:
            if st % 4 == 0:
                a(f"buffer_load_dword v{VB+4}, v{pfx}, {srd(PX[r])}, s{s_px[r]} offen offset:{min(128*st, 768)}"); auxq.append("p")
            if st % 2 == 0:
                a(f"buffer_load_dword v{VB+5}, v{pfw+r}, {srd(PW[r])}, s{s_pw[r]} offen {PPOL}"); auxq.append("p")
                a(f"s_add_u32 s{s_pw[r]}, s{s_pw[r]}, s{s_pws[r]}")
            return
        if st % 2 == 0:
            a(f"buffer_load_dword v{VB+4}, v{pfx}, {srd(PX[r])}, s{s_px[r]} offen offset:{128*st} {PPOL}"); auxq.append("p")
        a(f"buffer_load_dword v{VB+5}, v{pfw+r}, {srd(PW[r])}, s{s_pw[r]} offen {PPOL}"); auxq.append("p")
        a(f"s_add_u32 s{s_pw[r]}, s{s_pw[r]}, s{s_pws[r]}")
    PRE = int(os.environ.get("PRE", "4"))
    for st in range(4, PRE): pf(st)
    nxt = [max(PRE, 4)]
    if os.environ.get("SKIP0"): nxt = [10]
    for k in range(0, 11):
        if k < 10:
            last = max(i for i, tg in enumerate(auxq) if tg == ("e", k))
            a(f"s_waitcnt vmcnt({min(len(auxq) - 1 - last, 63)})")
        a("s_barrier")
        if 1 <= k <= 6: edma(k + 3)
        if k == 5:
            a(f"buffer_load_dword v{VB+32}, v{VB+31}, {srd(SDBG)}, 0 offen sc1"); auxq.append("d")
        n = 0
        lim = k + LEAD
        if os.environ.get("SCHED"): lim = [int(x) for x in os.environ["SCHED"].split(",")][k]
        while nxt[0] <= lim and nxt[0] < 20 and n < PFN:
            pf(nxt[0]); nxt[0] += 1; n += 1
        if k == 9:
            a(f"""
s_mov_b32 s4, 0
s_waitcnt vmcnt({auxq[auxq.index("d"):].count("p")})
L_aux_chk:
v_cmp_ne_u32 vcc, {NCNT}, v{VB+32}
s_add_u32 s4, s4, 1
s_cmp_gt_u32 s4, {SPIN_MAX}
s_cbranch_scc1 L_aux_chkt
s_cbranch_vccz L_aux_chkd
s_sleep 4
buffer_load_dword v{VB+32}, v{VB+31}, {srd(SDBG)}, 0 offen sc1
s_waitcnt vmcnt(0)
s_branch L_aux_chk
L_aux_chkt:
""")
            diag(a, 0, VB + 32)
            a.label("L_aux_chkd")
    def copy_unit(lo, hi):
        for i in range(lo, hi):
            a(f"ds_read_b128 {vr(cd+4*i,4)}, v{VB+3} offset:{1024*i}")
        for i in range(lo, hi):
            a(f"s_waitcnt lgkmcnt({hi-1-i})")
            if i % 5 == 0: a(f"s_add_u32 s6, s26, {(i//5)*HEAD_B}")
            a(f"buffer_store_dwordx4 {vr(cd+4*i,4)}, v{ca+i%5}, {WS}, s6 offen {SC1}")
    a(f"s_cmp_eq_u32 s{s_br}, 0\ns_cbranch_scc0 L_aux_ex")
    copy_unit(0, 10)
    a("s_barrier")
    copy_unit(10, 20)
    a(f"s_barrier\ns_mov_b32 s4, s{s_c16}\ns_branch L_aux_sig0")
    a.label("L_aux_ex")
    pi16(t2)
    a(f"""
v_lshlrev_b32 v{t0}, 3, v{lane}
v_add_u32 v{t0}, {STGE}, v{t0}
ds_read_b64 {vr(cd,2)}, v{t0}
ds_read_b64 {vr(cd+2,2)}, v{t0} offset:512
ds_read_b64 {vr(cd+4,2)}, v{t0} offset:1024
ds_read_b64 {vr(cd+6,2)}, v{t0} offset:1536
s_lshl_b32 s3, s{s_mt}, 2
s_lshr_b32 s4, s{s_hg}, 1
s_add_u32 s3, s3, s4
s_mul_i32 s6, s3, {TILE_B}
s_add_u32 s6, s6, {WS_KV + 32*HEAD_B}
s_and_b32 s4, s{s_hg}, 1
s_lshl_b32 s5, s4, 4
v_add_u32 v{t2}, s5, v{t2}
v_lshrrev_b32 v{t3}, 1, v{g}
v_lshl_add_u32 v{t3}, v{t3}, 5, v{t2}
v_lshlrev_b32 v{t3}, 4, v{t3}
v_and_b32 v{t0}, 1, v{g}
v_lshl_add_u32 v{cd+8}, v{t0}, 3, v{t3}
v_lshlrev_b32 v{cd+9}, 3, v{t2}
v_lshrrev_b32 v{t3}, 1, v{g}
v_lshlrev_b32 v{t3}, 9, v{t3}
v_lshl_add_u32 v{t3}, v{t0}, 3, v{t3}
s_lshl_b32 s4, s4, 10
v_add_u32 v{t3}, s4, v{t3}
v_lshl_add_u32 v{cd+10}, v{l16}, 4, v{t3}
s_waitcnt lgkmcnt(0)
buffer_store_dwordx2 {vr(cd,2)}, v{cd+8}, {WS}, s6 offen {SC1}
buffer_store_dwordx2 {vr(cd+4,2)}, v{cd+10}, {WS}, s6 offen offset:1024 {SC1}
s_mov_b64 exec, 0xffff
buffer_store_dwordx2 {vr(cd+2,2)}, v{cd+9}, {WS}, s6 offen offset:3072 {SC1}
s_mov_b32 exec_lo, 0x000f000f
s_mov_b32 exec_hi, 0x000f000f
buffer_store_dwordx2 {vr(cd+6,2)}, v{cd+10}, {WS}, s6 offen offset:{1024+256} {SC1}
s_mov_b64 exec, -1
s_barrier
s_barrier
s_lshr_b32 s4, s{s_mt}, 1
s_add_u32 s4, s4, {C_EX}
s_waitcnt vmcnt(0)
""")
    signal(4)
    a(f"""
s_barrier
s_branch L_aux_sig1
L_aux_sig0:
s_barrier
s_waitcnt vmcnt(0)
""")
    signal(4)
    a(f"""
L_aux_sig1:
s_cmp_eq_u32 s{s_br}, 0
s_cselect_b32 s{SB_}, s52, s62
s_cselect_b32 s{SB_+1}, s53, s63
s_mov_b32 s{SB_+2}, {640*1280}
s_mov_b32 s{SB_+3}, 0x20000
s_barrier
""")
    img_base()
    a(f"""
s_add_u32 s{s_gd}, s{s_img}, {7*TILE_B}
""")
    a("""
s_barrier
s_barrier
s_barrier
s_barrier
s_barrier
s_barrier
""")
    s_wl, s_wg, s_sl = 25, 24, 27
    a(f"""
s_mov_b32 s{s_wl}, {WO1}
s_mul_i32 s{s_wg}, s{s_hg}, {80*1280*CROT}
s_mov_b32 s{s_sl}, {7*TS_B}
s_mov_b32 s{s_cnt}, 0
s_barrier
s_cmp_eq_u32 s{s_br}, 0
s_cbranch_scc0 L_pB
""")
    def wo_step(regs, rows):
        for i in range(5):
            a(f"s_add_u32 m0, s{s_wl}, {i*1024}\ns_nop 0")
            a(f"buffer_load_dwordx4 v{regs+i}, {srd(SB_)}, s{s_wg} offen lds")
        a(f"s_add_u32 s{s_wl}, s{s_wl}, 5120\ns_add_u32 s{s_wg}, s{s_wg}, {rows*1280}")
        if rows == 40: a(f"s_cmp_eq_u32 s{s_wg}, {640*1280}\ns_cselect_b32 s{s_wg}, 0, s{s_wg}")
    def one_tile(nh):
        for h in range(nh):
            if h: a(f"s_add_u32 s4, s{s_gd}, {h*HEAD_B}")
            for l in dma_tile(f"s_add_u32 m0, s{s_sl}, {h*SLOT_B}", 4 if h else s_gd): a(l)
        a(f"""
s_add_u32 s{s_gd}, s{s_gd}, {TILE_B}
s_add_u32 s{s_sl}, s{s_sl}, {TS_B}
s_cmp_eq_u32 s{s_sl}, {8*TS_B}
s_cselect_b32 s{s_sl}, 0, s{s_sl}
""")
    def producer(lab, nh):
        B_ = 8 * nh
        a(f"""
s_barrier
""")
        one_tile(nh); one_tile(nh)
        if nh == 1:
            copy_unit(0, 10); copy_unit(10, 20)
        else:
            a(f"""
v_and_b32 v{t2}, 1, v{lane}
v_lshlrev_b32 v{t2}, 3, v{t2}
v_add_u32 v{t2}, s{s_hg}, v{t2}
v_add_u32 v{t2}, 16, v{t2}
v_lshlrev_b32 v{t2}, 8, v{t2}
v_add_u32 v{t2}, {WS_CNT}, v{t2}
""")
        a(f"s_mov_b32 s{s_cnt}, 1")
        a.label(lab + "_w")
        a(f"s_waitcnt vmcnt({B_})\ns_barrier")
        a(f"s_cmp_lg_u32 s{s_cnt}, {2 if nh == 1 else 11}\ns_cbranch_scc1 {lab}_h")
        if nh == 1:
            a(f"s_add_u32 s4, s{s_c16}, 16")
            signal(4)
        else:
            poll(lab + "_late", 3, 8)
        a.label(lab + "_h")
        wo_step(wm_, 40)
        one_tile(nh); one_tile(nh)
        a(f"""
s_add_u32 s{s_cnt}, s{s_cnt}, 1
s_cmp_lt_u32 s{s_cnt}, {NWO1+1}
s_cbranch_scc1 {lab}_w
""")
        a.label(lab + "_n")
        a(f"s_waitcnt vmcnt({B_})\ns_barrier")
        one_tile(nh); one_tile(nh)
        a(f"""
s_add_u32 s{s_cnt}, s{s_cnt}, 1
s_cmp_lt_u32 s{s_cnt}, 28
s_cbranch_scc1 {lab}_n
s_waitcnt vmcnt({B_})
s_barrier
""")
        one_tile(nh)
        a(f"""
s_waitcnt vmcnt({B_//2})
s_barrier
s_waitcnt vmcnt(0)
s_barrier
""")
    producer("L_pA", 4)
    a("s_branch L_pend")
    a.label("L_pB")
    producer("L_pBq", 1)
    a.label("L_pend")
    a(f"s_mov_b32 s{s_wl}, 0")
    for _ in range(16 - NWO1): wo_step(wm_, 40)
    a(f"s_barrier\ns_mov_b32 s{s_wg}, 0")
    for _ in range(4): wo_step(wt_, 160)
    a(f"""
s_lshl_b32 s4, s{s_br}, 4
s_add_u32 s4, s4, s{s_mt}
s_add_u32 s4, s4, {C_O}
s_lshl_b32 s5, s4, 8
s_add_u32 s5, s5, {WS_CNT}
v_mov_b32 v{t2}, s5
s_barrier
""")
    signal(4)
    poll("L_poll2", 1, 8)
    a("s_barrier")
    if STAMPS:
        new = []
        stop = False
        for l in a.lines[aux_start:]:
            new.append(l)
            if l.strip().startswith("L_pA_w") or "L_pB" in l: stop = True
            if l.strip() == "s_barrier" and not stop:
                new += ["    s_memrealtime s[76:77]", "    s_waitcnt lgkmcnt(0)", "    s_mov_b32 m0, s100", "    s_nop 1", "    v_writelane_b32 v166, s76, m0", "    s_add_u32 s100, s100, 1"]
        a.lines[aux_start:] = ["    s_mov_b32 s100, 0", "    v_mov_b32 v166, 0"] + new
        a(f"""
s_getreg_b32 s76, hwreg(HW_REG_XCC_ID)
v_writelane_b32 v166, s76, 40
s_getreg_b32 s76, hwreg(HW_REG_HW_ID)
v_writelane_b32 v166, s76, 41
v_lshlrev_b32 v167, 2, v{lane}
s_lshl_b32 s71, s70, 1
buffer_store_dword v166, v167, s[72:75], s71 offen
""")
    a("s_endpgm")

    a.label("L_attn_slow")
    zero_off()
    a(f"""
v_and_b32 v{t3}, 31, v{lane}
v_cmp_eq_u32 s[46:47], 20, v{t3}
v_mov_b32 v{vA}, 0x3f803f80
v_mov_b32 v{vK}, 0x3f80
v_mov_b32 v{mx}, 0xff800000
v_mov_b32 v{mx+1}, 0xff800000
s_mov_b32 s{s_gd}, s{s_img}
s_mov_b32 s{s_cnt}, 0
L_attn_slow1:
buffer_load_dwordx4 {vr(K1[0],4)}, v{vdma}, {WS}, s{s_gd} offen {SC1}
buffer_load_dwordx2 {vr(K2[0],2)}, v{vt8}, {WS}, s{s_gd} offen offset:3072 {SC1}
s_waitcnt vmcnt(0)
v_cndmask_b32 v{K2[0]}, v{K2[0]}, v{vA}, {MHI}
v_cndmask_b32 v{K2[0]+1}, v{K2[0]+1}, v{vK}, {MHI}
s_nop 1
""")
    for x in range(2):
        for l in qk(x, 0): a(l)
    a("s_nop 7\ns_nop 7")
    for x in range(2):
        rowmax(x, mx + x, False)
    a(f"""
s_add_u32 s{s_gd}, s{s_gd}, {TILE_B}
s_add_u32 s{s_cnt}, s{s_cnt}, 1
s_cmp_lt_u32 s{s_cnt}, 64
s_cbranch_scc1 L_attn_slow1
""")
    for x in range(2):
        set_off(x, mx + x)
    for r in range(16):
        a(f"v_mov_b32 v{O[0]+r}, 0\nv_mov_b32 v{O[1]+r}, 0")
    a(f"""
s_mov_b32 s{s_gd}, s{s_img}
s_mov_b32 s{s_cnt}, 0
L_attn_slow2:
buffer_load_dwordx4 {vr(K1[0],4)}, v{vdma}, {WS}, s{s_gd} offen {SC1}
buffer_load_dwordx2 {vr(K2[0],2)}, v{vt8}, {WS}, s{s_gd} offen offset:3072 {SC1}
buffer_load_dwordx4 {vr(V0[0],4)}, v{vdma}, {WS}, s{s_gd} offen offset:1024 {SC1}
buffer_load_dwordx4 {vr(V1[0],4)}, v{vdma}, {WS}, s{s_gd} offen offset:2048 {SC1}
s_waitcnt vmcnt(0)
v_cndmask_b32 v{K2[0]}, v{K2[0]}, v{vA}, {MHI}
v_cndmask_b32 v{K2[0]+1}, v{K2[0]+1}, v{vK}, {MHI}
""")
    for r in range(4):
        a(f"v_cndmask_b32 v{V0[0]+r}, v{V0[0]+r}, v{vA}, s[46:47]")
        a(f"v_cndmask_b32 v{V1[0]+r}, v{V1[0]+r}, v{vA}, s[46:47]")
    a("s_nop 1")
    for x in range(2):
        for l in qk(x, 0): a(l)
    a("s_nop 7\ns_nop 7")
    for x in range(2):
        s_ = S[x]
        for i in range(16): a(f"v_exp_f32 v{s_+i}, v{s_+i}")
        a("s_nop 0")
        for i in range(8): a(f"v_cvt_pk_bf16_f32 v{P+i}, v{s_+2*i}, v{s_+2*i+1}")
        a("s_nop 1")
        a(f"v_mfma_f32_32x32x16_bf16 {vr(O[x],16)}, {vr(V0[0],4)}, {vr(P,4)}, {vr(O[x],16)}")
        a(f"v_mfma_f32_32x32x16_bf16 {vr(O[x],16)}, {vr(V1[0],4)}, {vr(P+4,4)}, {vr(O[x],16)}")
    a(f"""
s_add_u32 s{s_gd}, s{s_gd}, {TILE_B}
s_add_u32 s{s_cnt}, s{s_cnt}, 1
s_cmp_lt_u32 s{s_cnt}, 64
s_cbranch_scc1 L_attn_slow2
s_nop 7
s_nop 7
""")
    for x in range(2):
        getl(x, mx + x)
    a("s_branch L_attn_fin")
    a.label("L_end")
    a("s_endpgm")
    nv = 168 if STAMPS else 160
    a(f""".section .rodata,"a"
.p2align 6
.amdhsa_kernel {NAME}
  .amdhsa_next_free_vgpr {nv}
  .amdhsa_next_free_sgpr 102
  .amdhsa_accum_offset {nv}
  .amdhsa_group_segment_fixed_size 0
  .amdhsa_kernarg_size 88
  .amdhsa_user_sgpr_count 2
  .amdhsa_user_sgpr_kernarg_segment_ptr 1
  .amdhsa_system_sgpr_workgroup_id_x 1
.end_amdhsa_kernel
""")

DOC = """
; ---------------------------------------------------------------------------------------------------------------
;           so every hand-off is complete before it is needed.
;           and O are checked (2^-20 <= l <= 2^60, O finite) and a wave that fails recomputes with the true row maximum.
; ---------------------------------------------------------------------------------------------------------------
"""

if __name__ == "__main__":
    import sys
    REF = open('concat_heads__softmax_full_mha__grouped_kv_mqa__prompt.s.ref').read()
    hdr = [l for l in REF.split("\n") if l.startswith(";") and "@launch" not in l]
    a = Asm()
    a('.amdgcn_target "amdgcn-amd-amdhsa--gfx950"\n.text')
    gen(a)
    out = "\n".join(hdr) + f"\n; @launch grid=(256,1,1) block=(576,1,1) lds={LDS_BYTES}" + DOC + a.text()
    path = sys.argv[1] if len(sys.argv) > 1 else 'concat_heads__softmax_full_mha__grouped_kv_mqa__prompt.s'
    open(path, 'w').write(out)
    open('launches_f.txt', 'w').write(f"{NAME} 256 1 1 576 1 1 {LDS_BYTES}\n")
```
